```python
import torch

def _softmax(x, axis=-1):
    return torch.softmax(x, dim=axis)
def _gelu(x):
    return torch.nn.functional.gelu(x, approximate="tanh")
def _silu(x):
    return torch.nn.functional.silu(x)
def _sigmoid(x):
    return torch.sigmoid(x)
def _layernorm(x, axis=-1, eps=1e-5):
    m = x.mean(dim=axis, keepdim=True)
    v = x.var(dim=axis, keepdim=True, unbiased=False)
    return (x - m) / torch.sqrt(v + eps)
def _scatter_add(tgt, idx, src, axis=0):
    return tgt.clone().index_add_(axis, idx, src)
def _segment_sum(src, seg, n):
    out = torch.zeros((n,) + src.shape[1:], dtype=src.dtype)
    return out.index_add_(0, seg, src)
def _pad(x, pw):
    flat = tuple(v for pair in reversed(pw) for v in pair)
    return torch.nn.functional.pad(x, flat)

kernel_name = 'gated_mix__sliding_local_dilated__glu_gated_glu__prompt'

def setup_inputs():

    _w = (lambda a: (lambda t: t.to(torch.bfloat16) if t.is_floating_point() else t)(torch.as_tensor(a)))
    def _A_setup():
        B, S, D = 1, 2048, 512
        return {
            "x": _w((lambda *s: torch.randn(*s, dtype=torch.bfloat16) * 0.05)(B, S, D)),
            "wqkv": _w((lambda *s: torch.randn(*s, dtype=torch.bfloat16) * 0.8)(D, 3 * D)),
            "wo": _w((lambda *s: torch.randn(*s, dtype=torch.bfloat16) * 0.05)(D, D)),
        }
    _A_in = _A_setup()

    def _B_setup():
        B, S, D, F = 1, 2048, 512, 1792
        return {
            "x": _w((lambda *s: torch.randn(*s, dtype=torch.bfloat16) * 0.05)(B, S, D)),
            "w_gate": _w((lambda *s: torch.randn(*s, dtype=torch.bfloat16) * 3.2)(D, F)),
            "w_up": _w((lambda *s: torch.randn(*s, dtype=torch.bfloat16) * 0.1)(D, F)),
            "w_down": _w((lambda *s: torch.randn(*s, dtype=torch.bfloat16) * 0.1)(F, D)),
        }
    _B_in = _B_setup()

    return {
        "A_x": _A_in["x"],
        "A_wqkv": _A_in["wqkv"],
        "A_wo": _A_in["wo"],
        "B_x": _B_in["x"],
        "B_w_gate": _B_in["w_gate"],
        "B_w_up": _B_in["w_up"],
        "B_w_down": _B_in["w_down"],
        "gate_w": _w((lambda *s: torch.randn(*s, dtype=torch.bfloat16) * 0.05)(512) * 16.0),
    }

def reference(A_x, A_wqkv, A_wo, B_x, B_w_gate, B_w_up, B_w_down, gate_w):
    def _A_ref(x, wqkv, wo):
        B, S, D = x.shape
        H = 32; Dh = D // H
        W, dil = 8, 2
        qkv = (lambda x, *d: x.permute(*d))((x @ wqkv).reshape(B, S, 3, H, Dh), 2, 0, 3, 1, 4)
        q, k, v = qkv[0], qkv[1], qkv[2]
        scale = Dh ** -0.5
        pos = torch.arange(S)
        off = torch.arange(W) * dil
        idx = pos[:, None] - off[None, :]
        mask = idx >= 0
        idx_c = torch.where(mask, idx, 0).reshape(-1)
        kg = k[:, :, idx_c, :].reshape(B, H, S, W, Dh)
        vg = v[:, :, idx_c, :].reshape(B, H, S, W, Dh)
        logits = torch.einsum("bhsd,bhswd->bhsw", q, kg) * scale
        logits = torch.where(mask[None, None, :, :], logits, -1e9)
        attn = _softmax(logits, axis=-1)
        o = torch.einsum("bhsw,bhswd->bhsd", attn, vg)
        return (lambda x, *d: x.permute(*d))(o, 0, 2, 1, 3).reshape(B, S, D) @ wo

    def _B_ref(x, w_gate, w_up, w_down):
        g = torch.einsum("bsd,df->bsf", x, w_gate)
        u = torch.einsum("bsd,df->bsf", x, w_up)
        h = _sigmoid(g) * u
        return torch.einsum("bsf,fd->bsd", h, w_down)

    x = A_x
    g = _sigmoid((x * gate_w).sum(-1, keepdims=True))
    a = _A_ref(x, A_wqkv, A_wo)
    b = _B_ref(x, B_w_gate, B_w_up, B_w_down)
    return g * a + (1 - g) * b
```

```python
import re

_REG = re.compile(r'^(-?)(?:abs\()?([vas])(?:(\d+)|\[(\d+):(\d+)\])\)?$')
TRANS = ('v_exp_f32', 'v_log_f32', 'v_rcp_f32', 'v_rsq_f32', 'v_sqrt_f32', 'v_sin_f32', 'v_cos_f32')


def regs_of(tok):
    tok = tok.strip()
    if tok in ('vcc', 'exec'):
        return [tok]
    if tok == 'm0':
        return ['m0']
    m = _REG.match(tok)
    if not m:
        return []
    k = m.group(2)
    if m.group(3) is not None:
        return [k + m.group(3)]
    return [k + str(i) for i in range(int(m.group(4)), int(m.group(5)) + 1)]


def split_ops(text):
    text = text.split(';')[0].strip()
    parts = text.split(None, 1)
    mn = parts[0]
    ops = []
    mods = []
    if len(parts) > 1:
        raw = [p.strip() for p in re.split(r',(?![^\[]*\])', parts[1])]
        for i, p in enumerate(raw):
            toks = p.split()
            if not toks:
                continue
            ops.append(toks[0])
            mods += toks[1:]
    return mn, ops, mods


class Ins:
    __slots__ = ('text', 'mn', 'kind', 'rd', 'wr', 'srcc', 'passes', 'data', 'ab')

    def __init__(self, text):
        self.text = text
        self.rd = set(); self.wr = set(); self.srcc = set(); self.passes = 0; self.data = set(); self.ab = set()
        t = text.strip()
        if not t or t.startswith(';') or t.startswith('.') or t.endswith(':'):
            self.kind = 'label' if t.endswith(':') else 'dir'
            self.mn = ''
            return
        mn, ops, mods = split_ops(t)
        base = re.sub(r'_e(32|64)$', '', mn)
        self.mn = base
        R = [regs_of(o) for o in ops]
        if base.startswith('v_mfma'):
            self.kind = 'mfma'
            self.passes = 8 if '32x32' in base else 4
            self.wr = set(R[0]); self.ab = set(R[1]) | set(R[2]); self.srcc = set(R[3])
            self.rd = self.ab | self.srcc
        elif base.startswith('v_'):
            self.kind = 'trans' if base in TRANS else 'valu'
            if base.startswith('v_cmp'):
                self.wr = set(R[0]); self.rd = set(sum(R[1:], []))
                if base.startswith('v_cmpx'):
                    self.wr.add('exec')
            elif base in ('v_swap_b32',) or base.startswith('v_permlane'):
                self.wr = set(R[0]) | set(R[1]); self.rd = set(self.wr)
            else:
                self.wr = set(R[0]); self.rd = set(sum(R[1:], []))
                if base in ('v_fmac_f32', 'v_dot2c_f32_bf16', 'v_writelane_b32'):
                    self.rd |= self.wr
                if base in ('v_add_co_u32', 'v_addc_co_u32', 'v_sub_co_u32'):
                    self.wr |= set(R[1])
        elif base.startswith('ds_'):
            self.kind = 'ds'
            if base.startswith('ds_read') or base.startswith('ds_bpermute') or base.startswith('ds_swizzle'):
                self.wr = set(R[0]); self.rd = set(sum(R[1:], []))
            else:
                self.rd = set(sum(R, []))
        elif base.startswith('buffer_') or base.startswith('global_'):
            self.kind = 'vmem'
            if base in ('buffer_inv', 'buffer_wbl2'):
                pass
            elif 'lds' in mods:
                self.rd = set(sum(R, [])) | {'m0'}
            elif '_load' in base:
                self.wr = set(R[0]); self.rd = set(sum(R[1:], []))
            elif base.startswith('buffer_'):
                self.rd = set(sum(R, []))
                if len(R[0]) > 2:
                    self.data = set(R[0])
                if 'atomic' in base and 'sc0' in mods:
                    self.wr = set(R[0])
            else:
                self.rd = set(sum(R, []))
                if len(R[1]) > 2:
                    self.data = set(R[1])
        elif base.startswith('s_'):
            self.kind = 'salu'
            if base in ('s_nop', 's_waitcnt', 's_barrier', 's_endpgm', 's_setprio', 's_sleep', 's_branch') or base.startswith('s_cbranch'):
                pass
            elif base.startswith('s_cmp') or base.startswith('s_bitcmp'):
                self.rd = set(sum(R, []))
            else:
                self.wr = set(R[0]); self.rd = set(sum(R[1:], []))
                if 'saveexec' in base:
                    self.wr.add('exec')
        else:
            raise ValueError('unknown instr: ' + text)


def fix_hazards(lines, report=None):
    out = []
    pos = 0
    valu_w = {}
    trans_w = {}
    mfma_w = {}
    mfma_c = {}
    st_data = {}
    salu_m0 = -100
    nnop = 0
    for text in lines:
        ins = Ins(text)
        if ins.kind in ('label', 'dir'):
            out.append(text)
            continue
        need = 0

        def req(p, d):
            nonlocal need
            gap = pos - p - 1
            if gap < d:
                need = max(need, d - gap)
        isv = ins.kind in ('valu', 'trans')
        if ins.kind == 'mfma':
            for r in ins.rd:
                if r in valu_w:
                    req(valu_w[r], 2)
            for r in ins.ab:
                if r in mfma_w:
                    p, ps, _ = mfma_w[r]
                    req(p, {4: 8, 8: 12}[ps])
            for r in ins.srcc:
                if r in mfma_w:
                    p, ps, dset = mfma_w[r]
                    if dset == ins.srcc and ps == ins.passes:
                        pass
                    else:
                        req(p, {4: 6, 8: 10}[ps])
            for r in ins.wr:
                if r in mfma_w and r not in ins.srcc:
                    p, ps, dset = mfma_w[r]
                    req(p, {4: 6, 8: 10}[ps])
            if 'exec' in valu_w:
                req(valu_w['exec'], 4)
        else:
            if ins.kind in ('valu', 'trans', 'ds', 'vmem'):
                for r in (ins.rd | ins.wr):
                    if r in mfma_w:
                        p, ps, _ = mfma_w[r]
                        req(p, {4: 8, 8: 12}[ps])
            if isv:
                for r in ins.wr:
                    if r in mfma_c:
                        p, ps = mfma_c[r]
                        req(p, {4: 3, 8: 7}[ps])
                    if r in st_data:
                        req(st_data[r], 2)
                if ins.kind == 'valu':
                    for r in ins.rd:
                        if r in trans_w:
                            req(trans_w[r], 1)
                for r in ins.rd:
                    if (r[0] == 's' or r == 'vcc') and r in valu_w:
                        req(valu_w[r], 4 if ins.mn in ('v_readlane_b32', 'v_writelane_b32') else 2)
                if ins.mn.startswith('v_permlane'):
                    for r in ins.rd:
                        if r in valu_w:
                            req(valu_w[r], 2)
                    if 'exec' in valu_w:
                        req(valu_w['exec'], 4)
                if ins.mn in ('v_readfirstlane_b32', 'v_readlane_b32'):
                    for r in ins.rd:
                        if r in valu_w:
                            req(valu_w[r], 1)
                    if 'exec' in valu_w:
                        req(valu_w['exec'], 4)
                if 'dpp' in text or 'row_' in text or 'quad_perm' in text:
                    for r in ins.rd:
                        if r in valu_w:
                            req(valu_w[r], 2)
            if ins.kind in ('ds', 'vmem'):
                for r in ins.wr:
                    if r in st_data:
                        req(st_data[r], 1)
                for r in ins.rd:
                    if r in trans_w:
                        req(trans_w[r], 1)
            if ins.kind == 'vmem':
                for r in ins.rd:
                    if r[0] == 's' and r in valu_w:
                        req(valu_w[r], 5)
                if 'm0' in ins.rd:
                    req(salu_m0, 1)
            if ins.kind == 'salu':
                for r in ins.rd:
                    if r in valu_w:
                        req(valu_w[r], 2)
        while need > 0:
            k = min(need, 16)
            out.append('s_nop %d' % (k - 1))
            pos += k
            need -= k
            nnop += k
        out.append(text)
        if isv:
            for r in ins.wr:
                valu_w[r] = pos
                mfma_w.pop(r, None)
                if ins.kind == 'trans':
                    trans_w[r] = pos
                else:
                    trans_w.pop(r, None)
        elif ins.kind == 'mfma':
            for r in ins.wr:
                mfma_w[r] = (pos, ins.passes, ins.wr)
                valu_w.pop(r, None); trans_w.pop(r, None)
            for r in ins.srcc:
                mfma_c[r] = (pos, ins.passes)
        elif ins.kind == 'salu':
            for r in ins.wr:
                valu_w.pop(r, None)
            if 'm0' in ins.wr:
                salu_m0 = pos
        if ins.data:
            for r in ins.data:
                st_data[r] = pos
        if ins.mn == 's_nop':
            pos += int(text.split()[1], 0) + 1
        else:
            pos += 1
    if report is not None:
        report['nops'] = nnop
    return out


def interleave(main, fillers, start=0, per=None):
    out = []
    n = len(main) - start
    k = len(fillers)
    fi = 0
    for i, m in enumerate(main):
        out.append(m)
        if i < start:
            continue
        if per is None:
            tgt = ((i - start + 1) * k + n - 1) // n
        else:
            tgt = min(k, (i - start + 1) * per)
        while fi < tgt:
            f = fillers[fi]
            if isinstance(f, str):
                out.append(f)
            else:
                out.extend(f)
            fi += 1
    while fi < k:
        f = fillers[fi]
        if isinstance(f, str):
            out.append(f)
        else:
            out.extend(f)
        fi += 1
    return out


class VmTracker:
    def __init__(self):
        self.tags = []

    def issue(self, tag):
        self.tags.append(tag)

    def wait_for(self, pred):
        last = -1
        for i, t in enumerate(self.tags):
            if pred(t):
                last = i
        n = len(self.tags) - 1 - last
        return min(n, 63)
```

```python
import sys
from asmlib import *

NAME = "gated_mix__sliding_local_dilated__glu_gated_glu__prompt"
A2_BYTES = 32 * 72 * 4096
G_OFF = A2_BYTES
MT_STRIDE = 72 * 4096
LOG2E = 0x3fb8aa3b
NLOG2E = 0xbfb8aa3b
SCL = 0x3eb8aa3b
BIG = 0x40000000

OPT = dict(rot=0, pk=1, iprefetch=1)
for a in sys.argv[1:]:
    if '=' in a:
        k, v = a.split('=')
        OPT[k] = int(v)


def v4(b):
    return "v[%d:%d]" % (b, b + 3)


def v2(b):
    return "v[%d:%d]" % (b, b + 1)


def a4(b):
    return "a[%d:%d]" % (b, b + 3)


def a2(b):
    return "a[%d:%d]" % (b, b + 1)


def srd(L, d, lo, hi, nbytes, bias=0):
    if bias:
        L += ["s_sub_u32 s%d, s%d, %d" % (d, lo, bias), "s_subb_u32 s%d, s%d, 0" % (d + 1, hi)]
    else:
        L += ["s_mov_b32 s%d, s%d" % (d, lo), "s_mov_b32 s%d, s%d" % (d + 1, hi)]
    L += ["s_mov_b32 s%d, 0x%x" % (d + 2, nbytes + bias), "s_mov_b32 s%d, 0x20000" % (d + 3)]


sX, sW, sA, sG = 16, 20, 24, 28
sWV, sRB0, sCG = 32, 33, 34
sKX, sKW, sKT, sMX, sMW, sROT = 40, 41, 42, 43, 44, 45
sT = 48
sC0 = 64

vLANE = 1
vXD = 2
vWD = 9
vRD = 13
ACC = 64


class LdsBases:
    def __init__(self, first_reg, last_reg):
        self.next = first_reg
        self.last = last_reg
        self.map = {}
        self.setup = []

    def alloc(self):
        r = self.next
        self.next += 1
        assert r <= self.last
        return r

    def addr(self, patreg, off):
        ch = off // 0xC000
        if ch == 0:
            return patreg, off
        key = (patreg, ch)
        if key not in self.map:
            r = self.alloc()
            self.map[key] = r
            self.setup.append("v_add_u32 v%d, 0x%x, v%d" % (r, ch * 0xC000, patreg))
        return self.map[key], off - ch * 0xC000


def k1_common_x_setup(L, typ):
    L += ["v_lshrrev_b32 v32, 3, v%d" % vLANE,
          "v_lshrrev_b32 v33, 4, v%d" % vLANE,
          "v_and_b32 v34, 7, v%d" % vLANE,
          "v_xor_b32 v35, v34, v33",
          "v_lshlrev_b32 v35, 4, v35",
          "v_lshl_add_u32 v36, v32, 11, v35",
          "v_xor_b32 v37, 64, v36",
          ]
    L += ["s_mul_i32 s%d, s%d, 3" % (sT, sWV), "s_add_u32 s%d, s%d, s%d" % (sT, sT, sRB0)]
    for bb in range(3):
        L += ["s_add_u32 s%d, s%d, %d" % (sT + 1, sT, bb),
              "s_lshr_b32 s%d, s%d, 1" % (sT + 2, sT + 1),
              "s_lshl_b32 s%d, s%d, 15" % (sT + 2, sT + 2),
              "s_and_b32 s%d, s%d, 1" % (sT + 1, sT + 1),
              "s_lshl_b32 s%d, s%d, 10" % (sT + 1, sT + 1),
              "s_add_u32 s%d, s%d, s%d" % (sT + 2, sT + 2, sT + 1)]
        if typ == 'H' and bb == 2:
            L += ["s_cmp_eq_u32 s%d, 3" % sWV, "s_cselect_b32 s%d, 0x%x, s%d" % (sT + 2, BIG, sT + 2)]
        for dd in range(2):
            d = 2 * bb + dd
            add = 4096 - 1024 * (d & 3) + (16384 if dd else 0)
            L += ["s_add_u32 s%d, s%d, %d" % (sT + 3, sT + 2, add),
                  "v_add_u32 v%d, s%d, v%d" % (vXD + d, sT + 3, 36 + dd)]


def gen_main(typ, xslot, nxs, wbase, wslot, nws, wpitch, nwd, xreads, wreads, mfmas, extra_fill):
    L = []
    vm = VmTracker()
    nxd = 7 if typ == 'Q' else 6

    def xdma(s, dlist):
        out = []
        slot = (s % nxs) * xslot
        for d in dlist:
            grp = []
            if d == 0:
                grp.append("s_add_u32 m0, s%d, %d" % (sMX, slot))
            elif d == 3 and dlist[0] == 3:
                grp.append("s_add_u32 m0, s%d, %d" % (sMX, slot))
            elif d == 4:
                grp.append("s_add_u32 m0, s%d, %d" % (sMX, slot + 4096))
            elif d == 6:
                grp.append("s_add_u32 m0, s%d, %d" % (sMW + 2, slot + 24576))
            imm = 1024 * (d & 3) if d < 6 else 0
            grp.append("buffer_load_dwordx4 v%d, s[%d:%d], s%d offen offset:%d lds" % (vXD + d, sX, sX + 3, sKX, imm))
            vm.issue(('x', s))
            if d == nxd - 1:
                grp += ["s_add_u32 s%d, s%d, 128" % (sKX, sKX), "s_and_b32 s%d, s%d, 1023" % (sKX, sKX)]
            out.append(grp)
        return out

    def wdma(t):
        out = []
        slot = wbase + (t % nws) * wslot
        for e in range(nwd):
            grp = []
            if e == 0:
                grp.append("s_add_u32 m0, s%d, %d" % (sMW, slot))
            grp.append("buffer_load_dwordx4 v%d, s[%d:%d], s%d offen offset:%d lds" % (vWD + e, sW, sW + 3, sKW, 1024 * e))
            vm.issue(('w', t))
            if e == nwd - 1:
                grp += ["s_add_u32 s%d, s%d, 1" % (sKT, sKT), "s_and_b32 s%d, s%d, 15" % (sKT, sKT),
                        "s_mul_i32 s%d, s%d, %d" % (sKW, sKT, 32 * wpitch)]
            out.append(grp)
        return out

    def flat(g):
        r = []
        for x in g:
            r += x
        return r
    pro = []
    order = [('x', 0), ('w', 0), ('w', 1), ('x', 1), ('w', 2), ('w', 3), ('x', 2)] + [('w', i) for i in range(4, nws)]
    for k, i in order:
        pro += flat(xdma(i, list(range(nxd)))) if k == 'x' else flat(wdma(i))

    def need(t):
        return lambda tag: (tag[0] == 'x' and tag[1] <= t // 2) or (tag[0] == 'w' and tag[1] <= t) or tag[0] == 'g'

    def reads(t):
        xo = ((t // 2) % nxs) * xslot
        wo = wbase + (t % nws) * wslot
        return wreads(t, t & 1, wo) + xreads(t, t & 1, xo)
    body = []
    body += ["s_waitcnt vmcnt(%d)" % vm.wait_for(need(0)), "s_barrier"]
    body += reads(0)
    body += ["s_waitcnt lgkmcnt(0)"]
    for t in range(16):
        fill = []
        if t < 15:
            body += ["s_waitcnt vmcnt(%d)" % vm.wait_for(need(t + 1)), "s_barrier"]
            rd = reads(t + 1)
        else:
            rd = []
        dm = []
        if t + nws < 16:
            dm += wdma(t + nws)
        if t % 2 == 1 and (t - 1) // 2 + nxs < 8:
            dm += xdma((t - 1) // 2 + nxs, [0, 1, 2])
        if t % 2 == 0 and t >= 2 and (t - 2) // 2 + nxs < 8:
            dm += xdma((t - 2) // 2 + nxs, list(range(3, nxd)))
        mf = mfmas(t, t & 1)
        fill = []
        ri = di = 0
        ef = extra_fill.get(t, [])
        while ri < len(rd) or di < len(dm):
            for _ in range(3):
                if ri < len(rd):
                    fill.append(rd[ri]); ri += 1
            if di < len(dm):
                fill.append(dm[di]); di += 1
        n_use = len(mf) - 4
        seq = interleave(mf[:n_use], fill) + mf[n_use:]
        if ef:
            seq = interleave(seq, ef)
        body += seq
        if t < 15:
            body += ["s_waitcnt lgkmcnt(0)"]
    return pro, body, vm


def gen_H():
    L = []
    L += ["s_mul_i32 s%d, s36, 21" % sT, "s_add_u32 s%d, s%d, s37" % (sT, sT), "s_sub_u32 s%d, s%d, 11" % (sT, sT),
          "s_mul_i32 s%d, s%d, 171" % (sCG, sT), "s_lshr_b32 s%d, s%d, 11" % (sCG, sCG),
          "s_mul_i32 s%d, s%d, 12" % (sT + 1, sCG), "s_sub_u32 s%d, s%d, s%d" % (sT, sT, sT + 1),
          "s_mul_i32 s%d, s%d, 11" % (sRB0, sT)]
    if OPT['rot']:
        L += ["s_add_u32 s%d, s%d, s%d" % (sROT, sT, sCG), "s_and_b32 s%d, s%d, 7" % (sROT, sROT)]
    else:
        L += ["s_mov_b32 s%d, 0" % sROT]
    k1_common_x_setup(L, 'H')
    L += ["v_and_b32 v38, 1, v33", "v_lshlrev_b32 v38, 1, v38", "v_xor_b32 v38, v34, v38", "v_lshlrev_b32 v38, 4, v38",
          "s_movk_i32 s%d, 3584" % sT,
          "v_mad_u32_u24 v38, v32, s%d, v38" % sT,
          "v_xor_b32 v39, 64, v38",
          "s_and_b32 s%d, s%d, 1" % (sT, sWV), "s_lshl_b32 s%d, s%d, 7" % (sT, sT),
          "s_lshl_b32 s%d, s%d, 8" % (sT + 1, sCG), "s_add_u32 s%d, s%d, s%d" % (sT, sT, sT + 1)]
    for e in range(4):
        L += ["s_add_u32 s%d, s%d, %d" % (sT + 1, sT, e * (8 * 3584 - 1024)),
              "v_add_u32 v%d, s%d, v%d" % (vWD + e, sT + 1, 38 + (e & 1))]
    L += ["s_mul_i32 s%d, s%d, 6144" % (sMX, sWV), "s_lshl_b32 s%d, s%d, 12" % (sMW, sWV),
          "s_lshl_b32 s%d, s%d, 7" % (sKX, sROT), "s_lshl_b32 s%d, s%d, 1" % (sKT, sROT),
          "s_mul_i32 s%d, s%d, %d" % (sKW, sKT, 32 * 3584)]
    L += ["s_waitcnt lgkmcnt(0)"]
    srd(L, sX, 4, 5, 2048 * 1024, bias=4096)
    L += ["s_cmp_lt_u32 s%d, 2" % sWV, "s_cselect_b32 s%d, s8, s10" % sW, "s_cselect_b32 s%d, s9, s11" % (sW + 1),
          "s_mov_b32 s%d, %d" % (sW + 2, 512 * 3584), "s_mov_b32 s%d, 0x20000" % (sW + 3)]
    XS, WB, WS = 24576, 73728, 16384
    lb = LdsBases(vRD + 4, 31)
    vx0, vx1, vw0, vw1 = vRD, vRD + 1, vRD + 2, vRD + 3
    S2 = []
    S2 += ["v_and_b32 v40, 15, v%d" % vLANE, "v_lshrrev_b32 v41, 1, v40", "v_xor_b32 v41, v41, v33",
           "v_lshlrev_b32 v41, 4, v41", "v_lshl_add_u32 v%d, v40, 7, v41" % vx0, "v_xor_b32 v%d, 64, v%d" % (vx1, vx0)]
    S2 += ["v_lshrrev_b32 v42, 2, v40",
           "v_lshl_add_u32 v43, v33, 3, v42",
           "v_lshrrev_b32 v44, 1, v42", "v_and_b32 v45, 1, v33", "v_lshl_add_u32 v44, v45, 1, v44",
           "s_and_b32 s%d, s%d, 1" % (sT, sWV), "s_lshl_b32 s%d, s%d, 1" % (sT, sT),
           "v_xor_b32 v44, s%d, v44" % sT,
           "v_lshlrev_b32 v44, 5, v44", "v_lshl_add_u32 v43, v43, 7, v44",
           "v_and_b32 v45, 3, v%d" % vLANE, "v_lshl_add_u32 v43, v45, 3, v43",
           "s_lshr_b32 s%d, s%d, 1" % (sT, sWV), "s_lshl_b32 s%d, s%d, 12" % (sT, sT),
           "v_add_u32 v%d, s%d, v43" % (vw0, sT), "v_xor_b32 v%d, 32, v%d" % (vw1, vw0)]
    AW, AX = 0, 64

    def xreads(t, buf, xo):
        out = []
        for b in range(11):
            r, o = lb.addr(vx1 if (t & 1) else vx0, xo + 2048 * b)
            out.append("ds_read_b128 %s, v%d offset:%d" % (a4(AX + 44 * buf + 4 * b), r, o))
        return out

    def wreads(t, buf, wo):
        out = []
        for q in range(4):
            for h in range(2):
                r, o = lb.addr(vw1 if (q & 1) else vw0, wo + (8192 if q >= 2 else 0) + 512 * h)
                out.append("ds_read_b64_tr_b16 %s, v%d offset:%d" % (a2(AW + 16 * buf + 4 * q + 2 * h), r, o))
        return out

    def mfmas(t, buf):
        out = []
        for b in range(11):
            for q in range(4):
                d = v4(ACC + 16 * b + 4 * q)
                out.append("v_mfma_f32_16x16x32_bf16 %s, %s, %s, %s" % (d, a4(AW + 16 * buf + 4 * q), a4(AX + 44 * buf + 4 * b), d if t else "0"))
        return out
    ES = []
    srd(ES, sA, 14, 15, A2_BYTES)
    ES += ["s_mov_b32 s%d, 0x%x" % (sC0, NLOG2E), "s_mov_b32 s%d, 0x%x" % (sC0 + 1, NLOG2E),
           "s_mov_b32 s%d, 1.0" % (sC0 + 2), "s_mov_b32 s%d, 1.0" % (sC0 + 3),
           "s_lshl_b32 s%d, s%d, 2" % (sT, sCG), "s_add_u32 s%d, s%d, s%d" % (sT, sT, sWV),
           "s_add_u32 s%d, s%d, 16" % (sT, sT), "s_lshl_b32 s%d, s%d, 12" % (sT, sT),
           "v_lshlrev_b32 v32, 4, v%d" % vLANE, "v_add_u32 v32, s%d, v32" % sT]
    pro, body, vm = gen_main('H', XS, 3, WB, WS, 5, 3584, 4, xreads, wreads, mfmas, {13: ES})
    L += pro + S2 + lb.setup + body
    for b in range(11):
        base = ACC + 16 * b
        G = [base + i for i in range(8)]
        U = [base + 8 + i for i in range(8)]
        L += ["s_add_u32 s%d, s%d, %d" % (sT, sRB0, b), "s_lshr_b32 s%d, s%d, 2" % (sT + 1, sT),
              "s_mul_i32 s%d, s%d, %d" % (sT + 1, sT + 1, MT_STRIDE), "s_and_b32 s%d, s%d, 3" % (sT, sT),
              "s_lshl_b32 s%d, s%d, 10" % (sT, sT), "s_add_u32 s%d, s%d, s%d" % (sT + 2, sT, sT + 1)]
        if OPT['pk']:
            L += ["v_pk_mul_f32 %s, %s, s[%d:%d]" % (v2(G[i]), v2(G[i]), sC0, sC0 + 1) for i in range(0, 8, 2)]
        else:
            L += ["v_mul_f32 v%d, s%d, v%d" % (g, sC0, g) for g in G]
        L += ["v_exp_f32 v%d, v%d" % (g, g) for g in G]
        if OPT['pk']:
            L += ["v_pk_add_f32 %s, %s, s[%d:%d]" % (v2(G[i]), v2(G[i]), sC0 + 2, sC0 + 3) for i in range(0, 8, 2)]
        else:
            L += ["v_add_f32 v%d, 1.0, v%d" % (g, g) for g in G]
        L += ["v_rcp_f32 v%d, v%d" % (g, g) for g in G]
        if OPT['pk']:
            L += ["v_pk_mul_f32 %s, %s, %s" % (v2(U[i]), v2(U[i]), v2(G[i])) for i in range(0, 8, 2)]
        else:
            L += ["v_mul_f32 v%d, v%d, v%d" % (u, u, g) for u, g in zip(U, G)]
        L += ["v_cvt_pk_bf16_f32 v%d, v%d, v%d" % (G[i], U[2 * i], U[2 * i + 1]) for i in range(4)]
        L += ["buffer_store_dwordx4 %s, v32, s[%d:%d], s%d offen" % (v4(base), sA, sA + 3, sT + 2)]
    L += ["s_endpgm"]
    return L


def gen_Q():
    L = []
    L += ["s_mov_b32 s%d, s36" % sCG, "s_mul_i32 s%d, s37, 12" % sRB0]
    if OPT['rot']:
        L += ["s_and_b32 s%d, s37, 7" % sROT]
    else:
        L += ["s_mov_b32 s%d, 0" % sROT]
    k1_common_x_setup(L, 'Q')
    L += ["s_lshl_b32 s%d, s%d, 4" % (sT, sRB0), "s_add_u32 s%d, s%d, s%d" % (sT, sT, sWV),
          "s_sub_u32 s%d, s%d, 16" % (sT, sT), "s_lshl_b32 s%d, s%d, 10" % (sT, sT), "s_add_u32 s%d, s%d, 4096" % (sT, sT),
          "s_cmp_eq_u32 s%d, 0" % sRB0, "s_cselect_b32 s%d, 0x%x, s%d" % (sT, BIG, sT),
          "s_cmp_ge_u32 s%d, 2" % sWV, "s_cselect_b32 s%d, 0x%x, s%d" % (sT, BIG, sT),
          "s_and_b32 s%d, s%d, 1" % (sT + 1, sWV), "s_lshl_b32 s%d, s%d, 6" % (sT + 1, sT + 1),
          "v_xor_b32 v38, s%d, v36" % (sT + 1), "v_add_u32 v%d, s%d, v38" % (vXD + 6, sT)]
    L += ["v_and_b32 v38, 1, v33", "v_lshlrev_b32 v38, 1, v38", "v_xor_b32 v38, v34, v38", "v_lshlrev_b32 v38, 4, v38",
          "s_movk_i32 s%d, 3072" % sT,
          "v_mad_u32_u24 v38, v32, s%d, v38" % sT,
          "s_mul_i32 s%d, s%d, 3" % (sT, sWV), "s_lshl_b32 s%d, s%d, 7" % (sT + 4, sCG)]
    for e in range(3):
        L += ["s_add_u32 s%d, s%d, %d" % (sT + 1, sT, e),
              "s_and_b32 s%d, s%d, 3" % (sT + 2, sT + 1), "s_mul_i32 s%d, s%d, %d" % (sT + 2, sT + 2, 8 * 3072),
              "s_lshr_b32 s%d, s%d, 2" % (sT + 3, sT + 1), "s_lshl_b32 s%d, s%d, 10" % (sT + 3, sT + 3),
              "s_add_u32 s%d, s%d, s%d" % (sT + 2, sT + 2, sT + 3), "s_add_u32 s%d, s%d, s%d" % (sT + 2, sT + 2, sT + 4),
              "s_sub_u32 s%d, s%d, %d" % (sT + 2, sT + 2, 1024 * e),
              "s_and_b32 s%d, s%d, 1" % (sT + 1, sT + 1), "s_lshl_b32 s%d, s%d, 6" % (sT + 1, sT + 1),
              "v_xor_b32 v39, s%d, v38" % (sT + 1), "v_add_u32 v%d, s%d, v39" % (vWD + e, sT + 2)]
    L += ["s_mul_i32 s%d, s%d, 6144" % (sMX, sWV), "s_mul_i32 s%d, s%d, 3072" % (sMW, sWV),
          "s_lshl_b32 s%d, s%d, 10" % (sMW + 2, sWV),
          "s_lshl_b32 s%d, s%d, 7" % (sKX, sROT), "s_lshl_b32 s%d, s%d, 1" % (sKT, sROT),
          "s_mul_i32 s%d, s%d, %d" % (sKW, sKT, 32 * 3072)]
    L += ["s_lshl_b32 s%d, s%d, 3" % (sT, sROT), "v_add_u32 v39, s%d, v%d" % (sT, vLANE), "v_and_b32 v39, 63, v39",
          "v_lshlrev_b32 v39, 4, v39"]
    L += ["s_waitcnt lgkmcnt(0)"]
    srd(L, sX, 4, 5, 2048 * 1024, bias=4096)
    srd(L, sW, 6, 7, 512 * 3072)
    srd(L, sG, 12, 13, 1024)
    XS, WB, WS, NWS = 28672, 86016, 12288, 6
    GW = WB + NWS * WS
    L += ["s_mov_b32 m0, %d" % GW, "s_nop 0", "buffer_load_dwordx4 v39, s[%d:%d], 0 offen lds" % (sG, sG + 3)]
    lb = LdsBases(vRD + 9, 31)
    lb2 = LdsBases(46, 63)
    vx0, vx1, vw0, vw1, vh0, vh1, vt0, vt1, vg = [vRD + i for i in range(9)]
    S2 = []
    S2 += ["v_and_b32 v40, 15, v%d" % vLANE, "v_lshrrev_b32 v41, 1, v40", "v_xor_b32 v41, v41, v33",
           "v_lshlrev_b32 v41, 4, v41", "v_lshl_add_u32 v42, v40, 7, v41",
           "s_lshr_b32 s%d, s%d, 1" % (sT, sWV),
           "s_mul_i32 s%d, s%d, %d" % (sT + 1, sT, 6 * 2048),
           "v_add_u32 v%d, s%d, v42" % (vx0, sT + 1), "v_xor_b32 v%d, 64, v%d" % (vx1, vx0)]
    S2 += ["s_lshl_b32 s%d, s%d, 2" % (sT + 1, sCG), "s_add_u32 s%d, s%d, s%d" % (sT + 1, sT + 1, sWV),
           "s_min_u32 s%d, s%d, 11" % (sT + 1, sT + 1), "s_lshl_b32 s%d, s%d, 11" % (sT + 1, sT + 1),
           "v_add_u32 v%d, s%d, v42" % (vt0, sT + 1), "v_xor_b32 v%d, 64, v%d" % (vt1, vt0)]
    S2 += ["v_or_b32 v43, 8, v40",
           "v_lshrrev_b32 v44, 1, v43", "v_xor_b32 v44, v44, v33", "v_lshlrev_b32 v44, 4, v44",
           "v_lshl_add_u32 v44, v43, 7, v44",
           "v_lshrrev_b32 v45, 3, v40", "v_lshl_add_u32 v44, v45, 11, v44", "v_add_u32 v44, %d, v44" % (4 * 2048),
           "v_add_u32 v45, %d, v42" % (12 * 2048),
           "s_cmp_eq_u32 s%d, 0" % sT, "s_cselect_b64 vcc, -1, 0",
           "v_cndmask_b32 v%d, v44, v45, vcc" % vh0, "v_xor_b32 v%d, 64, v%d" % (vh1, vh0)]
    S2 += ["v_lshrrev_b32 v42, 2, v40",
           "v_lshl_add_u32 v43, v33, 3, v42",
           "v_lshrrev_b32 v44, 1, v42", "v_and_b32 v45, 1, v33", "v_lshl_add_u32 v44, v45, 1, v44",
           "s_and_b32 s%d, s%d, 1" % (sT, sWV), "s_lshl_b32 s%d, s%d, 1" % (sT, sT),
           "v_xor_b32 v44, s%d, v44" % sT,
           "v_lshlrev_b32 v44, 5, v44", "v_lshl_add_u32 v43, v43, 7, v44",
           "v_and_b32 v45, 3, v%d" % vLANE, "v_lshl_add_u32 v%d, v45, 3, v43" % vw0,
           "v_xor_b32 v%d, 32, v%d" % (vw1, vw0),
           "v_lshlrev_b32 v45, 4, v33", "v_add_u32 v%d, %d, v45" % (vg, GW)]
    AW, AX = 0, 64

    def Qa(hh, b): return ACC + 4 * (hh * 20 + b)
    def Ka(hh, b): return ACC + 4 * (hh * 20 + 6 + b)
    def Va(hh, b): return ACC + 4 * (hh * 20 + 13 + b)
    TA = ACC + 160

    def xreads(t, buf, xo):
        out = []
        for b in range(6):
            r, o = lb.addr(vx1 if (t & 1) else vx0, xo + 2048 * b)
            out.append("ds_read_b128 %s, v%d offset:%d" % (a4(AX + 36 * buf + 4 * b), r, o))
        r, o = lb.addr(vh1 if (t & 1) else vh0, xo)
        out.append("ds_read_b128 %s, v%d offset:%d" % (a4(AX + 36 * buf + 24), r, o))
        r, o = lb.addr(vt1 if (t & 1) else vt0, xo)
        out.append("ds_read_b128 %s, v%d offset:%d" % (a4(AX + 36 * buf + 28), r, o))
        out.append("ds_read_b128 %s, v%d offset:%d" % (a4(AX + 36 * buf + 32), vg, 64 * t))
        return out

    def wreads(t, buf, wo):
        out = []
        for seg in range(3):
            for hh in range(2):
                for h in range(2):
                    r, o = lb2.addr(vw1 if hh else vw0, wo + 4096 * seg + 512 * h)
                    out.append("ds_read_b64_tr_b16 %s, v%d offset:%d" % (a2(AW + 24 * buf + 4 * (seg * 2 + hh) + 2 * h), r, o))
        return out

    def mfmas(t, buf):
        out = []
        W = lambda seg, hh: a4(AW + 24 * buf + 4 * (seg * 2 + hh))
        for b in range(7):
            X = a4(AX + 36 * buf + 4 * b)
            for hh in range(2):
                if b < 6:
                    d = v4(Qa(hh, b)); out.append("v_mfma_f32_16x16x32_bf16 %s, %s, %s, %s" % (d, W(0, hh), X, d if t else "0"))
                d = v4(Ka(hh, b)); out.append("v_mfma_f32_16x16x32_bf16 %s, %s, %s, %s" % (d, W(1, hh), X, d if t else "0"))
                d = v4(Va(hh, b)); out.append("v_mfma_f32_16x16x32_bf16 %s, %s, %s, %s" % (d, X, W(2, hh), d if t else "0"))
        d = v4(TA)
        out.append("v_mfma_f32_16x16x32_bf16 %s, %s, %s, %s" % (d, a4(AX + 36 * buf + 32), a4(AX + 36 * buf + 28), d if t else "0"))
        return out
    MC, MP, MH0, MH1, AM, ONES, SPARE = 228, 232, 236, 240, 244, 248, 252
    vST, vGO = 250, 251
    ES = []
    srd(ES, sA, 14, 15, A2_BYTES)
    ES += [["s_add_u32 s%d, s14, %d" % (sG, G_OFF), "s_addc_u32 s%d, s15, 0" % (sG + 1)], "s_mov_b32 s%d, 8192" % (sG + 2),
           "s_mov_b32 s%d, 0x%x" % (sC0, SCL), "s_mov_b32 s%d, 0x%x" % (sC0 + 1, NLOG2E),
           "s_lshl_b32 s%d, s%d, 1" % (sT, sCG), "s_and_b32 s%d, s%d, 1" % (sT + 1, sWV), "s_add_u32 s%d, s%d, s%d" % (sT, sT, sT + 1),
           "s_lshl_b32 s%d, s%d, 12" % (sT, sT),
           "v_lshlrev_b32 v%d, 4, v%d" % (vST, vLANE), "v_add_u32 v%d, s%d, v%d" % (vST, sT, vST),
           "s_lshl_b32 s%d, s%d, 2" % (sT, sCG), "s_add_u32 s%d, s%d, s%d" % (sT, sT, sWV),
           ["s_add_u32 s%d, s%d, s%d" % (sT + 1, sT, sRB0), "s_lshl_b32 s%d, s%d, 6" % (sT + 1, sT + 1),
            "s_cmp_lt_u32 s%d, 12" % sT, "s_cselect_b32 s%d, s%d, 0x%x" % (sT + 1, sT + 1, BIG)],
           "v_lshl_add_u32 v%d, v%d, 2, s%d" % (vGO, vLANE, sT + 1),
           "v_mov_b32 v%d, 0x%x" % (SPARE, BIG),
           ["v_cmp_gt_u32 vcc, 16, v%d" % vLANE, "v_cndmask_b32 v%d, v%d, v%d, vcc" % (vGO, SPARE, vGO)],
           "v_mov_b32 v%d, 0x3f803f80" % ONES, "v_mov_b32 v%d, 0x3f803f80" % (ONES + 1)]
    ES2 = []
    ES2 += ["v_and_b32 v%d, 15, v%d" % (SPARE, vLANE), "v_lshrrev_b32 v%d, 4, v%d" % (SPARE + 1, vLANE),
            "v_lshlrev_b32 v%d, 2, v%d" % (SPARE + 1, SPARE + 1),
            "v_sub_u32 v%d, v%d, v%d" % (SPARE, SPARE, SPARE + 1),
            "v_mov_b32 v%d, 0xff800000" % (SPARE + 2),
            ["s_lshr_b32 s%d, s%d, 1" % (sT, sWV), "s_or_b32 s%d, s%d, s%d" % (sT, sT, sRB0),
             "s_cmp_lg_u32 s%d, 0" % sT, "s_cselect_b64 s[%d:%d], -1, 0" % (sT + 4, sT + 5)],
            ["s_mov_b32 s%d, s%d" % (sT + 6, sT + 4), "s_mov_b32 s%d, 0" % (sT + 7)],
            "v_mov_b32 v%d, 0" % AM, "v_mov_b32 v%d, 0" % (AM + 1)]
    for r in range(4):
        ES2 += [["v_subrev_u32 v%d, %d, v%d" % (SPARE + 3, r, SPARE), "v_cmp_gt_u32 vcc, 8, v%d" % (SPARE + 3),
                 "v_cndmask_b32 v%d, v%d, 0, vcc" % (MC + r, SPARE + 2),
                 "v_mov_b32 v%d, 0x%x" % (SPARE + 1, 0xffff0000 if (r & 1) else 0xffff),
                 "v_cndmask_b32 v%d, 0, v%d, vcc" % (SPARE + 1, SPARE + 1),
                 "v_or_b32 v%d, v%d, v%d" % (AM + (r >> 1), AM + (r >> 1), SPARE + 1)]]
        ES2 += [["v_add_u32 v%d, %d, v%d" % (SPARE + 3, 16 - r, SPARE), "v_cmp_gt_u32 vcc, 8, v%d" % (SPARE + 3),
                 "v_cndmask_b32 v%d, v%d, 0, vcc" % (MP + r, SPARE + 2),
                 "s_and_b64 vcc, vcc, s[%d:%d]" % (sT + 4, sT + 5),
                 "v_cndmask_b32 v%d, v%d, 0, vcc" % (MH1 + r, SPARE + 2)]]
        ES2 += [["v_add_u32 v%d, %d, v%d" % (SPARE + 3, 8 - r, SPARE), "v_cmp_gt_u32 vcc, 8, v%d" % (SPARE + 3),
                 "s_and_b64 vcc, vcc, s[%d:%d]" % (sT + 6, sT + 7),
                 "v_cndmask_b32 v%d, v%d, 0, vcc" % (MH0 + r, SPARE + 2)]]
    ES2 += ["v_not_b32 v%d, v%d" % (AM + 2, AM), "v_not_b32 v%d, v%d" % (AM + 3, AM + 1)]
    pro, body, vm = gen_main('Q', XS, 3, WB, WS, NWS, 3072, 3, xreads, wreads, mfmas, {12: ES, 13: ES2})
    L += pro + S2 + lb.setup + lb2.setup + body
    VB = 32
    def Vb(hh, par, k): return VB + 16 * hh + 8 * par + 2 * k
    def cvt2(dst, src): return ["v_cvt_pk_bf16_f32 v%d, v%d, v%d" % (dst, src, src + 1), "v_cvt_pk_bf16_f32 v%d, v%d, v%d" % (dst + 1, src + 2, src + 3)]
    units = [(hh, b) for b in range(6) for hh in range(2)]
    for b in range(6):
        for hh in range(2):
            L += cvt2(Qa(hh, b), Qa(hh, b)) + cvt2(Qa(hh, b) + 2, Ka(hh, b)) + cvt2(Vb(hh, b & 1, 1 + (b >> 1)), Va(hh, b))
    for hh in range(2):
        L += cvt2(Ka(hh, 6), Ka(hh, 6)) + cvt2(Vb(hh, 0, 0), Va(hh, 6)) + cvt2(Vb(hh, 1, 0), Va(hh, 6))
    L += ["v_mul_f32 v%d, s%d, v%d" % (TA, sC0 + 1, TA), "v_exp_f32 v%d, v%d" % (TA, TA)]
    for (hh, b) in units:
        L += ["v_mfma_f32_16x16x16_bf16 %s, %s, %s, %s" % (v4(Ka(hh, b)), v2(Qa(hh, b) + 2), v2(Qa(hh, b)), v4(MC))]
        kp = Ka(hh, 6) if b < 2 else Qa(hh, b - 2) + 2
        mk = MH0 if b == 0 else MH1 if b == 1 else MP
        L += ["v_mfma_f32_16x16x16_bf16 %s, %s, %s, %s" % (v4(Va(hh, b)), v2(kp), v2(Qa(hh, b)), v4(mk))]
    L += ["v_add_f32 v%d, 1.0, v%d" % (TA, TA), "v_rcp_f32 v%d, v%d" % (TA, TA)]
    for (hh, b) in units:
        S, P = Ka(hh, b), Va(hh, b)
        L += ["v_max_f32 v%d, v%d, v%d" % (S + r, S + r, P + r) for r in range(4)]
        L += ["v_max3_f32 v%d, v%d, v%d, v%d" % (P, S, S + 1, S + 2), "v_max_f32 v%d, v%d, v%d" % (P, P, S + 3)]
    L += ["buffer_store_dword v%d, v%d, s[%d:%d], 0 offen" % (TA, vGO, sG, sG + 3)]
    grp = [[Va(*units[4 * k + i]) for i in range(4)] for k in range(3)]
    for A, B, C, D in grp:
        L += ["v_permlane32_swap_b32 v%d, v%d" % (A, B), "v_permlane32_swap_b32 v%d, v%d" % (C, D)]
    for A, B, C, D in grp:
        L += ["v_max_f32 v%d, v%d, v%d" % (A, A, B), "v_max_f32 v%d, v%d, v%d" % (C, C, D)]
    for A, B, C, D in grp:
        L += ["v_permlane16_swap_b32 v%d, v%d" % (A, C)]
    for A, B, C, D in grp:
        L += ["v_max_f32 v%d, v%d, v%d" % (A, A, C)]
    for A, B, C, D in grp:
        L += ["v_mul_f32 v%d, s%d, v%d" % (C, sC0, A)]
    for A, B, C, D in grp:
        L += ["v_mul_f32 v%d, s%d, v%d" % (A, sC0, A)]
    for A, B, C, D in grp:
        L += ["v_permlane16_swap_b32 v%d, v%d" % (A, C)]
    for A, B, C, D in grp:
        L += ["v_mov_b32 v%d, v%d" % (B, A), "v_mov_b32 v%d, v%d" % (D, C)]
    for A, B, C, D in grp:
        L += ["v_permlane32_swap_b32 v%d, v%d" % (A, B), "v_permlane32_swap_b32 v%d, v%d" % (C, D)]
    prevP = SPARE
    sums = {}
    for k in range(0, 12, 2):
        us = units[k:k + 2]
        for (hh, b) in us:
            S, P = Ka(hh, b), Va(hh, b)
            L += ["v_fma_f32 v%d, v%d, s%d, -v%d" % (S + r, S + r, sC0, P) for r in range(4)]
        for (hh, b) in us:
            S = Ka(hh, b)
            L += ["v_exp_f32 v%d, v%d" % (S + r, S + r) for r in range(4)]
        for (hh, b) in us:
            S, P = Ka(hh, b), Va(hh, b)
            L += cvt2(P + 2, S)
        for (hh, b) in us:
            P, Q = Va(hh, b), Qa(hh, b)
            L += ["v_and_b32 v%d, v%d, v%d" % (Q, P + 2, AM + 2), "v_and_b32 v%d, v%d, v%d" % (Q + 1, P + 3, AM + 3),
                  "v_and_b32 v%d, v%d, v%d" % (Q + 2, P + 2, AM), "v_and_b32 v%d, v%d, v%d" % (Q + 3, P + 3, AM + 1)]
        for (hh, b) in us:
            S, P, Q = Ka(hh, b), Va(hh, b), Qa(hh, b)
            L += ["v_mfma_f32_16x16x16_bf16 %s, %s, %s, 0" % (v4(prevP), v2(ONES), v2(P + 2))]
            sums[(hh, b)] = prevP
            prevP = P
        for (hh, b) in us:
            S, P, Q = Ka(hh, b), Va(hh, b), Qa(hh, b)
            L += ["v_mfma_f32_16x16x32_bf16 %s, %s, %s, 0" % (v4(S), v4(Vb(hh, b & 1, b >> 1)), v4(Q))]
    for (hh, b) in units:
        L += ["v_rcp_f32 v%d, v%d" % (sums[(hh, b)], sums[(hh, b)])]
    L += ["s_lshr_b32 s%d, s%d, 1" % (sT + 3, sWV), "s_mul_i32 s%d, s%d, 6" % (sT + 3, sT + 3), "s_add_u32 s%d, s%d, s%d" % (sT + 3, sT + 3, sRB0)]
    for b in range(6):
        L += ["s_add_u32 s%d, s%d, %d" % (sT, sT + 3, b), "s_lshr_b32 s%d, s%d, 2" % (sT + 1, sT),
              "s_mul_i32 s%d, s%d, %d" % (sT + 1, sT + 1, MT_STRIDE), "s_and_b32 s%d, s%d, 3" % (sT, sT),
              "s_lshl_b32 s%d, s%d, 10" % (sT, sT), "s_add_u32 s%d, s%d, s%d" % (sT + 2, sT, sT + 1)]
        for hh in range(2):
            S = Ka(hh, b)
            L += ["v_mul_f32 v%d, v%d, v%d" % (S + r, S + r, sums[(hh, b)]) for r in range(4)]
        for hh in range(2):
            L += cvt2(Qa(0, b) + 2 * hh, Ka(hh, b))
        L += ["buffer_store_dwordx4 %s, v%d, s[%d:%d], s%d offen" % (v4(Qa(0, b)), vST, sA, sA + 3, sT + 2)]
    L += ["s_endpgm"]
    return L


def iprefetch(label_end, label_start, vtmp):
    return ["s_getpc_b64 s[60:61]", "v_lshlrev_b32 v%d, 7, v0" % vtmp, "global_load_dword v%d, v%d, s[60:61]" % (vtmp, vtmp)]


def gen_k1():
    L = ["k1_kernel:"]
    L += ["s_cmp_ge_u32 s2, 256", "s_cbranch_scc1 k1_exit"]
    L += ["s_load_dwordx4 s[4:7], s[0:1], 0", "s_load_dwordx4 s[8:11], s[0:1], 32",
          "s_load_dwordx2 s[12:13], s[0:1], 56", "s_load_dwordx2 s[14:15], s[0:1], 80"]
    L += ["v_lshrrev_b32 v2, 6, v0", "v_and_b32 v%d, 63, v0" % vLANE, "v_readfirstlane_b32 s%d, v2" % sWV,
          "s_and_b32 s36, s2, 7", "s_lshr_b32 s37, s2, 3", "s_cmp_lt_u32 s37, 11", "s_cbranch_scc1 k1_Q"]
    pf = iprefetch(None, None, 63) if OPT['iprefetch'] else []
    H = fix_hazards(["s_nop 3"] + pf + gen_H())
    Q = fix_hazards(["s_nop 3"] + pf + gen_Q())
    L = fix_hazards(L)
    return L + H + ["k1_exit:", "s_endpgm", ".p2align 6", "k1_Q:"] + Q


def gen_k2():
    L = ["k2_kernel:"]
    L += ["s_cmp_ge_u32 s2, 256", "s_cbranch_scc1 k2_exit"]
    L += ["s_load_dwordx2 s[4:5], s[0:1], 16", "s_load_dwordx2 s[6:7], s[0:1], 48",
          "s_load_dwordx2 s[8:9], s[0:1], 64", "s_load_dwordx2 s[14:15], s[0:1], 80"]
    if OPT['iprefetch']:
        L += ["s_getpc_b64 s[60:61]", "v_lshlrev_b32 v63, 6, v0", "global_load_dword v63, v63, s[60:61]"]
    sWO, sWD, sO = 16, 20, 36
    sMT, sNT, sAO, sWK, sM0 = 33, 34, 40, 41, 43
    NSL = 7
    RING = NSL * 4096
    XB = 4 * RING
    L += ["v_lshrrev_b32 v2, 6, v0", "v_and_b32 v1, 63, v0", "v_readfirstlane_b32 s%d, v2" % sWV,
          "s_and_b32 s%d, s2, 7" % sT, "s_lshl_b32 s%d, s%d, 2" % (sT, sT), "s_lshr_b32 s%d, s2, 6" % (sT + 1),
          "s_add_u32 s%d, s%d, s%d" % (sMT, sT, sT + 1),
          "s_lshr_b32 s%d, s2, 3" % sNT, "s_and_b32 s%d, s%d, 7" % (sNT, sNT)]
    vWD2, vAD, vRDT, vXW, vXR, vOUT, vG = 2, 6, 10, 14, 17, 18, 20
    L += ["v_lshrrev_b32 v32, 3, v1", "v_lshrrev_b32 v33, 4, v1", "v_and_b32 v34, 7, v1",
          "v_lshlrev_b32 v35, 1, v33", "v_xor_b32 v35, v34, v35", "v_lshlrev_b32 v35, 4, v35",
          "v_lshl_add_u32 v35, v32, 10, v35", "s_lshl_b32 s%d, s%d, 7" % (sT, sNT),
          "v_add_u32 v%d, s%d, v35" % (vWD2, sT)]
    for e in range(1, 4):
        L += ["v_add_u32 v%d, %d, v%d" % (vWD2 + e, 7168 * e, vWD2)]
    L += ["v_lshlrev_b32 v36, 4, v1"]
    for q in range(4):
        L += ["s_add_u32 s%d, s%d, %d" % (sT, sWV, q), "s_and_b32 s%d, s%d, 3" % (sT, sT), "s_lshl_b32 s%d, s%d, 10" % (sT + 1, sT),
              "v_add_u32 v%d, s%d, v36" % (vAD + q, sT + 1)]
        if q:
            L += ["s_mul_i32 s%d, s%d, 12288" % (sT + 1, sT), "s_add_u32 s%d, s%d, %d" % (sT + 1, sT + 1, XB + (q - 1) * 4096),
                  "v_add_u32 v%d, s%d, v36" % (vXW + q - 1, sT + 1)]
        L += ["s_lshl_b32 s%d, s%d, 2" % (sT + 1, sMT), "s_add_u32 s%d, s%d, s%d" % (sT + 1, sT + 1, sT), "s_lshl_b32 s%d, s%d, 6" % (sT + 1, sT + 1),
              "v_and_b32 v37, 15, v1", "v_lshl_add_u32 v%d, v37, 2, s%d" % (vG + q, sT + 1)]
    L += ["s_mul_i32 s%d, s%d, %d" % (sM0, sWV, RING),
          "s_mul_i32 s%d, s%d, %d" % (sAO, sMT, MT_STRIDE),
          "s_lshl_b32 s%d, s%d, 14" % (sT, sWV), "s_add_u32 s%d, s%d, s%d" % (sAO + 4, sAO, sT),
          "s_mul_i32 s%d, s%d, %d" % (sT, sWV, 14 * 4096), "s_add_u32 s%d, s%d, s%d" % (sAO + 5, sAO, sT),
          "s_add_u32 s%d, s%d, %d" % (sAO + 5, sAO + 5, 16 * 4096),
          "s_lshl_b32 s%d, s%d, 17" % (sAO + 6, sWV),
          "s_mul_i32 s%d, s%d, %d" % (sAO + 7, sWV, 14 * 32768)]
    L += ["s_waitcnt lgkmcnt(0)"]
    srd(L, sWO, 4, 5, 512 * 1024)
    srd(L, sWD, 6, 7, 1792 * 1024)
    srd(L, sA, 14, 15, A2_BYTES)
    L += ["s_add_u32 s%d, s14, %d" % (sG, G_OFF), "s_addc_u32 s%d, s15, 0" % (sG + 1), "s_mov_b32 s%d, 8192" % (sG + 2), "s_mov_b32 s%d, 0x20000" % (sG + 3)]
    vm = VmTracker()
    LA = 6
    NAB = LA + 1
    AA, AWF = 0, 128

    def issue(kb):
        out = []
        isO = kb < 4
        sw, sa = (sAO + 6, sAO + 4) if isO else (sAO + 7, sAO + 5)
        srdw = sWO if isO else sWD
        for e in range(4):
            g = []
            if e == 0:
                g.append("s_add_u32 m0, s%d, %d" % (sM0, (kb % NSL) * 4096))
            g.append("buffer_load_dwordx4 v%d, s[%d:%d], s%d offen offset:%d lds" % (vWD2 + e, srdw, srdw + 3, sw, 1024 * e))
            vm.issue(('w', kb))
            if e == 3:
                g.append("s_add_u32 s%d, s%d, 32768" % (sw, sw))
            out.append(g)
        for q in range(4):
            g = ["buffer_load_dwordx4 %s, v%d, s[%d:%d], s%d offen" % (a4(AA + 16 * (kb % NAB) + 4 * q), vAD + q, sA, sA + 3, sa)]
            vm.issue(('a', kb))
            if q == 3:
                g.append("s_add_u32 s%d, s%d, 4096" % (sa, sa))
            out.append(g)
        return out
    for kb in range(LA):
        for g in issue(kb):
            L += g
    for q in range(4):
        L += ["buffer_load_dword v%d, v%d, s[%d:%d], 0 offen" % (vG + q, vG + q, sG, sG + 3)]
        vm.issue(('g', 0))
    L += ["v_and_b32 v37, 15, v1", "v_lshrrev_b32 v38, 2, v37", "v_lshl_add_u32 v39, v33, 2, v38",
          "v_lshrrev_b32 v40, 1, v39", "v_and_b32 v40, 3, v40", "v_lshlrev_b32 v40, 5, v40",
          "v_lshl_add_u32 v39, v39, 7, v40", "v_and_b32 v40, 3, v1", "v_lshl_add_u32 v39, v40, 3, v39",
          "v_add_u32 v%d, s%d, v39" % (vRDT, sM0)]
    for t in range(1, 4):
        L += ["v_xor_b32 v%d, %d, v%d" % (vRDT + t, 32 * t, vRDT)]
    L += ["s_mul_i32 s%d, s%d, 12288" % (sT, sWV), "s_add_u32 s%d, s%d, %d" % (sT, sT, XB), "v_add_u32 v%d, s%d, v36" % (vXR, sT),
          "s_lshl_b32 s%d, s%d, 6" % (sT, sMT), "s_lshr_b32 s%d, s%d, 1" % (sT + 1, sWV), "s_lshl_b32 s%d, s%d, 5" % (sT + 1, sT + 1),
          "s_add_u32 s%d, s%d, s%d" % (sT, sT, sT + 1), "s_and_b32 s%d, s%d, 1" % (sT + 1, sWV), "s_add_u32 s%d, s%d, s%d" % (sT, sT, sT + 1),
          "s_lshl_b32 s%d, s%d, 10" % (sT, sT), "s_lshl_b32 s%d, s%d, 7" % (sT + 1, sNT), "s_add_u32 s%d, s%d, s%d" % (sT, sT, sT + 1),
          "v_lshlrev_b32 v38, 11, v37", "v_lshl_add_u32 v38, v33, 3, v38", "v_add_u32 v%d, s%d, v38" % (vOUT, sT)]
    srd(L, sO, 8, 9, 2048 * 1024)
    ACO, ACH = 64, 128

    def wreads(kb):
        out = []
        for t in range(4):
            for h in range(2):
                out.append("ds_read_b64_tr_b16 %s, v%d offset:%d" % (a2(AWF + 16 * (kb & 1) + 4 * t + 2 * h), vRDT + t, (kb % NSL) * 4096 + 2048 * h))
        return out
    L += ["s_waitcnt vmcnt(%d)" % vm.wait_for(lambda g: g == ('w', 0))]
    L += wreads(0)
    for kb in range(18):
        n = vm.wait_for(lambda g: (g[0] == 'a' and g[1] <= kb) or (g[0] == 'w' and g[1] <= kb + 1))
        L += ["s_waitcnt vmcnt(%d) lgkmcnt(0)" % n]
        fill = []
        if kb + 1 < 18:
            fill += wreads(kb + 1)
        dm = issue(kb + LA) if kb + LA < 18 else []
        mix = []
        for i in range(8):
            if i < len(fill):
                mix.append(fill[i])
            if i < len(dm):
                mix.append(dm[i])
        mf = []
        acc = ACO if kb < 4 else ACH
        first = kb in (0, 4)
        for q in range(4):
            for t in range(4):
                d = v4(acc + 16 * q + 4 * t)
                mf.append("v_mfma_f32_16x16x32_bf16 %s, %s, %s, %s" % (d, a4(AWF + 16 * (kb & 1) + 4 * t), a4(AA + 16 * (kb % NAB) + 4 * q), "0" if first else d))
        L += interleave(mf, mix)
        if kb == 6:
            L += ["v_sub_f32 v%d, 1.0, v%d" % (vG + 4 + q, vG + q) for q in range(4)]
            for q in range(4):
                L += ["v_mul_f32 v%d, v%d, v%d" % (ACO + 16 * q + i, ACO + 16 * q + i, vG + q) for i in range(16)]
    for q in (1, 2, 3, 0):
        L += ["v_fma_f32 v%d, v%d, v%d, v%d" % (ACO + 16 * q + i, ACH + 16 * q + i, vG + 4 + q, ACO + 16 * q + i) for i in range(16)]
        if q:
            for t in range(4):
                L += ["ds_write_b128 v%d, %s offset:%d" % (vXW + q - 1, v4(ACO + 16 * q + 4 * t), 1024 * t)]
    L += ["s_waitcnt lgkmcnt(0)", "s_barrier"]
    for p in range(3):
        for t in range(4):
            L += ["ds_read_b128 %s, v%d offset:%d" % (v4(ACH + 16 * p + 4 * t), vXR, 4096 * p + 1024 * t)]
    for p in range(3):
        L += ["s_waitcnt lgkmcnt(%d)" % (8 - 4 * p)]
        L += ["v_add_f32 v%d, v%d, v%d" % (ACO + i, ACO + i, ACH + 16 * p + i) for i in range(16)]
    for t in range(4):
        L += ["v_cvt_pk_bf16_f32 v%d, v%d, v%d" % (ACO + 4 * t, ACO + 4 * t, ACO + 4 * t + 1),
              "v_cvt_pk_bf16_f32 v%d, v%d, v%d" % (ACO + 4 * t + 1, ACO + 4 * t + 2, ACO + 4 * t + 3),
              "buffer_store_dwordx2 %s, v%d, s[%d:%d], 0 offen offset:%d" % (v2(ACO + 4 * t), vOUT, sO, sO + 3, 32 * t)]
    L += ["k2_exit:", "s_endpgm"]
    return fix_hazards(L)


def kd(name):
    return """.amdhsa_kernel %s
  .amdhsa_next_free_vgpr 512
  .amdhsa_next_free_sgpr 96
  .amdhsa_accum_offset 256
  .amdhsa_group_segment_fixed_size 0
  .amdhsa_kernarg_size 88
  .amdhsa_user_sgpr_count 2
  .amdhsa_user_sgpr_kernarg_segment_ptr 1
  .amdhsa_system_sgpr_workgroup_id_x 1
.end_amdhsa_kernel""" % name


def main():
    out = ["; generated by gen1.py",
           "; @launch kernel=k1_kernel grid=(256,1,1) block=(256,1,1) lds=163840",
           "; @launch kernel=k2_kernel grid=(256,1,1) block=(256,1,1) lds=163840",
           '.amdgcn_target "amdgcn-amd-amdhsa--gfx950"', ".text",
           ".globl k1_kernel", ".p2align 8", ".type k1_kernel,@function"]
    out += gen_k1()
    out += [".globl k2_kernel", ".p2align 8", ".type k2_kernel,@function"]
    out += gen_k2()
    out += [".p2align 8", ".fill 8192, 4, 0xbf800000", "s_endpgm"]
    out += ['.section .rodata,"a"', ".p2align 6", kd("k1_kernel"), ".p2align 6", kd("k2_kernel")]
    print("\n".join(out))


main()
```

```python
import sys,re
src, sel, stride, outp = sys.argv[1], int(sys.argv[2]), int(sys.argv[3]), sys.argv[4]
s=open(src).read()
TS=16<<20
def stamp(slot, first):
    pre = "s_load_dwordx2 s[72:73], s[0:1], 80\n" if first else ""
    return pre + f"""s_memrealtime s[70:71]
s_waitcnt lgkmcnt(0)
s_lshl_b32 s74, s2, 5
s_add_u32 s74, s74, {TS+8*slot}
v_mov_b32 v253, s74
v_mov_b32 v254, s70
v_mov_b32 v255, s71
global_store_dwordx2 v253, v[254:255], s[72:73]
"""
lines=s.split("\n"); out=[]; cur=None
for i,l in enumerate(lines):
    if l in("k1_kernel:","k2_kernel:"): cur=l[:2]
    if l.startswith("s_cbranch_scc1 k1_exit") : out.append(l); out.append(stamp(0,True)); continue
    if l.startswith("s_cbranch_scc1 k2_exit") : out.append(l); out.append(stamp(2,True)); continue
    if l=="s_endpgm" and cur=="k1" and lines[i-1]!="k1_exit:":
        out.append("s_waitcnt vmcnt(0)"); out.append(stamp(1,False))
    if l=="k2_exit:":
        out.append("s_waitcnt vmcnt(0)"); out.append(stamp(3,False))
    out.append(l)
s="\n".join(out)
l2="; @launch kernel=k2_kernel grid=(256,1,1) block=(256,1,1) lds=163840\n"
s=s.replace(l2,l2+"; @launch kernel=sp_kernel grid=(256,1,1) block=(64,1,1) lds=0\n")
s=s.replace('.section .rodata,"a"',f""".globl sp_kernel
.p2align 8
.type sp_kernel,@function
sp_kernel:
s_cmp_ge_u32 s2, 256
s_cbranch_scc1 sp_exit
s_load_dwordx2 s[4:5], s[0:1], 80
s_mul_i32 s6, s2, {stride}
s_add_u32 s6, s6, {TS+8*sel}
v_mov_b32 v1, s6
s_waitcnt lgkmcnt(0)
global_load_dwordx2 v[2:3], v1, s[4:5]
s_waitcnt vmcnt(0)
v_readfirstlane_b32 s8, v2
s_mov_b32 s12, 0
s_nop 4
sp_loop:
s_memrealtime s[10:11]
s_waitcnt lgkmcnt(0)
s_sub_u32 s9, s10, s8
s_add_u32 s12, s12, 1
s_cmp_gt_u32 s12, 100000
s_cbranch_scc1 sp_exit
s_cmp_lt_u32 s9, 10000
s_cbranch_scc1 sp_loop
sp_exit:
s_endpgm
.section .rodata,"a\"""",1)
s+="""
.p2align 6
.amdhsa_kernel sp_kernel
  .amdhsa_next_free_vgpr 8
  .amdhsa_next_free_sgpr 16
  .amdhsa_accum_offset 8
  .amdhsa_group_segment_fixed_size 0
  .amdhsa_kernarg_size 88
  .amdhsa_user_sgpr_count 2
  .amdhsa_user_sgpr_kernarg_segment_ptr 1
  .amdhsa_system_sgpr_workgroup_id_x 1
.end_amdhsa_kernel
"""
open(outp,'w').write(s)
```

```python
import re

_REG = re.compile(r'^(-?)(?:abs\()?([vas])(?:(\d+)|\[(\d+):(\d+)\])\)?$')
TRANS = ('v_exp_f32', 'v_log_f32', 'v_rcp_f32', 'v_rsq_f32', 'v_sqrt_f32', 'v_sin_f32', 'v_cos_f32')


def regs_of(tok):
    tok = tok.strip()
    if tok in ('vcc', 'exec'):
        return [tok]
    if tok in ('vcc_lo', 'vcc_hi'):
        return ['vcc']
    if tok in ('exec_lo', 'exec_hi'):
        return ['exec']
    if tok == 'm0':
        return ['m0']
    m = _REG.match(tok)
    if not m:
        return []
    k = m.group(2)
    if m.group(3) is not None:
        return [k + m.group(3)]
    return [k + str(i) for i in range(int(m.group(4)), int(m.group(5)) + 1)]


def split_ops(text):
    text = text.split(';')[0].strip()
    parts = text.split(None, 1)
    mn = parts[0]
    ops = []
    mods = []
    if len(parts) > 1:
        raw = [p.strip() for p in re.split(r',(?![^\[]*\])', parts[1])]
        for i, p in enumerate(raw):
            toks = p.split()
            if not toks:
                continue
            ops.append(toks[0])
            mods += toks[1:]
    return mn, ops, mods


class Ins:
    __slots__ = ('text', 'mn', 'kind', 'rd', 'wr', 'srcc', 'passes', 'data', 'ab')

    def __init__(self, text):
        self.text = text
        self.rd = set(); self.wr = set(); self.srcc = set(); self.passes = 0; self.data = set(); self.ab = set()
        t = text.strip()
        if not t or t.startswith(';') or t.startswith('.') or t.endswith(':'):
            self.kind = 'label' if t.endswith(':') else 'dir'
            self.mn = ''
            return
        mn, ops, mods = split_ops(t)
        base = re.sub(r'_e(32|64)$', '', mn)
        self.mn = base
        R = [regs_of(o) for o in ops]
        if base.startswith('v_mfma'):
            self.kind = 'mfma'
            self.passes = 8 if '32x32' in base else 4
            self.wr = set(R[0]); self.ab = set(R[1]) | set(R[2]); self.srcc = set(R[3])
            self.rd = self.ab | self.srcc
        elif base.startswith('v_'):
            self.kind = 'trans' if base in TRANS else 'valu'
            if base.startswith('v_cmp'):
                self.wr = set(R[0]); self.rd = set(sum(R[1:], []))
                if base.startswith('v_cmpx'):
                    self.wr.add('exec')
            elif base in ('v_swap_b32',) or base.startswith('v_permlane'):
                self.wr = set(R[0]) | set(R[1]); self.rd = set(self.wr)
            else:
                self.wr = set(R[0]); self.rd = set(sum(R[1:], []))
                if base in ('v_fmac_f32', 'v_dot2c_f32_bf16', 'v_writelane_b32'):
                    self.rd |= self.wr
                if base in ('v_add_co_u32', 'v_addc_co_u32', 'v_sub_co_u32'):
                    self.wr |= set(R[1])
        elif base.startswith('ds_'):
            self.kind = 'ds'
            if base.startswith('ds_read') or base.startswith('ds_bpermute') or base.startswith('ds_swizzle'):
                self.wr = set(R[0]); self.rd = set(sum(R[1:], []))
            else:
                self.rd = set(sum(R, []))
        elif base.startswith('buffer_') or base.startswith('global_'):
            self.kind = 'vmem'
            if base in ('buffer_inv', 'buffer_wbl2'):
                pass
            elif 'lds' in mods:
                self.rd = set(sum(R, [])) | {'m0'}
            elif '_load' in base:
                self.wr = set(R[0]); self.rd = set(sum(R[1:], []))
            elif base.startswith('buffer_'):
                self.rd = set(sum(R, []))
                if len(R[0]) > 2:
                    self.data = set(R[0])
                if 'atomic' in base and 'sc0' in mods:
                    self.wr = set(R[0])
            else:
                self.rd = set(sum(R, []))
                if len(R[1]) > 2:
                    self.data = set(R[1])
        elif base.startswith('s_'):
            self.kind = 'salu'
            if base in ('s_nop', 's_waitcnt', 's_barrier', 's_endpgm', 's_setprio', 's_sleep', 's_branch') or base.startswith('s_cbranch'):
                pass
            elif base.startswith('s_cmp') or base.startswith('s_bitcmp'):
                self.rd = set(sum(R, []))
            else:
                self.wr = set(R[0]); self.rd = set(sum(R[1:], []))
                if 'saveexec' in base:
                    self.wr.add('exec')
        else:
            raise ValueError('unknown instr: ' + text)


def fix_hazards(lines, report=None):
    out = []
    pos = 0
    valu_w = {}
    trans_w = {}
    mfma_w = {}
    mfma_c = {}
    st_data = {}
    salu_m0 = -100
    nnop = 0
    for text in lines:
        ins = Ins(text)
        if ins.kind in ('label', 'dir'):
            out.append(text)
            continue
        need = 0

        def req(p, d):
            nonlocal need
            gap = pos - p - 1
            if gap < d:
                need = max(need, d - gap)
        isv = ins.kind in ('valu', 'trans')
        if ins.kind == 'mfma':
            for r in ins.rd:
                if r in valu_w:
                    req(valu_w[r], 2)
            for r in ins.ab:
                if r in mfma_w:
                    p, ps, _ = mfma_w[r]
                    req(p, {4: 8, 8: 12}[ps])
            for r in ins.srcc:
                if r in mfma_w:
                    p, ps, dset = mfma_w[r]
                    if dset == ins.srcc and ps == ins.passes:
                        pass
                    else:
                        req(p, {4: 6, 8: 10}[ps])
            for r in ins.wr:
                if r in mfma_w and r not in ins.srcc:
                    p, ps, dset = mfma_w[r]
                    req(p, {4: 6, 8: 10}[ps])
            if 'exec' in valu_w:
                req(valu_w['exec'], 4)
        else:
            if ins.kind in ('valu', 'trans', 'ds', 'vmem'):
                for r in (ins.rd | ins.wr):
                    if r in mfma_w:
                        p, ps, _ = mfma_w[r]
                        req(p, {4: 8, 8: 12}[ps])
            if isv:
                for r in ins.wr:
                    if r in mfma_c:
                        p, ps = mfma_c[r]
                        req(p, {4: 3, 8: 7}[ps])
                    if r in st_data:
                        req(st_data[r], 2)
                if ins.kind == 'valu':
                    for r in ins.rd:
                        if r in trans_w:
                            req(trans_w[r], 1)
                for r in ins.rd:
                    if (r[0] == 's' or r == 'vcc') and r in valu_w:
                        req(valu_w[r], 4 if ins.mn in ('v_readlane_b32', 'v_writelane_b32') else 2)
                if ins.mn.startswith('v_permlane'):
                    for r in ins.rd:
                        if r in valu_w:
                            req(valu_w[r], 2)
                    if 'exec' in valu_w:
                        req(valu_w['exec'], 4)
                if ins.mn in ('v_readfirstlane_b32', 'v_readlane_b32'):
                    for r in ins.rd:
                        if r in valu_w:
                            req(valu_w[r], 1)
                    if 'exec' in valu_w:
                        req(valu_w['exec'], 4)
                if 'dpp' in text or 'row_' in text or 'quad_perm' in text:
                    for r in ins.rd:
                        if r in valu_w:
                            req(valu_w[r], 2)
            if ins.kind in ('ds', 'vmem'):
                for r in ins.wr:
                    if r in st_data:
                        req(st_data[r], 1)
                for r in ins.rd:
                    if r in trans_w:
                        req(trans_w[r], 1)
            if ins.kind == 'vmem':
                for r in ins.rd:
                    if r[0] == 's' and r in valu_w:
                        req(valu_w[r], 5)
                if 'm0' in ins.rd:
                    req(salu_m0, 1)
            if ins.kind == 'salu':
                for r in ins.rd:
                    if r in valu_w:
                        req(valu_w[r], 2)
        while need > 0:
            k = min(need, 16)
            out.append('s_nop %d' % (k - 1))
            pos += k
            need -= k
            nnop += k
        out.append(text)
        if isv:
            for r in ins.wr:
                valu_w[r] = pos
                mfma_w.pop(r, None)
                if ins.kind == 'trans':
                    trans_w[r] = pos
                else:
                    trans_w.pop(r, None)
        elif ins.kind == 'mfma':
            for r in ins.wr:
                mfma_w[r] = (pos, ins.passes, ins.wr)
                valu_w.pop(r, None); trans_w.pop(r, None)
            for r in ins.srcc:
                mfma_c[r] = (pos, ins.passes)
        elif ins.kind == 'salu':
            for r in ins.wr:
                valu_w.pop(r, None)
            if 'm0' in ins.wr:
                salu_m0 = pos
        if ins.data:
            for r in ins.data:
                st_data[r] = pos
        if ins.mn == 's_nop':
            pos += int(text.split()[1], 0) + 1
        else:
            pos += 1
    if report is not None:
        report['nops'] = nnop
    return out


def interleave(main, fillers, start=0, per=None):
    out = []
    n = len(main) - start
    k = len(fillers)
    fi = 0
    for i, m in enumerate(main):
        out.append(m)
        if i < start:
            continue
        if per is None:
            tgt = ((i - start + 1) * k + n - 1) // n
        else:
            tgt = min(k, (i - start + 1) * per)
        while fi < tgt:
            f = fillers[fi]
            if isinstance(f, str):
                out.append(f)
            else:
                out.extend(f)
            fi += 1
    while fi < k:
        f = fillers[fi]
        if isinstance(f, str):
            out.append(f)
        else:
            out.extend(f)
        fi += 1
    return out


class VmTracker:
    def __init__(self):
        self.tags = []

    def issue(self, tag):
        self.tags.append(tag)

    def wait_for(self, pred):
        last = -1
        for i, t in enumerate(self.tags):
            if pred(t):
                last = i
        n = len(self.tags) - 1 - last
        return min(n, 63)
```

```python
import sys
from asmlib import *

NAME = "gated_mix__sliding_local_dilated__glu_gated_glu__prompt"
A2_BYTES = 32 * 72 * 4096
G_OFF = A2_BYTES
F_OFF = A2_BYTES + 8192
MT_STRIDE = 72 * 4096
NLOG2E = 0xbfb8aa3b
SCL = 0x3eb8aa3b
BIG = 0x40000000

OPT = dict(masks=0x33333333, pk=1, iprefetch=1, prof=0, maxd=11, rot2=1, flags=0, la=6, la0=3, rdmain=1, npro=20, sleep=1, edma=2, postdma=6, maxd2=8, rnt=7, rmt=3)
for a in sys.argv[1:]:
    if '=' in a:
        k, v = a.split('=')
        assert k in OPT, k
        OPT[k] = int(v, 0)

pX, pQKV, pWO, pWG, pWU, pWD, pGW, pOUT, pDBG, pWS = 4, 6, 8, 12, 14, 16, 18, 20, 22, 24
sX, sW, sA, sG, sWO, sWD, sO, sD = 28, 32, 36, 40, 44, 48, 52, 56
sWV, sRB0, sCG, sXCD, sIDX, sKX, sKW, sMX, sMW, sM7, sROT, sM2 = 60, 61, 62, 63, 64, 65, 66, 67, 68, 69, 70, 71
sMT, sNT, sW2o, sW2h, sW2e, sS2, sAo, sAh, sAe, sSA = 72, 73, 74, 75, 76, 77, 78, 79, 80, 81
sC0 = 82
sST = 86
sF = 20
sPID = 98
sK = 97
sT = 88
sU = 4
vLANE = 1
vXD, vWD, vRD = 2, 9, 13
ACC = 64


def v4(b): return "v[%d:%d]" % (b, b + 3)
def v2(b): return "v[%d:%d]" % (b, b + 1)
def a4(b): return "a[%d:%d]" % (b, b + 3)
def a2(b): return "a[%d:%d]" % (b, b + 1)
def s4(b): return "s[%d:%d]" % (b, b + 3)


class Prof:
    def __init__(self, vreg):
        self.n = 0
        self.v = vreg

    def stamp(self):
        if not OPT['prof']:
            return []
        self.n += 1
        return ["s_memtime s[100:101]", "s_waitcnt lgkmcnt(0)", "v_writelane_b32 v%d, s100, %d" % (self.v, self.n - 1)]

    def dump(self):
        if not OPT['prof']:
            return []
        L = ["s_waitcnt vmcnt(0)"] + self.stamp()
        L += ["s_memrealtime s[100:101]", "s_waitcnt lgkmcnt(0)", "v_writelane_b32 v%d, s100, 63" % self.v]
        L += ["s_lshl_b32 s100, s2, 2", "s_add_u32 s100, s100, s%d" % sWV, "s_lshl_b32 s100, s100, 8",
              "s_add_u32 s100, s100, %d" % (16 << 20), "v_lshl_add_u32 v2, v%d, 2, s100" % vLANE,
              "global_store_dword v2, v%d, s[%d:%d]" % (self.v, pWS, pWS + 1)]
        return L


def srd(d, p, nbytes, bias=0, add=0):
    L = []
    if bias:
        L += ["s_sub_u32 s%d, s%d, %d" % (d, p, bias), "s_subb_u32 s%d, s%d, 0" % (d + 1, p + 1)]
    elif add:
        L += ["s_add_u32 s%d, s%d, %d" % (d, p, add), "s_addc_u32 s%d, s%d, 0" % (d + 1, p + 1)]
    else:
        L += ["s_mov_b32 s%d, s%d" % (d, p), "s_mov_b32 s%d, s%d" % (d + 1, p + 1)]
    L += ["s_mov_b32 s%d, 0x%x" % (d + 2, nbytes + bias), "s_mov_b32 s%d, 0x20000" % (d + 3)]
    return L


class LdsBases:
    def __init__(self, regs, chunk=0xC000):
        self.regs = list(regs)
        self.map = {}
        self.setup = []
        self.chunk = chunk

    def addr(self, patreg, off):
        ch = off // self.chunk
        if ch == 0:
            return patreg, off
        key = (patreg, ch)
        if key not in self.map:
            r = self.regs.pop(0)
            self.map[key] = r
            self.setup.append("v_add_u32 v%d, 0x%x, v%d" % (r, ch * self.chunk, patreg))
        return self.map[key], off - ch * self.chunk


class Dma:
    def __init__(self, stream, tag, m0, pre, text, avail, need):
        self.stream, self.tag, self.m0, self.pre, self.text, self.avail, self.need = stream, tag, m0, pre, text, avail, need


class Sched:
    def __init__(self, vm):
        self.vm = vm
        self.streams = {}
        self.m0 = None

    def add(self, d):
        self.streams.setdefault(d.stream, []).append(d)

    def take(self, slot, cap):
        picked = []
        while len(picked) < cap:
            best = None
            for s, q in self.streams.items():
                if q and q[0].avail is not None and q[0].avail <= slot:
                    if best is None or q[0].need < self.streams[best][0].need:
                        best = s
            if best is None:
                break
            picked.append(self.streams[best].pop(0))
        groups = [[]]
        for d in picked:
            setup = list(d.pre)
            if d.m0 != self.m0:
                setup.append("s_add_u32 m0, s%d, %d" % d.m0)
                self.m0 = d.m0
            groups[-1] += setup
            groups.append([d.text])
            self.vm.issue(d.tag)
        return [g for g in groups if g], picked

    def pending(self):
        return sum(len(q) for q in self.streams.values())


def stage_pre(s, dst, mul):
    m = (OPT['masks'] >> (4 * s)) & 7
    if m == 0:
        return ["s_mov_b32 s%d, %d" % (dst, s * mul)]
    return ["s_and_b32 s%d, s%d, %d" % (sK, sROT, m), "s_xor_b32 s%d, s%d, %d" % (sK, sK, s), "s_mul_i32 s%d, s%d, %d" % (dst, sK, mul)]


def x_setup(L, typ):
    L += ["v_lshrrev_b32 v32, 3, v%d" % vLANE, "v_lshrrev_b32 v33, 4, v%d" % vLANE, "v_and_b32 v34, 7, v%d" % vLANE,
          "v_xor_b32 v35, v34, v33", "v_lshlrev_b32 v35, 4, v35", "v_lshl_add_u32 v36, v32, 11, v35", "v_xor_b32 v37, 64, v36"]
    L += ["s_mul_i32 s%d, s%d, 3" % (sT, sWV), "s_add_u32 s%d, s%d, s%d" % (sT, sT, sRB0)]
    for bb in range(3):
        L += ["s_add_u32 s%d, s%d, %d" % (sT + 1, sT, bb),
              "s_lshr_b32 s%d, s%d, 1" % (sT + 2, sT + 1), "s_lshl_b32 s%d, s%d, 15" % (sT + 2, sT + 2),
              "s_and_b32 s%d, s%d, 1" % (sT + 1, sT + 1), "s_lshl_b32 s%d, s%d, 10" % (sT + 1, sT + 1),
              "s_add_u32 s%d, s%d, s%d" % (sT + 2, sT + 2, sT + 1)]
        if typ == 'H' and bb == 2:
            L += ["s_cmp_eq_u32 s%d, 3" % sWV, "s_cselect_b32 s%d, 0x%x, s%d" % (sT + 2, BIG, sT + 2)]
        for dd in range(2):
            d = 2 * bb + dd
            add = 4096 - 1024 * (d & 3) + (16384 if dd else 0)
            L += ["s_add_u32 s%d, s%d, %d" % (sT + 3, sT + 2, add), "v_add_u32 v%d, s%d, v%d" % (vXD + d, sT + 3, 36 + dd)]


def late_scalar_setup():
    L = []
    L += srd(sA, pWS, A2_BYTES)
    L += srd(sWO, pWO, 512 * 1024) + srd(sWD, pWD, 1792 * 1024) + srd(sO, pOUT, 2048 * 1024)
    L += srd(sD, pDBG, 256)
    L += srd(sF, pWS, 32768, add=F_OFF)
    L += ["s_lshl_b32 s%d, s%d, 2" % (sMT, sXCD), "s_lshr_b32 s%d, s%d, 3" % (sT, sIDX), "s_add_u32 s%d, s%d, s%d" % (sMT, sMT, sT),
          "s_and_b32 s%d, s%d, 7" % (sNT, sIDX),
          "s_lshl_b32 s%d, s%d, 11" % (sM2, sWV),
          "s_lshl_b32 s%d, s%d, 17" % (sW2o, sWV),
          "s_mul_i32 s%d, s%d, %d" % (sW2h, sWV, 14 * 32768), "s_add_u32 s%d, s%d, %d" % (sW2e, sW2h, 14 * 32768),
          "s_mul_i32 s%d, s%d, %d" % (sT + 1, sMT, MT_STRIDE),
          "s_lshl_b32 s%d, s%d, 14" % (sAo, sWV), "s_add_u32 s%d, s%d, s%d" % (sAo, sAo, sT + 1),
          "s_mul_i32 s%d, s%d, %d" % (sAh, sWV, 14 * 4096), "s_add_u32 s%d, s%d, s%d" % (sAh, sAh, sT + 1),
          "s_add_u32 s%d, s%d, %d" % (sAh, sAh, 16 * 4096), "s_add_u32 s%d, s%d, %d" % (sAe, sAh, 14 * 4096)]
    if OPT['rot2']:
        L += ["s_and_b32 s%d, s%d, 1" % (sT + 2, sNT), "s_mul_i32 s%d, s%d, %d" % (sT + 2, sT + 2, OPT['rnt']),
              "s_mul_i32 s%d, s%d, %d" % (sT + 3, sT, OPT['rmt']), "s_add_u32 s%d, s%d, s%d" % (sT + 2, sT + 2, sT + 3),
              "s_and_b32 s%d, s%d, %d" % (sT + 3, sXCD, 3 if OPT['rmt'] else 0), "s_add_u32 s%d, s%d, s%d" % (sT + 2, sT + 2, sT + 3),
              "s_cmp_ge_u32 s%d, 14" % (sT + 2), "s_cselect_b32 s%d, 14, 0" % (sT + 3), "s_sub_u32 s%d, s%d, s%d" % (sT + 2, sT + 2, sT + 3)]
    else:
        L += ["s_mov_b32 s%d, 0" % (sT + 2)]
    L += ["s_lshl_b32 s%d, s%d, 15" % (sT + 3, sT + 2), "s_add_u32 s%d, s%d, s%d" % (sS2, sW2h, sT + 3),
          "s_lshl_b32 s%d, s%d, 12" % (sT + 3, sT + 2), "s_add_u32 s%d, s%d, s%d" % (sSA, sAh, sT + 3)]
    return L


def store_offsets(nb, base_sreg):
    L = []
    for b in range(nb):
        L += [["s_add_u32 s%d, s%d, %d" % (sU, base_sreg, b), "s_lshr_b32 s%d, s%d, 2" % (sU + 1, sU)],
              ["s_mul_i32 s%d, s%d, %d" % (sU + 1, sU + 1, MT_STRIDE), "s_and_b32 s%d, s%d, 3" % (sU, sU)],
              ["s_lshl_b32 s%d, s%d, 10" % (sU, sU), "s_add_u32 s%d, s%d, s%d" % (sST + b, sU, sU + 1)]]
    return L


vFO, vSH, vTG = 13, 14, 16


def flag_setup(vm):
    t = 18
    L = [["s_mul_i32 s%d, s%d, 43" % (sU, sMT), "s_lshr_b32 s%d, s%d, 7" % (sU, sU)],
         ["s_lshl_b32 s%d, s%d, 3" % (sU, sU), "s_mul_i32 s%d, s%d, %d" % (sU + 1, sMT, 4 * 187)],
         ["s_add_u32 s%d, s%d, %d" % (sU + 2, sU + 1, 3 * 187), "s_lshr_b32 s%d, s%d, 11" % (sU + 1, sU + 1)],
         ["s_lshr_b32 s%d, s%d, 11" % (sU + 2, sU + 2), "s_mul_i32 s%d, s%d, 14" % (sU + 1, sU + 1)],
         ["s_mul_i32 s%d, s%d, 14" % (sU + 2, sU + 2), "s_add_u32 s%d, s%d, 88" % (sU + 1, sU + 1)],
         "s_add_u32 s%d, s%d, 88" % (sU + 2, sU + 2),
         "v_and_b32 v%d, 15, v%d" % (t, vLANE), "v_min_u32 v%d, 13, v%d" % (t, t),
         "v_and_b32 v%d, 7, v%d" % (t + 1, vLANE), "v_add_u32 v%d, s%d, v%d" % (t + 1, sU, t + 1),
         "v_add_u32 v%d, s%d, v%d" % (t + 2, sU + 1, t), "v_add_u32 v%d, s%d, v%d" % (t + 3, sU + 2, t),
         "v_cmp_gt_u32 vcc, 16, v%d" % vLANE, "v_mov_b32 v%d, s%d" % (t, sPID),
         "v_cndmask_b32 v%d, v%d, v%d, vcc" % (t + 1, t + 2, t + 1),
         "v_cmp_gt_u32 vcc, 48, v%d" % vLANE,
         "v_cndmask_b32 v%d, v%d, v%d, vcc" % (t, t, t + 3),
         "v_cmp_gt_u32 vcc, 32, v%d" % vLANE,
         "v_cndmask_b32 v%d, v%d, v%d, vcc" % (t, t, t + 1),
         "v_lshlrev_b32 v%d, 7, v%d" % (vFO, t), "v_and_b32 v%d, 31, v%d" % (vSH, t),
         "v_lshrrev_b32 v%d, 5, v%d" % (t, t), "v_lshlrev_b32 v%d, 3, v%d" % (vFO + 2, t)]
    return L


def tag_load():
    return "buffer_load_dwordx2 %s, v%d, %s, 0 offen sc1" % (v2(vTG), vFO + 2, s4(sD))


class W2:
    AW2 = 128

    def __init__(self, sched, vm, vW2, trregs, region_free):
        self.sched, self.vm, self.vW2 = sched, vm, vW2
        self.pat = trregs[:4]
        self.lb = LdsBases(trregs[4:], chunk=0x10000)
        order = sorted(range(20), key=lambda r: (region_free[r], r))
        self.region = {}
        self.items = {}
        for n in range(36):
            if n < 20:
                self.region[n] = order[n]
                av = region_free[order[n]]
            else:
                self.region[n] = self.region[n - 20]
                av = None
            kb, h = n >> 1, n & 1
            isO = kb >= 14
            sr = sWO if isO else sWD
            its = []
            for i in range(2):
                pre = []
                if i == 0 and n > 0:
                    if n == 28:
                        pre = ["s_mov_b32 s%d, s%d" % (sS2, sW2o)]
                    else:
                        pre = ["s_add_u32 s%d, s%d, 16384" % (sS2, sS2)]
                        if h == 0 and not isO and OPT['rot2']:
                            pre += ["s_cmp_eq_u32 s%d, s%d" % (sS2, sW2e), "s_cselect_b32 s%d, s%d, s%d" % (sS2, sW2h, sS2)]
                d = Dma('w2', ('w2', n), (sM2, 8192 * self.region[n]), pre,
                        "buffer_load_dwordx4 v%d, %s, s%d offen offset:%d lds" % (vW2[i], s4(sr), sS2, 1024 * i), av, 1000 + n)
                its.append(d)
                sched.add(d)
            self.items[n] = its
        self.nread = 0
        for t in range(4):
            for ch in (1, 2):
                self.lb.addr(self.pat[t], ch * 0x10000)

    def setup_dma(self):
        a, b = self.vW2
        return ["v_lshrrev_b32 v%d, 4, v%d" % (a, vLANE), "v_lshlrev_b32 v%d, 1, v%d" % (a, a),
                "v_and_b32 v%d, 7, v%d" % (b, vLANE), "v_xor_b32 v%d, v%d, v%d" % (a, a, b), "v_lshlrev_b32 v%d, 4, v%d" % (a, a),
                "v_lshrrev_b32 v%d, 3, v%d" % (b, vLANE), "v_lshl_add_u32 v%d, v%d, 10, v%d" % (a, b, a),
                ["s_lshl_b32 s%d, s%d, 7" % (sU, sNT), "v_add_u32 v%d, s%d, v%d" % (a, sU, a)],
                "v_add_u32 v%d, 7168, v%d" % (b, a)]

    def setup_rd(self):
        p = self.pat
        L = ["v_lshrrev_b32 v%d, 2, v%d" % (p[1], vLANE), "v_lshrrev_b32 v%d, 3, v%d" % (p[2], vLANE),
             "v_and_b32 v%d, 3, v%d" % (p[2], p[2]), "v_lshlrev_b32 v%d, 5, v%d" % (p[2], p[2]),
             "v_lshl_add_u32 v%d, v%d, 7, v%d" % (p[1], p[1], p[2]), "v_and_b32 v%d, 3, v%d" % (p[2], vLANE),
             "v_lshl_add_u32 v%d, v%d, 3, v%d" % (p[1], p[2], p[1]), "v_add_u32 v%d, s%d, v%d" % (p[0], sM2, p[1])]
        L += ["v_xor_b32 v%d, %d, v%d" % (p[t], 32 * t, p[0]) for t in range(1, 4)]
        return L + self.lb.setup

    def reads(self, n, dstf):
        out = []
        for t in range(4):
            r, o = self.lb.addr(self.pat[t], 8192 * self.region[n])
            out.append("ds_read_b64_tr_b16 %s, v%d offset:%d" % (dstf(t), r, o))
        return out

    def take_reads(self, cnt, issued_upto, slot):
        out = []
        last = None
        while cnt > 0 and self.nread < 16 and self.nread < issued_upto:
            n = self.nread
            out += self.reads(n, lambda t: a2(self.AW2 + 16 * (n >> 1) + 4 * t + 2 * (n & 1)))
            for d in self.items[n + 20]:
                d.avail = slot + 1
            last = n
            self.nread += 1
            cnt -= 1
        return out, last


class Phase1:
    def __init__(self, typ, PF, xslot, wbase, wslot, nws, wpitch, nwd, gw_range, vW2, trregs):
        self.typ, self.PF = typ, PF
        self.xslot, self.wbase, self.wslot, self.nws = xslot, wbase, wslot, nws
        self.vm = VmTracker()
        self.sched = Sched(self.vm)
        nxd = 7 if typ == 'Q' else 6
        for s in range(8):
            slot = (s % 3) * xslot
            for d in range(nxd):
                m0 = (sMX, slot) if d < 4 else (sMX, slot + 4096) if d < 6 else (sM7, slot + 24576)
                imm = 1024 * (d & 3) if d < 6 else 0
                pre = stage_pre(s, sKX, 128) if d == 0 else []
                self.sched.add(Dma('x', ('x', s), m0, pre,
                                   "buffer_load_dwordx4 v%d, %s, s%d offen offset:%d lds" % (vXD + d, s4(sX), sKX, imm),
                                   -1 if s < 3 else 2 * (s - 3) + 1, 2 * s - 0.5))
        for t in range(16):
            slot = wbase + (t % nws) * wslot
            for e in range(nwd):
                pre = []
                if e == 0:
                    pre = stage_pre(t >> 1, sKW, 64 * wpitch) if t % 2 == 0 else ["s_add_u32 s%d, s%d, %d" % (sKW, sKW, 32 * wpitch)]
                self.sched.add(Dma('w', ('w', t), (sMW, slot), pre,
                                   "buffer_load_dwordx4 v%d, %s, s%d offen offset:%d lds" % (vWD + e, s4(sW), sKW, 1024 * e),
                                   -1 if t < nws else t - nws, t))
        busy = []
        for s in (5, 6, 7):
            busy.append(((s % 3) * xslot, (s % 3 + 1) * xslot, 2 * s + 1))
        for t in range(16 - nws, 16):
            busy.append((wbase + (t % nws) * wslot, wbase + (t % nws + 1) * wslot, t))
        if gw_range:
            busy.append((gw_range[0], gw_range[1], 15))
        first = 16 - nws
        rf = []
        for r in range(20):
            f = first
            for lo, hi, t in busy:
                if lo < 8192 * (r + 1) and hi > 8192 * r:
                    f = max(f, t)
            rf.append(f)
        self.w2 = W2(self.sched, self.vm, vW2, trregs, rf)
        self.w2_issued_at = {}

    def n_w2_issued(self):
        return (72 - len(self.sched.streams['w2'])) // 2

    def prologue(self):
        g, _ = self.sched.take(-1, OPT['npro'])
        return sum(g, [])

    def main(self, xreads, wreads, mfmas, extra, extra_need={}):
        PF, vm = self.PF, self.vm

        def need(t):
            return lambda tag: (tag[0] == 'x' and tag[1] <= t // 2) or (tag[0] == 'w' and tag[1] <= t)

        def reads(t):
            return wreads(t, t & 1, self.wbase + (t % self.nws) * self.wslot) + xreads(t, t & 1, ((t // 2) % 3) * self.xslot)

        def check_issued(t):
            for q in ('x', 'w'):
                for d in self.sched.streams[q]:
                    assert not need(t)(d.tag), ("not issued in time", t, d.tag)
        body = PF.stamp()
        check_issued(0)
        body += ["s_waitcnt vmcnt(%d)" % vm.wait_for(need(0)), "s_barrier"] + reads(0) + ["s_waitcnt lgkmcnt(0)"]
        for t in range(16):
            body += PF.stamp()
            rd = []
            w2r, last = [], None
            if OPT['rdmain'] and t - 2 in self.w2_issued_at:
                w2r, last = self.w2.take_reads(4, self.w2_issued_at[t - 2], t)
            nd = need(min(t + 1, 15))
            check_issued(min(t + 1, 15))
            n = vm.wait_for(lambda tag: nd(tag) or tag == extra_need.get(t) or (last is not None and tag[0] == 'w2' and tag[1] <= last))
            body += ["s_waitcnt vmcnt(%d)" % n, "s_barrier"]
            if t < 15:
                rd = reads(t + 1)
            rd += w2r
            dm, _ = self.sched.take(t, OPT['maxd'] if t < 11 else OPT['maxd2'])
            self.w2_issued_at[t] = self.n_w2_issued()
            mf = mfmas(t, t & 1)
            nuse = len(mf) - 4
            pos = {}
            for i, r in enumerate(rd):
                pos.setdefault(i * nuse // max(len(rd), 1), []).append(r)
            for i, g in enumerate(dm):
                pos.setdefault((i * len(mf)) // max(len(dm), 1), []).extend(g)
            ef = extra.get(t, [])
            for i, g in enumerate(ef):
                pos.setdefault((i * len(mf)) // len(ef), []).extend([g] if isinstance(g, str) else g)
            for i, m in enumerate(mf):
                body.append(m)
                body += pos.get(i, [])
            if rd:
                body += ["s_waitcnt lgkmcnt(0)"]
        body += PF.stamp()
        return body

    def epi_slot(self, k, ndma=None, nrd=2):
        slot = 16 + k
        L = []
        if ndma is None:
            ndma = OPT['edma']
        pend = getattr(self, 'epi_reads_pending', False)
        if pend:
            L += ["s_waitcnt lgkmcnt(0)"]
            self.epi_reads_pending = False
        upto = self.w2_issued_at.get(slot - 3, 0) if k >= 1 else 0
        if k >= 1:
            upto = self.w2_issued_at[max(s for s in self.w2_issued_at if s <= max(slot - 3, 14))]
        r, last = self.w2.take_reads(nrd, upto, slot)
        if r:
            L += ["s_waitcnt vmcnt(%d)" % self.vm.wait_for(lambda tag: tag[0] == 'w2' and tag[1] <= last)] + r
            self.epi_reads_pending = True
        dm, _ = self.sched.take(slot, ndma)
        L += sum(dm, [])
        self.w2_issued_at[slot] = self.n_w2_issued()
        return L

    def flush_w2(self, slot):
        L = []
        while self.w2.nread < 16 or self.sched.pending():
            L += self.epi_slot(slot - 16, ndma=64, nrd=16)
            slot += 1
        if getattr(self, 'epi_reads_pending', False):
            L += ["s_waitcnt lgkmcnt(0)"]
        return L


def phase2(P1, PF, lab):
    vm, w2 = P1.vm, P1.w2
    L = []
    vAD, vG, vXW, vXR, vOUT, vP, vT = 32, 36, 44, 45, 48, 49, 52
    ACO, ACH, VWF = 64, 128, 192
    L += ["v_lshlrev_b32 v%d, 4, v%d" % (vT, vLANE), "v_and_b32 v%d, 15, v%d" % (vT + 1, vLANE), "v_lshrrev_b32 v%d, 4, v%d" % (vT + 2, vLANE)]
    for q in range(4):
        L += ["s_add_u32 s%d, s%d, %d" % (sU, sWV, q), "s_and_b32 s%d, s%d, 3" % (sU, sU), "s_lshl_b32 s%d, s%d, 10" % (sU + 1, sU),
              "v_add_u32 v%d, s%d, v%d" % (vAD + q, sU + 1, vT),
              "s_lshl_b32 s%d, s%d, 2" % (sU + 1, sMT), "s_add_u32 s%d, s%d, s%d" % (sU + 1, sU + 1, sU), "s_lshl_b32 s%d, s%d, 6" % (sU + 1, sU + 1),
              "v_lshl_add_u32 v%d, v%d, 2, s%d" % (vG + q, vT + 1, sU + 1)]
        if q:
            L += ["s_sub_u32 s%d, s%d, %d" % (sU, sWV, q), "s_and_b32 s%d, s%d, 3" % (sU, sU), "s_lshl_b32 s%d, s%d, 11" % (sU, sU),
                  "v_add_u32 v%d, s%d, v%d" % (vXR + q - 1, sU, vT)]
    L += ["v_add_u32 v%d, s%d, v%d" % (vXW, sM2, vT),
          "s_lshl_b32 s%d, s%d, 6" % (sU, sMT), "s_lshr_b32 s%d, s%d, 1" % (sU + 1, sWV), "s_lshl_b32 s%d, s%d, 5" % (sU + 1, sU + 1),
          "s_add_u32 s%d, s%d, s%d" % (sU, sU, sU + 1), "s_and_b32 s%d, s%d, 1" % (sU + 1, sWV), "s_add_u32 s%d, s%d, s%d" % (sU, sU, sU + 1),
          "s_lshl_b32 s%d, s%d, 10" % (sU, sU), "s_lshl_b32 s%d, s%d, 7" % (sU + 1, sNT), "s_add_u32 s%d, s%d, s%d" % (sU, sU, sU + 1),
          "v_lshlrev_b32 v%d, 11, v%d" % (vT + 3, vT + 1), "v_lshl_add_u32 v%d, v%d, 3, v%d" % (vT + 3, vT + 2, vT + 3),
          "v_add_u32 v%d, s%d, v%d" % (vOUT, sU, vT + 3)]
    L += srd(sG, pWS, 8192, add=G_OFF)
    L += ["s_waitcnt vmcnt(%d)" % vm.wait_for(lambda tag: tag[0] == 'st')]
    L += PF.stamp()
    slp = ["s_sleep %d" % OPT['sleep']] if OPT['sleep'] else []
    L += ["s_barrier", "s_cmp_lg_u32 s%d, 0" % sWV, "s_cbranch_scc1 %s_pub" % lab,
          "s_mov_b32 s%d, 0" % sU,
          "%s_tag:" % lab,
          "v_cmp_eq_u32 vcc, 0, v%d" % (vTG + 1),
          "s_cmp_eq_u64 vcc, 0", "s_cbranch_scc1 %s_tagok" % lab,
          tag_load(), "s_add_u32 s%d, s%d, 1" % (sU, sU), "s_waitcnt vmcnt(0)",
          "s_cmp_lt_u32 s%d, 0x8000" % sU, "s_cbranch_scc1 %s_tag" % lab,
          "%s_tagok:" % lab,
          "v_lshrrev_b32 v%d, v%d, v%d" % (vTG, vSH, vTG), "v_and_b32 v%d, 1, v%d" % (vTG, vTG),
          "s_mov_b32 exec_lo, 0", "s_brev_b32 exec_hi, 1",
          "buffer_store_dword v%d, v%d, %s, 0 offen sc1" % (vTG, vFO, s4(sF)),
          "s_mov_b64 exec, -1",
          "%s_pub:" % lab]
    L += P1.flush_w2(60)
    L += ["s_cmp_lg_u32 s%d, 0" % sWV, "s_cbranch_scc1 %s_go" % lab,
          "s_mov_b32 s%d, 0" % sU,
          "%s_poll:" % lab,
          "buffer_load_dword v%d, v%d, %s, 0 offen sc1" % (vP, vFO, s4(sF)),
          "s_add_u32 s%d, s%d, 1" % (sU, sU),
          "s_waitcnt vmcnt(0)",
          "v_and_b32 v%d, 1, v%d" % (vP, vP),
          "v_cmp_ne_u32 vcc, v%d, v%d" % (vTG, vP),
          "s_cmp_eq_u64 vcc, 0", "s_cbranch_scc1 %s_go" % lab] + slp
    L += ["s_cmp_lt_u32 s%d, 0x8000" % sU, "s_cbranch_scc1 %s_poll" % lab,
          "%s_go:" % lab, "s_barrier"]
    L += PF.stamp()
    LA = OPT['la']
    NAB = 7

    def issue(kb):
        out = []
        for q in range(4):
            g = ["buffer_load_dwordx4 %s, v%d, %s, s%d offen sc1" % (a4(16 * (kb % NAB) + 4 * q), vAD + q, s4(sA), sSA)]
            vm.issue(('a', kb))
            if q == 3 and kb < 17:
                if kb == 13:
                    g += ["s_mov_b32 s%d, s%d" % (sSA, sAo)]
                else:
                    g += ["s_add_u32 s%d, s%d, 4096" % (sSA, sSA)]
                    if kb < 13 and OPT['rot2']:
                        g += ["s_cmp_eq_u32 s%d, s%d" % (sSA, sAe), "s_cselect_b32 s%d, s%d, s%d" % (sSA, sAh, sSA)]
            out.append(g)
        return out
    nxt = [0]
    for kb in range(OPT['la0']):
        L += sum(issue(kb), [])
        nxt[0] += 1

    def wfrag(kb, t):
        return a4(W2.AW2 + 16 * kb + 4 * t) if kb < 8 else v4(VWF + 16 * (kb & 1) + 4 * t)
    for kb in range(18):
        n = vm.wait_for(lambda g: g[0] == 'a' and g[1] <= kb)
        L += ["s_waitcnt vmcnt(%d)%s" % (n, " lgkmcnt(0)" if kb >= 8 else "")]
        L += PF.stamp()
        rd = []
        if 8 <= kb + 1 < 18:
            for h in range(2):
                rd += w2.reads(2 * (kb + 1) + h, lambda t: v2(VWF + 16 * ((kb + 1) & 1) + 4 * t + 2 * h))
        dm = []
        for _ in range(2):
            if nxt[0] < 18 and nxt[0] <= kb + LA:
                dm += issue(nxt[0])
                nxt[0] += 1
        if kb == 4:
            for q in range(4):
                dm += [["buffer_load_dword v%d, v%d, %s, 0 offen sc1" % (vG + q, vG + q, s4(sG))]]
                vm.issue(('g', 0))
        ex = []
        if kb == 13:
            ex = ["v_sub_f32 v%d, 1.0, v%d" % (vG + 4 + q, vG + q) for q in range(4)]
        if kb in (15, 16):
            for q in ((0, 1) if kb == 15 else (2, 3)):
                ex += ["v_mul_f32 v%d, v%d, v%d" % (ACH + 16 * q + i, ACH + 16 * q + i, vG + 4 + q) for i in range(16)]
        mix = dm + rd + ex
        acc = ACH if kb < 14 else ACO
        first = kb in (0, 14)
        mf = []
        for q in (1, 2, 3, 0):
            for t in range(4):
                d = v4(acc + 16 * q + 4 * t)
                mf.append("v_mfma_f32_16x16x32_bf16 %s, %s, %s, %s" % (d, wfrag(kb, t), a4(16 * (kb % NAB) + 4 * q), "0" if first else d))
        L += interleave(mf, mix)
    L += PF.stamp()
    for q in (1, 2, 3, 0):
        for i in range(0, 16, 2):
            L += ["v_pk_fma_f32 %s, %s, %s, %s op_sel_hi:[1,0,1]%s" % (v2(ACH + 16 * q + i), v2(ACO + 16 * q + i), v2((vG + q) & ~1), v2(ACH + 16 * q + i),
                                                                    "")] if False else []
        L += ["v_fma_f32 v%d, v%d, v%d, v%d" % (ACH + 16 * q + i, ACO + 16 * q + i, vG + q, ACH + 16 * q + i) for i in range(16)]
        if q:
            for t in range(4):
                L += ["ds_write_b128 v%d, %s offset:%d" % (vXW, v4(ACH + 16 * q + 4 * t), 8192 * ((q - 1) * 2 + (t >> 1)) + 1024 * (t & 1))]
    L += ["s_waitcnt lgkmcnt(0)", "s_barrier"]
    for q in range(1, 4):
        for t in range(4):
            L += ["ds_read_b128 %s, v%d offset:%d" % (v4(ACO + 16 * q + 4 * t), vXR + q - 1, 8192 * ((q - 1) * 2 + (t >> 1)) + 1024 * (t & 1))]
    for q in range(1, 4):
        L += ["s_waitcnt lgkmcnt(%d)" % (12 - 4 * q)]
        L += ["v_pk_add_f32 %s, %s, %s" % (v2(ACH + i), v2(ACH + i), v2(ACO + 16 * q + i)) for i in range(0, 16, 2)]
    for t in range(4):
        L += ["v_cvt_pk_bf16_f32 v%d, v%d, v%d" % (ACH + 4 * t, ACH + 4 * t, ACH + 4 * t + 1),
              "v_cvt_pk_bf16_f32 v%d, v%d, v%d" % (ACH + 4 * t + 1, ACH + 4 * t + 2, ACH + 4 * t + 3),
              "buffer_store_dwordx2 %s, v%d, %s, 0 offen offset:%d" % (v2(ACH + 4 * t), vOUT, s4(sO), 32 * t)]
    L += PF.stamp() + PF.dump() + ["s_endpgm"]
    return L


def gen_H():
    PF = Prof(255)
    L = PF.stamp()
    L += ["s_mul_i32 s%d, s%d, 21" % (sT, sXCD), "s_add_u32 s%d, s%d, s%d" % (sT, sT, sIDX), "s_sub_u32 s%d, s%d, 11" % (sT, sT),
          "s_mul_i32 s%d, s%d, 171" % (sCG, sT), "s_lshr_b32 s%d, s%d, 11" % (sCG, sCG),
          "s_mul_i32 s%d, s%d, 12" % (sT + 1, sCG), "s_sub_u32 s%d, s%d, s%d" % (sT, sT, sT + 1),
          "s_mul_i32 s%d, s%d, 11" % (sRB0, sT),
          "s_mul_i32 s%d, s%d, 14" % (sPID, sT), "s_add_u32 s%d, s%d, s%d" % (sPID, sPID, sCG), "s_add_u32 s%d, s%d, 88" % (sPID, sPID),
          "s_add_u32 s%d, s%d, s%d" % (sROT, sT, sCG)]
    x_setup(L, 'H')
    L += ["v_and_b32 v38, 1, v33", "v_lshlrev_b32 v38, 1, v38", "v_xor_b32 v38, v34, v38", "v_lshlrev_b32 v38, 4, v38",
          "s_movk_i32 s%d, 3584" % sT, "v_mad_u32_u24 v38, v32, s%d, v38" % sT, "v_xor_b32 v39, 64, v38",
          "s_and_b32 s%d, s%d, 1" % (sT, sWV), "s_lshl_b32 s%d, s%d, 7" % (sT, sT),
          "s_lshl_b32 s%d, s%d, 8" % (sT + 1, sCG), "s_add_u32 s%d, s%d, s%d" % (sT, sT, sT + 1)]
    for e in range(4):
        L += ["s_add_u32 s%d, s%d, %d" % (sT + 1, sT, e * (8 * 3584 - 1024)), "v_add_u32 v%d, s%d, v%d" % (vWD + e, sT + 1, 38 + (e & 1))]
    L += ["s_mul_i32 s%d, s%d, 6144" % (sMX, sWV), "s_lshl_b32 s%d, s%d, 12" % (sMW, sWV)]
    L += ["s_waitcnt lgkmcnt(0)"]
    L += srd(sX, pX, 2048 * 1024, bias=4096)
    L += ["s_cmp_lt_u32 s%d, 2" % sWV, "s_cselect_b32 s%d, s%d, s%d" % (sW, pWG, pWU), "s_cselect_b32 s%d, s%d, s%d" % (sW + 1, pWG + 1, pWU + 1),
          "s_mov_b32 s%d, %d" % (sW + 2, 512 * 3584), "s_mov_b32 s%d, 0x20000" % (sW + 3)]
    XS, WB, WS = 24576, 73728, 16384
    P1 = Phase1('H', PF, XS, WB, WS, 5, 3584, 4, None, (61, 62), list(range(240, 252)))
    lb = LdsBases(range(vRD + 4, 32))
    vx0, vx1, vw0, vw1 = vRD, vRD + 1, vRD + 2, vRD + 3
    S2 = ["v_and_b32 v40, 15, v%d" % vLANE, "v_lshrrev_b32 v41, 1, v40", "v_xor_b32 v41, v41, v33",
          "v_lshlrev_b32 v41, 4, v41", "v_lshl_add_u32 v%d, v40, 7, v41" % vx0, "v_xor_b32 v%d, 64, v%d" % (vx1, vx0)]
    S2 += ["v_lshrrev_b32 v42, 2, v40", "v_lshl_add_u32 v43, v33, 3, v42",
           "v_lshrrev_b32 v44, 1, v42", "v_and_b32 v45, 1, v33", "v_lshl_add_u32 v44, v45, 1, v44",
           "s_and_b32 s%d, s%d, 1" % (sT, sWV), "s_lshl_b32 s%d, s%d, 1" % (sT, sT), "v_xor_b32 v44, s%d, v44" % sT,
           "v_lshlrev_b32 v44, 5, v44", "v_lshl_add_u32 v43, v43, 7, v44",
           "v_and_b32 v45, 3, v%d" % vLANE, "v_lshl_add_u32 v43, v45, 3, v43",
           "s_lshr_b32 s%d, s%d, 1" % (sT, sWV), "s_lshl_b32 s%d, s%d, 12" % (sT, sT),
           "v_add_u32 v%d, s%d, v43" % (vw0, sT), "v_xor_b32 v%d, 32, v%d" % (vw1, vw0)]
    AW, AX = 0, 32

    def xreads(t, buf, xo):
        out = []
        for b in range(11):
            r, o = lb.addr(vx1 if (t & 1) else vx0, xo + 2048 * b)
            out.append("ds_read_b128 %s, v%d offset:%d" % (a4(AX + 44 * buf + 4 * b), r, o))
        return out

    def wreads(t, buf, wo):
        out = []
        for q in range(4):
            for h in range(2):
                r, o = lb.addr(vw1 if (q & 1) else vw0, wo + (8192 if q >= 2 else 0) + 512 * h)
                out.append("ds_read_b64_tr_b16 %s, v%d offset:%d" % (a2(AW + 16 * buf + 4 * q + 2 * h), r, o))
        return out

    def mfmas(t, buf):
        out = []
        for b in range(11):
            for q in range(4):
                d = v4(ACC + 16 * b + 4 * q)
                out.append("v_mfma_f32_16x16x32_bf16 %s, %s, %s, %s" % (d, a4(AW + 16 * buf + 4 * q), a4(AX + 44 * buf + 4 * b), d if t else "0"))
        return out
    vST = 60
    ES = ["s_mov_b32 s%d, 0x%x" % (sC0, NLOG2E), "s_mov_b32 s%d, 0x%x" % (sC0 + 1, NLOG2E),
          "s_mov_b32 s%d, 1.0" % (sC0 + 2), "s_mov_b32 s%d, 1.0" % (sC0 + 3),
          ["s_lshl_b32 s%d, s%d, 2" % (sU, sCG), "s_add_u32 s%d, s%d, s%d" % (sU, sU, sWV)],
          ["s_add_u32 s%d, s%d, 16" % (sU, sU), "s_lshl_b32 s%d, s%d, 12" % (sU, sU)],
          "v_lshlrev_b32 v%d, 4, v%d" % (vST, vLANE), "v_add_u32 v%d, s%d, v%d" % (vST, sU, vST)]
    so = store_offsets(11, sRB0)
    pro = P1.prologue()
    body = P1.main(xreads, wreads, mfmas, {5: ES + P1.w2.setup_dma(), 6: P1.w2.setup_rd(), 7: so[:17], 8: so[17:], 15: flag_setup(P1.vm)})
    L += pro + S2 + lb.setup + late_scalar_setup() + body
    L += [tag_load()]
    P1.vm.issue(('tag', 0))
    for b in range(11):
        base = ACC + 16 * b
        G = [base + i for i in range(8)]
        U = [base + 8 + i for i in range(8)]
        L += ["v_pk_mul_f32 %s, %s, s[%d:%d]" % (v2(G[i]), v2(G[i]), sC0, sC0 + 1) for i in range(0, 8, 2)]
        L += ["v_exp_f32 v%d, v%d" % (g, g) for g in G]
        L += P1.epi_slot(b)
        L += ["v_pk_add_f32 %s, %s, s[%d:%d]" % (v2(G[i]), v2(G[i]), sC0 + 2, sC0 + 3) for i in range(0, 8, 2)]
        L += ["v_rcp_f32 v%d, v%d" % (g, g) for g in G]
        L += ["v_pk_mul_f32 %s, %s, %s" % (v2(U[i]), v2(U[i]), v2(G[i])) for i in range(0, 8, 2)]
        L += ["v_cvt_pk_bf16_f32 v%d, v%d, v%d" % (G[i], U[2 * i], U[2 * i + 1]) for i in range(4)]
        L += ["buffer_store_dwordx4 %s, v%d, %s, s%d offen sc1" % (v4(base), vST, s4(sA), sST + b)]
        P1.vm.issue(('st', b))
    L += PF.stamp()
    L += P1.epi_slot(20, ndma=OPT['postdma'], nrd=16)
    L += phase2(P1, PF, "H")
    return L


def gen_Q():
    PF = Prof(10 if False else 31)
    L = PF.stamp()
    L += ["s_mov_b32 s%d, s%d" % (sCG, sXCD), "s_mul_i32 s%d, s%d, 12" % (sRB0, sIDX),
          "s_lshl_b32 s%d, s%d, 3" % (sPID, sIDX), "s_add_u32 s%d, s%d, s%d" % (sPID, sPID, sXCD),
          "s_add_u32 s%d, s%d, s%d" % (sROT, sIDX, sXCD), "s_add_u32 s%d, s%d, 2" % (sROT, sROT)]
    x_setup(L, 'Q')
    L += ["s_lshl_b32 s%d, s%d, 4" % (sT, sRB0), "s_add_u32 s%d, s%d, s%d" % (sT, sT, sWV),
          "s_sub_u32 s%d, s%d, 16" % (sT, sT), "s_lshl_b32 s%d, s%d, 10" % (sT, sT), "s_add_u32 s%d, s%d, 4096" % (sT, sT),
          "s_cmp_eq_u32 s%d, 0" % sRB0, "s_cselect_b32 s%d, 0x%x, s%d" % (sT, BIG, sT),
          "s_cmp_ge_u32 s%d, 2" % sWV, "s_cselect_b32 s%d, 0x%x, s%d" % (sT, BIG, sT),
          "s_and_b32 s%d, s%d, 1" % (sT + 1, sWV), "s_lshl_b32 s%d, s%d, 6" % (sT + 1, sT + 1),
          "v_xor_b32 v38, s%d, v36" % (sT + 1), "v_add_u32 v%d, s%d, v38" % (vXD + 6, sT)]
    L += ["v_and_b32 v38, 1, v33", "v_lshlrev_b32 v38, 1, v38", "v_xor_b32 v38, v34, v38", "v_lshlrev_b32 v38, 4, v38",
          "s_movk_i32 s%d, 3072" % sT, "v_mad_u32_u24 v38, v32, s%d, v38" % sT,
          "s_mul_i32 s%d, s%d, 3" % (sT, sWV), "s_lshl_b32 s%d, s%d, 7" % (sT + 4, sCG)]
    for e in range(3):
        L += ["s_add_u32 s%d, s%d, %d" % (sT + 1, sT, e),
              "s_and_b32 s%d, s%d, 3" % (sT + 2, sT + 1), "s_mul_i32 s%d, s%d, %d" % (sT + 2, sT + 2, 8 * 3072),
              "s_lshr_b32 s%d, s%d, 2" % (sT + 3, sT + 1), "s_lshl_b32 s%d, s%d, 10" % (sT + 3, sT + 3),
              "s_add_u32 s%d, s%d, s%d" % (sT + 2, sT + 2, sT + 3), "s_add_u32 s%d, s%d, s%d" % (sT + 2, sT + 2, sT + 4),
              "s_sub_u32 s%d, s%d, %d" % (sT + 2, sT + 2, 1024 * e),
              "s_and_b32 s%d, s%d, 1" % (sT + 1, sT + 1), "s_lshl_b32 s%d, s%d, 6" % (sT + 1, sT + 1),
              "v_xor_b32 v39, s%d, v38" % (sT + 1), "v_add_u32 v%d, s%d, v39" % (vWD + e, sT + 2)]
    L += ["s_mul_i32 s%d, s%d, 6144" % (sMX, sWV), "s_mul_i32 s%d, s%d, 3072" % (sMW, sWV), "s_lshl_b32 s%d, s%d, 10" % (sM7, sWV)]
    L += ["v_lshlrev_b32 v39, 2, v32", "s_mov_b32 s%d, 0x%x" % (sT, OPT['masks'] & 0x77777777),
          "v_lshrrev_b32 v39, v39, s%d" % sT, "s_and_b32 s%d, s%d, 7" % (sT + 1, sROT), "v_and_b32 v39, s%d, v39" % (sT + 1),
          "v_xor_b32 v39, v39, v32", "v_lshl_add_u32 v39, v39, 3, v34", "v_lshlrev_b32 v39, 4, v39"]
    L += ["s_waitcnt lgkmcnt(0)"]
    L += srd(sX, pX, 2048 * 1024, bias=4096) + srd(sW, pQKV, 512 * 3072) + srd(sG, pGW, 1024)
    XS, WB, WS, NWS = 28672, 86016, 12288, 6
    GW = WB + NWS * WS
    L += ["s_mov_b32 m0, %d" % GW, "s_nop 0", "buffer_load_dwordx4 v39, %s, 0 offen lds" % s4(sG)]
    P1 = Phase1('Q', PF, XS, WB, WS, NWS, 3072, 3, (GW, GW + 1024), (12, 0), [2, 3, 4, 5, 6, 7, 8, 9, 10, 28, 29, 30])
    lb = LdsBases(range(vRD + 9, 28))
    lb2 = LdsBases(range(46, 60))
    vx0, vx1, vw0, vw1, vh0, vh1, vt0, vt1, vg = [vRD + i for i in range(9)]
    S2 = ["v_and_b32 v40, 15, v%d" % vLANE, "v_lshrrev_b32 v41, 1, v40", "v_xor_b32 v41, v41, v33",
          "v_lshlrev_b32 v41, 4, v41", "v_lshl_add_u32 v42, v40, 7, v41",
          "s_lshr_b32 s%d, s%d, 1" % (sT, sWV), "s_mul_i32 s%d, s%d, %d" % (sT + 1, sT, 6 * 2048),
          "v_add_u32 v%d, s%d, v42" % (vx0, sT + 1), "v_xor_b32 v%d, 64, v%d" % (vx1, vx0)]
    S2 += ["s_lshl_b32 s%d, s%d, 2" % (sT + 1, sCG), "s_add_u32 s%d, s%d, s%d" % (sT + 1, sT + 1, sWV),
           "s_min_u32 s%d, s%d, 11" % (sT + 1, sT + 1), "s_lshl_b32 s%d, s%d, 11" % (sT + 1, sT + 1),
           "v_add_u32 v%d, s%d, v42" % (vt0, sT + 1), "v_xor_b32 v%d, 64, v%d" % (vt1, vt0)]
    S2 += ["v_or_b32 v43, 8, v40", "v_lshrrev_b32 v44, 1, v43", "v_xor_b32 v44, v44, v33", "v_lshlrev_b32 v44, 4, v44",
           "v_lshl_add_u32 v44, v43, 7, v44",
           "v_lshrrev_b32 v45, 3, v40", "v_lshl_add_u32 v44, v45, 11, v44", "v_add_u32 v44, %d, v44" % (4 * 2048),
           "v_add_u32 v45, %d, v42" % (12 * 2048),
           "s_cmp_eq_u32 s%d, 0" % sT, "s_cselect_b64 vcc, -1, 0",
           "v_cndmask_b32 v%d, v44, v45, vcc" % vh0, "v_xor_b32 v%d, 64, v%d" % (vh1, vh0)]
    S2 += ["v_lshrrev_b32 v42, 2, v40", "v_lshl_add_u32 v43, v33, 3, v42",
           "v_lshrrev_b32 v44, 1, v42", "v_and_b32 v45, 1, v33", "v_lshl_add_u32 v44, v45, 1, v44",
           "s_and_b32 s%d, s%d, 1" % (sT, sWV), "s_lshl_b32 s%d, s%d, 1" % (sT, sT), "v_xor_b32 v44, s%d, v44" % sT,
           "v_lshlrev_b32 v44, 5, v44", "v_lshl_add_u32 v43, v43, 7, v44",
           "v_and_b32 v45, 3, v%d" % vLANE, "v_lshl_add_u32 v%d, v45, 3, v43" % vw0,
           "v_xor_b32 v%d, 32, v%d" % (vw1, vw0),
           "v_lshlrev_b32 v45, 4, v33", "v_add_u32 v%d, %d, v45" % (vg, GW)]
    AW, AX = 0, 48

    def Qa(hh, b): return ACC + 4 * (hh * 20 + b)
    def Ka(hh, b): return ACC + 4 * (hh * 20 + 6 + b)
    def Va(hh, b): return ACC + 4 * (hh * 20 + 13 + b)
    TA = ACC + 160

    def xreads(t, buf, xo):
        out = []
        for b in range(6):
            r, o = lb.addr(vx1 if (t & 1) else vx0, xo + 2048 * b)
            out.append("ds_read_b128 %s, v%d offset:%d" % (a4(AX + 36 * buf + 4 * b), r, o))
        r, o = lb.addr(vh1 if (t & 1) else vh0, xo)
        out.append("ds_read_b128 %s, v%d offset:%d" % (a4(AX + 36 * buf + 24), r, o))
        r, o = lb.addr(vt1 if (t & 1) else vt0, xo)
        out.append("ds_read_b128 %s, v%d offset:%d" % (a4(AX + 36 * buf + 28), r, o))
        out.append("ds_read_b128 %s, v%d offset:%d" % (a4(AX + 36 * buf + 32), vg, 64 * t))
        return out

    def wreads(t, buf, wo):
        out = []
        for seg in range(3):
            for hh in range(2):
                for h in range(2):
                    r, o = lb2.addr(vw1 if hh else vw0, wo + 4096 * seg + 512 * h)
                    out.append("ds_read_b64_tr_b16 %s, v%d offset:%d" % (a2(AW + 24 * buf + 4 * (seg * 2 + hh) + 2 * h), r, o))
        return out

    def mfmas(t, buf):
        out = []
        W = lambda seg, hh: a4(AW + 24 * buf + 4 * (seg * 2 + hh))
        for b in range(7):
            X = a4(AX + 36 * buf + 4 * b)
            for hh in range(2):
                if b < 6:
                    d = v4(Qa(hh, b)); out.append("v_mfma_f32_16x16x32_bf16 %s, %s, %s, %s" % (d, W(0, hh), X, d if t else "0"))
                d = v4(Ka(hh, b)); out.append("v_mfma_f32_16x16x32_bf16 %s, %s, %s, %s" % (d, W(1, hh), X, d if t else "0"))
                d = v4(Va(hh, b)); out.append("v_mfma_f32_16x16x32_bf16 %s, %s, %s, %s" % (d, X, W(2, hh), d if t else "0"))
        d = v4(TA)
        out.append("v_mfma_f32_16x16x32_bf16 %s, %s, %s, %s" % (d, a4(AX + 36 * buf + 32), a4(AX + 36 * buf + 28), d if t else "0"))
        return out
    MC, MP, MH0, MH1, AM, ONES, SPARE = 228, 232, 236, 240, 244, 248, 252
    vST, vGO = 250, 251
    ES = [srd(sG, pWS, 8192, add=G_OFF),
          "s_mov_b32 s%d, 0x%x" % (sC0, SCL), "s_mov_b32 s%d, 0x%x" % (sC0 + 1, NLOG2E),
          ["s_lshl_b32 s%d, s%d, 1" % (sU, sCG), "s_and_b32 s%d, s%d, 1" % (sU + 1, sWV)],
          ["s_add_u32 s%d, s%d, s%d" % (sU, sU, sU + 1), "s_lshl_b32 s%d, s%d, 12" % (sU, sU)],
          "v_lshlrev_b32 v%d, 4, v%d" % (vST, vLANE), "v_add_u32 v%d, s%d, v%d" % (vST, sU, vST),
          ["s_lshl_b32 s%d, s%d, 2" % (sU, sCG), "s_add_u32 s%d, s%d, s%d" % (sU, sU, sWV)],
          ["s_add_u32 s%d, s%d, s%d" % (sU + 1, sU, sRB0), "s_lshl_b32 s%d, s%d, 6" % (sU + 1, sU + 1)],
          ["s_cmp_lt_u32 s%d, 12" % sU, "s_cselect_b32 s%d, s%d, 0x%x" % (sU + 1, sU + 1, BIG)],
          "v_lshl_add_u32 v%d, v%d, 2, s%d" % (vGO, vLANE, sU + 1),
          "v_mov_b32 v%d, 0x%x" % (SPARE, BIG),
          "v_cmp_gt_u32 vcc, 16, v%d" % vLANE,
          "v_mov_b32 v%d, 0x3f803f80" % ONES, "v_mov_b32 v%d, 0x3f803f80" % (ONES + 1),
          "v_cndmask_b32 v%d, v%d, v%d, vcc" % (vGO, SPARE, vGO),
          ["s_lshr_b32 s%d, s%d, 1" % (sU + 2, sWV), "s_mul_i32 s%d, s%d, 6" % (sU + 2, sU + 2)],
          "s_add_u32 s%d, s%d, s%d" % (sU + 2, sU + 2, sRB0)]
    so = store_offsets(6, sU + 2)
    HV, HV2 = sU + 4, sU + 6
    ES2 = ["v_and_b32 v%d, 15, v%d" % (SPARE, vLANE), "v_lshrrev_b32 v%d, 4, v%d" % (SPARE + 1, vLANE),
           "v_lshlrev_b32 v%d, 2, v%d" % (SPARE + 1, SPARE + 1), "v_sub_u32 v%d, v%d, v%d" % (SPARE, SPARE, SPARE + 1),
           "v_mov_b32 v%d, 0xff800000" % (SPARE + 2),
           ["s_lshr_b32 s%d, s%d, 1" % (sU, sWV), "s_or_b32 s%d, s%d, s%d" % (sU, sU, sRB0)],
           ["s_cmp_lg_u32 s%d, 0" % sU, "s_cselect_b64 s[%d:%d], -1, 0" % (HV, HV + 1)],
           ["s_mov_b32 s%d, s%d" % (HV2, HV), "s_mov_b32 s%d, 0" % (HV2 + 1)],
           "v_mov_b32 v%d, 0" % AM, "v_mov_b32 v%d, 0" % (AM + 1)]
    ES3 = []
    for r in range(4):
        ES3 += ["v_subrev_u32 v%d, %d, v%d" % (SPARE + 3, r, SPARE), "v_cmp_gt_u32 vcc, 8, v%d" % (SPARE + 3),
                "v_mov_b32 v%d, 0x%x" % (SPARE + 1, 0xffff0000 if (r & 1) else 0xffff),
                "v_add_u32 v%d, %d, v%d" % (SPARE + 3, 16 - r, SPARE),
                "v_cndmask_b32 v%d, v%d, 0, vcc" % (MC + r, SPARE + 2),
                "v_cndmask_b32 v%d, 0, v%d, vcc" % (SPARE + 1, SPARE + 1),
                "v_cmp_gt_u32 vcc, 8, v%d" % (SPARE + 3),
                "v_or_b32 v%d, v%d, v%d" % (AM + (r >> 1), AM + (r >> 1), SPARE + 1),
                "v_add_u32 v%d, %d, v%d" % (SPARE + 3, 8 - r, SPARE),
                "v_cndmask_b32 v%d, v%d, 0, vcc" % (MP + r, SPARE + 2),
                "s_and_b64 vcc, vcc, s[%d:%d]" % (HV, HV + 1),
                "v_cndmask_b32 v%d, v%d, 0, vcc" % (MH1 + r, SPARE + 2),
                "v_cmp_gt_u32 vcc, 8, v%d" % (SPARE + 3),
                "s_and_b64 vcc, vcc, s[%d:%d]" % (HV2, HV2 + 1),
                "v_cndmask_b32 v%d, v%d, 0, vcc" % (MH0 + r, SPARE + 2)]
    ES3 += ["v_not_b32 v%d, v%d" % (AM + 2, AM), "v_not_b32 v%d, v%d" % (AM + 3, AM + 1)]
    TL = ["s_lshl_b32 s%d, s%d, 12" % (sT, sXCD), "s_lshl_b32 s%d, s%d, 3" % (sT + 1, sXCD),
          "s_lshl_b32 s%d, s%d, 4" % (sT + 2, sWV), "s_add_u32 s%d, s%d, s%d" % (sT + 2, sT + 2, sIDX),
          "s_cmp_eq_u32 s%d, 10" % (sT + 2), "s_cselect_b32 s%d, s%d, 0x%x" % (sT, sT, BIG), "s_cselect_b32 s%d, s%d, 0x%x" % (sT + 1, sT + 1, BIG),
          "v_and_b32 v60, 31, v%d" % vLANE, "v_lshl_add_u32 v60, v60, 7, s%d" % sT,
          "v_lshl_add_u32 v62, v%d, 24, s%d" % (vLANE, sT + 1),
          "buffer_load_dword v60, v60, %s, 0 offen sc1" % s4(sF)]
    TP = ["v_and_b32 v60, 1, v60", "v_cmp_eq_u32 vcc, 0, v60", "v_mov_b32 v61, 1", "v_mov_b32 v60, vcc_lo",
          "buffer_store_dwordx2 v[60:61], v62, %s, 0 offen sc1" % s4(sD)]
    pro = P1.prologue()
    P1.vm.issue(('tp', 0))
    body = P1.main(xreads, wreads, mfmas, {3: ES, 4: so, 5: ES2 + P1.w2.setup_dma(), 6: ES3[:21], 7: ES3[21:42], 8: ES3[42:], 11: P1.w2.setup_rd(), 2: TP, 15: flag_setup(P1.vm)}, {2: ('tp', 0)})
    L += pro + S2 + lb.setup + lb2.setup + late_scalar_setup() + TL + body
    L += [tag_load()]
    P1.vm.issue(('tag', 0))
    VB = 32
    def Vb(hh, par, k): return VB + 16 * hh + 8 * par + 2 * k
    def cvt2(dst, src): return ["v_cvt_pk_bf16_f32 v%d, v%d, v%d" % (dst, src, src + 1), "v_cvt_pk_bf16_f32 v%d, v%d, v%d" % (dst + 1, src + 2, src + 3)]
    units = [(hh, b) for b in range(6) for hh in range(2)]
    seg = [0]

    def slot():
        seg[0] += 1
        return P1.epi_slot(seg[0] - 1)
    for b in range(6):
        for hh in range(2):
            L += cvt2(Qa(hh, b), Qa(hh, b)) + cvt2(Qa(hh, b) + 2, Ka(hh, b)) + cvt2(Vb(hh, b & 1, 1 + (b >> 1)), Va(hh, b))
        if b in (1, 4):
            L += slot()
    for hh in range(2):
        L += cvt2(Ka(hh, 6), Ka(hh, 6)) + cvt2(Vb(hh, 0, 0), Va(hh, 6)) + cvt2(Vb(hh, 1, 0), Va(hh, 6))
    L += ["v_mul_f32 v%d, s%d, v%d" % (TA, sC0 + 1, TA), "v_exp_f32 v%d, v%d" % (TA, TA)]
    mf = []
    for (hh, b) in units:
        mf += ["v_mfma_f32_16x16x16_bf16 %s, %s, %s, %s" % (v4(Ka(hh, b)), v2(Qa(hh, b) + 2), v2(Qa(hh, b)), v4(MC))]
        kp = Ka(hh, 6) if b < 2 else Qa(hh, b - 2) + 2
        mk = MH0 if b == 0 else MH1 if b == 1 else MP
        mf += ["v_mfma_f32_16x16x16_bf16 %s, %s, %s, %s" % (v4(Va(hh, b)), v2(kp), v2(Qa(hh, b)), v4(mk))]
    mx = []
    for (hh, b) in units:
        S, P = Ka(hh, b), Va(hh, b)
        mx += ["v_max_f32 v%d, v%d, v%d" % (S + r, S + r, P + r) for r in range(4)]
        mx += ["v_max3_f32 v%d, v%d, v%d, v%d" % (P, S, S + 1, S + 2), "v_max_f32 v%d, v%d, v%d" % (P, P, S + 3)]
    L += interleave(mf[:8], slot()) + interleave(mf[8:], mx[:32])
    L += ["v_add_f32 v%d, 1.0, v%d" % (TA, TA), "v_rcp_f32 v%d, v%d" % (TA, TA)]
    L += mx[32:]
    L += ["buffer_store_dword v%d, v%d, %s, 0 offen sc1" % (TA, vGO, s4(sG))]
    P1.vm.issue(('st', 100))
    L += slot()
    grp = [[Va(*units[4 * k + i]) for i in range(4)] for k in range(3)]
    for A, B, C, D in grp:
        L += ["v_permlane32_swap_b32 v%d, v%d" % (A, B), "v_permlane32_swap_b32 v%d, v%d" % (C, D)]
    for A, B, C, D in grp:
        L += ["v_max_f32 v%d, v%d, v%d" % (A, A, B), "v_max_f32 v%d, v%d, v%d" % (C, C, D)]
    for A, B, C, D in grp:
        L += ["v_permlane16_swap_b32 v%d, v%d" % (A, C)]
    for A, B, C, D in grp:
        L += ["v_max_f32 v%d, v%d, v%d" % (A, A, C)]
    for A, B, C, D in grp:
        L += ["v_mul_f32 v%d, s%d, v%d" % (C, sC0, A)]
    for A, B, C, D in grp:
        L += ["v_mul_f32 v%d, s%d, v%d" % (A, sC0, A)]
    for A, B, C, D in grp:
        L += ["v_permlane16_swap_b32 v%d, v%d" % (A, C)]
    for A, B, C, D in grp:
        L += ["v_mov_b32 v%d, v%d" % (B, A), "v_mov_b32 v%d, v%d" % (D, C)]
    for A, B, C, D in grp:
        L += ["v_permlane32_swap_b32 v%d, v%d" % (A, B), "v_permlane32_swap_b32 v%d, v%d" % (C, D)]
    prevP = SPARE
    sums = {}
    pend_mf = []
    for k in range(0, 12, 2):
        us = units[k:k + 2]
        L += slot()
        a = []
        for (hh, b) in us:
            S, P = Ka(hh, b), Va(hh, b)
            a += ["v_fma_f32 v%d, v%d, s%d, -v%d" % (S + r, S + r, sC0, P) for r in range(4)]
        L += interleave(pend_mf, a) if pend_mf else a
        for (hh, b) in us:
            S = Ka(hh, b)
            L += ["v_exp_f32 v%d, v%d" % (S + r, S + r) for r in range(4)]
        for (hh, b) in us:
            L += cvt2(Va(hh, b) + 2, Ka(hh, b))
        for (hh, b) in us:
            P, Q = Va(hh, b), Qa(hh, b)
            L += ["v_and_b32 v%d, v%d, v%d" % (Q, P + 2, AM + 2), "v_and_b32 v%d, v%d, v%d" % (Q + 1, P + 3, AM + 3),
                  "v_and_b32 v%d, v%d, v%d" % (Q + 2, P + 2, AM), "v_and_b32 v%d, v%d, v%d" % (Q + 3, P + 3, AM + 1)]
        pend_mf = []
        for (hh, b) in us:
            P = Va(hh, b)
            pend_mf += ["v_mfma_f32_16x16x16_bf16 %s, %s, %s, 0" % (v4(prevP), v2(ONES), v2(P + 2))]
            sums[(hh, b)] = prevP
            prevP = P
        for (hh, b) in us:
            pend_mf += ["v_mfma_f32_16x16x32_bf16 %s, %s, %s, 0" % (v4(Ka(hh, b)), v4(Vb(hh, b & 1, b >> 1)), v4(Qa(hh, b)))]
    rc = ["v_rcp_f32 v%d, v%d" % (sums[u], sums[u]) for u in units]
    L += interleave(pend_mf, rc[:4]) + rc[4:]
    for b in range(6):
        for hh in range(2):
            S = Ka(hh, b)
            sm = sums[(hh, b)]
            L += ["v_pk_mul_f32 %s, %s, %s op_sel_hi:[1,0]" % (v2(S + r), v2(S + r), v2(sm)) for r in (0, 2)]
        for hh in range(2):
            L += cvt2(Qa(0, b) + 2 * hh, Ka(hh, b))
        L += ["buffer_store_dwordx4 %s, v%d, %s, s%d offen sc1" % (v4(Qa(0, b)), vST, s4(sA), sST + b)]
        P1.vm.issue(('st', b))
    L += PF.stamp()
    L += P1.epi_slot(20, ndma=OPT['postdma'], nrd=16)
    L += phase2(P1, PF, "Q")
    return L


def main():
    K = NAME + "_kernel"
    L = [K + ":", "s_cmp_ge_u32 s2, 256", "s_cbranch_scc1 L_exit",
         "s_load_dwordx8 s[4:11], s[0:1], 0", "s_load_dwordx8 s[12:19], s[0:1], 32",
         "s_load_dwordx4 s[20:23], s[0:1], 64", "s_load_dwordx2 s[24:25], s[0:1], 80",
         "v_lshrrev_b32 v2, 6, v0", "v_and_b32 v%d, 63, v0" % vLANE, "v_readfirstlane_b32 s%d, v2" % sWV,
         "s_and_b32 s%d, s2, 7" % sXCD, "s_lshr_b32 s%d, s2, 3" % sIDX, "s_cmp_lt_u32 s%d, 11" % sIDX, "s_cbranch_scc1 L_Q"]
    pf = ["s_getpc_b64 s[26:27]", "v_lshlrev_b32 v63, 7, v0", "global_load_dword v63, v63, s[26:27]"] if OPT['iprefetch'] else []
    rep = {}
    H = fix_hazards(["s_nop 3"] + pf + gen_H(), rep)
    sys.stderr.write("H: %d lines, nops %d\n" % (len(H), rep['nops']))
    Q = fix_hazards(["s_nop 3"] + pf + gen_Q(), rep)
    sys.stderr.write("Q: %d lines, nops %d\n" % (len(Q), rep['nops']))
    out = ["; generated by gen2.py: single persistent kernel, flag hand-off between GEMM1 and GEMM2",
           "; @launch grid=(256,1,1) block=(256,1,1) lds=163840",
           '.amdgcn_target "amdgcn-amd-amdhsa--gfx950"', ".text", ".globl " + K, ".p2align 8", ".type %s,@function" % K]
    out += fix_hazards(L) + H + ["L_exit:", "s_endpgm", ".p2align 6", "L_Q:"] + Q
    out += [".p2align 8", ".fill 4096, 4, 0xbf800000", "s_endpgm"]
    out += ['.section .rodata,"a"', ".p2align 6", """.amdhsa_kernel %s
  .amdhsa_next_free_vgpr 512
  .amdhsa_next_free_sgpr 102
  .amdhsa_accum_offset 256
  .amdhsa_group_segment_fixed_size 0
  .amdhsa_kernarg_size 88
  .amdhsa_user_sgpr_count 2
  .amdhsa_user_sgpr_kernarg_segment_ptr 1
  .amdhsa_system_sgpr_workgroup_id_x 1
.end_amdhsa_kernel""" % K]
    print("\n".join(out))


main()
```

```python
import sys
from asmlib import *

NAME = "gated_mix__sliding_local_dilated__glu_gated_glu__prompt"
A2_BYTES = 32 * 72 * 4096
G_OFF = A2_BYTES
F_OFF = A2_BYTES + 8192
MT_STRIDE = 72 * 4096
NLOG2E = 0xbfb8aa3b
SCL = 0x3eb8aa3b
BIG = 0x40000000

OPT = dict(masks=0x33333333, pk=1, iprefetch=1, prof=0, maxd=11, rot2=1, flags=0, la=6, la0=3, rdmain=1, npro=20, sleep=1, edma=2, postdma=6, maxd2=8, rnt=7, rmt=3, diag=-1, diagc=0)
for a in sys.argv[1:]:
    if '=' in a:
        k, v = a.split('=')
        assert k in OPT, k
        OPT[k] = int(v, 0)

pX, pQKV, pWO, pWG, pWU, pWD, pGW, pOUT, pDBG, pWS = 4, 6, 8, 12, 14, 16, 18, 20, 22, 24
sX, sW, sA, sG, sWO, sWD, sO, sD = 28, 32, 36, 40, 44, 48, 52, 56
sWV, sRB0, sCG, sXCD, sIDX, sKX, sKW, sMX, sMW, sM7, sROT, sM2 = 60, 61, 62, 63, 64, 65, 66, 67, 68, 69, 70, 71
sMT, sNT, sW2o, sW2h, sW2e, sS2, sAo, sAh, sAe, sSA = 72, 73, 74, 75, 76, 77, 78, 79, 80, 81
sC0 = 82
sST = 86
sF = 20
sPID = 98
sK = 97
sT = 88
sU = 4
vLANE = 1
vXD, vWD, vRD = 2, 9, 13
ACC = 64


def v4(b): return "v[%d:%d]" % (b, b + 3)
def v2(b): return "v[%d:%d]" % (b, b + 1)
def a4(b): return "a[%d:%d]" % (b, b + 3)
def a2(b): return "a[%d:%d]" % (b, b + 1)
def s4(b): return "s[%d:%d]" % (b, b + 3)


class Prof:
    def __init__(self, vreg):
        self.n = 0
        self.v = vreg

    def stamp(self):
        self.n += 1
        if OPT['diag'] == self.n - 1:
            L = ["s_memrealtime s[100:101]", "s_waitcnt lgkmcnt(0)", "s_mov_b32 s99, s100"]
            if OPT['diagc']:
                L += ["s_memtime s[100:101]", "s_waitcnt lgkmcnt(0)", "s_mov_b32 s3, s100"]
            return L
        if not OPT['prof']:
            return []
        return ["s_memtime s[100:101]", "s_waitcnt lgkmcnt(0)", "v_writelane_b32 v%d, s100, %d" % (self.v, self.n - 1)]

    def dump(self):
        if OPT['diag'] >= 0:
            lab = "D%d" % self.v
            L = ["s_waitcnt vmcnt(0)"] + self.stamp() + ["s_mov_b32 s4, 10000"]
            if OPT['diagc']:
                L += ["s_memtime s[100:101]", "s_waitcnt lgkmcnt(0)", "s_sub_u32 s3, s100, s3", "s_lshr_b32 s3, s3, 3", "s_add_u32 s4, s3, 5000"]
            L += ["s_mov_b32 s5, 0", lab + ":", "s_memrealtime s[100:101]", "s_waitcnt lgkmcnt(0)", "s_sub_u32 s6, s100, s99",
                  "s_add_u32 s5, s5, 1", "s_cmp_gt_u32 s5, 100000", "s_cbranch_scc1 %s_x" % lab,
                  "s_cmp_lt_u32 s6, s4", "s_cbranch_scc1 " + lab, lab + "_x:"]
            return L
        if not OPT['prof']:
            return []
        L = ["s_waitcnt vmcnt(0)"] + self.stamp()
        L += ["s_memrealtime s[100:101]", "s_waitcnt lgkmcnt(0)", "v_writelane_b32 v%d, s100, 63" % self.v]
        L += ["s_lshl_b32 s100, s2, 2", "s_add_u32 s100, s100, s%d" % sWV, "s_lshl_b32 s100, s100, 8",
              "s_add_u32 s100, s100, %d" % (16 << 20), "v_lshl_add_u32 v2, v%d, 2, s100" % vLANE,
              "global_store_dword v2, v%d, s[%d:%d]" % (self.v, pWS, pWS + 1)]
        return L


def srd(d, p, nbytes, bias=0, add=0):
    L = []
    if bias:
        L += ["s_sub_u32 s%d, s%d, %d" % (d, p, bias), "s_subb_u32 s%d, s%d, 0" % (d + 1, p + 1)]
    elif add:
        L += ["s_add_u32 s%d, s%d, %d" % (d, p, add), "s_addc_u32 s%d, s%d, 0" % (d + 1, p + 1)]
    else:
        L += ["s_mov_b32 s%d, s%d" % (d, p), "s_mov_b32 s%d, s%d" % (d + 1, p + 1)]
    L += ["s_mov_b32 s%d, 0x%x" % (d + 2, nbytes + bias), "s_mov_b32 s%d, 0x20000" % (d + 3)]
    return L


class LdsBases:
    def __init__(self, regs, chunk=0xC000):
        self.regs = list(regs)
        self.map = {}
        self.setup = []
        self.chunk = chunk

    def addr(self, patreg, off):
        ch = off // self.chunk
        if ch == 0:
            return patreg, off
        key = (patreg, ch)
        if key not in self.map:
            r = self.regs.pop(0)
            self.map[key] = r
            self.setup.append("v_add_u32 v%d, 0x%x, v%d" % (r, ch * self.chunk, patreg))
        return self.map[key], off - ch * self.chunk


class Dma:
    def __init__(self, stream, tag, m0, pre, text, avail, need):
        self.stream, self.tag, self.m0, self.pre, self.text, self.avail, self.need = stream, tag, m0, pre, text, avail, need


class Sched:
    def __init__(self, vm):
        self.vm = vm
        self.streams = {}
        self.m0 = None

    def add(self, d):
        self.streams.setdefault(d.stream, []).append(d)

    def take(self, slot, cap):
        picked = []
        while len(picked) < cap:
            best = None
            for s, q in self.streams.items():
                if q and q[0].avail is not None and q[0].avail <= slot:
                    if best is None or q[0].need < self.streams[best][0].need:
                        best = s
            if best is None:
                break
            picked.append(self.streams[best].pop(0))
        groups = [[]]
        for d in picked:
            setup = list(d.pre)
            if d.m0 != self.m0:
                setup.append("s_add_u32 m0, s%d, %d" % d.m0)
                self.m0 = d.m0
            groups[-1] += setup
            groups.append([d.text])
            self.vm.issue(d.tag)
        return [g for g in groups if g], picked

    def pending(self):
        return sum(len(q) for q in self.streams.values())


def stage_pre(s, dst, mul):
    m = (OPT['masks'] >> (4 * s)) & 7
    if m == 0:
        return ["s_mov_b32 s%d, %d" % (dst, s * mul)]
    return ["s_and_b32 s%d, s%d, %d" % (sK, sROT, m), "s_xor_b32 s%d, s%d, %d" % (sK, sK, s), "s_mul_i32 s%d, s%d, %d" % (dst, sK, mul)]


def x_setup(L, typ):
    L += ["v_lshrrev_b32 v32, 3, v%d" % vLANE, "v_lshrrev_b32 v33, 4, v%d" % vLANE, "v_and_b32 v34, 7, v%d" % vLANE,
          "v_xor_b32 v35, v34, v33", "v_lshlrev_b32 v35, 4, v35", "v_lshl_add_u32 v36, v32, 11, v35", "v_xor_b32 v37, 64, v36"]
    L += ["s_mul_i32 s%d, s%d, 3" % (sT, sWV), "s_add_u32 s%d, s%d, s%d" % (sT, sT, sRB0)]
    for bb in range(3):
        L += ["s_add_u32 s%d, s%d, %d" % (sT + 1, sT, bb),
              "s_lshr_b32 s%d, s%d, 1" % (sT + 2, sT + 1), "s_lshl_b32 s%d, s%d, 15" % (sT + 2, sT + 2),
              "s_and_b32 s%d, s%d, 1" % (sT + 1, sT + 1), "s_lshl_b32 s%d, s%d, 10" % (sT + 1, sT + 1),
              "s_add_u32 s%d, s%d, s%d" % (sT + 2, sT + 2, sT + 1)]
        if typ == 'H' and bb == 2:
            L += ["s_cmp_eq_u32 s%d, 3" % sWV, "s_cselect_b32 s%d, 0x%x, s%d" % (sT + 2, BIG, sT + 2)]
        for dd in range(2):
            d = 2 * bb + dd
            add = 4096 - 1024 * (d & 3) + (16384 if dd else 0)
            L += ["s_add_u32 s%d, s%d, %d" % (sT + 3, sT + 2, add), "v_add_u32 v%d, s%d, v%d" % (vXD + d, sT + 3, 36 + dd)]


def late_scalar_setup():
    L = []
    L += srd(sA, pWS, A2_BYTES)
    L += srd(sWO, pWO, 512 * 1024) + srd(sWD, pWD, 1792 * 1024) + srd(sO, pOUT, 2048 * 1024)
    L += srd(sD, pDBG, 256)
    L += srd(sF, pWS, 32768, add=F_OFF)
    L += ["s_lshl_b32 s%d, s%d, 2" % (sMT, sXCD), "s_lshr_b32 s%d, s%d, 3" % (sT, sIDX), "s_add_u32 s%d, s%d, s%d" % (sMT, sMT, sT),
          "s_and_b32 s%d, s%d, 7" % (sNT, sIDX),
          "s_lshl_b32 s%d, s%d, 11" % (sM2, sWV),
          "s_lshl_b32 s%d, s%d, 17" % (sW2o, sWV),
          "s_mul_i32 s%d, s%d, %d" % (sW2h, sWV, 14 * 32768), "s_add_u32 s%d, s%d, %d" % (sW2e, sW2h, 14 * 32768),
          "s_mul_i32 s%d, s%d, %d" % (sT + 1, sMT, MT_STRIDE),
          "s_lshl_b32 s%d, s%d, 14" % (sAo, sWV), "s_add_u32 s%d, s%d, s%d" % (sAo, sAo, sT + 1),
          "s_mul_i32 s%d, s%d, %d" % (sAh, sWV, 14 * 4096), "s_add_u32 s%d, s%d, s%d" % (sAh, sAh, sT + 1),
          "s_add_u32 s%d, s%d, %d" % (sAh, sAh, 16 * 4096), "s_add_u32 s%d, s%d, %d" % (sAe, sAh, 14 * 4096)]
    if OPT['rot2']:
        L += ["s_and_b32 s%d, s%d, 1" % (sT + 2, sNT), "s_mul_i32 s%d, s%d, %d" % (sT + 2, sT + 2, OPT['rnt']),
              "s_mul_i32 s%d, s%d, %d" % (sT + 3, sT, OPT['rmt']), "s_add_u32 s%d, s%d, s%d" % (sT + 2, sT + 2, sT + 3),
              "s_and_b32 s%d, s%d, %d" % (sT + 3, sXCD, 3 if OPT['rmt'] else 0), "s_add_u32 s%d, s%d, s%d" % (sT + 2, sT + 2, sT + 3),
              "s_cmp_ge_u32 s%d, 14" % (sT + 2), "s_cselect_b32 s%d, 14, 0" % (sT + 3), "s_sub_u32 s%d, s%d, s%d" % (sT + 2, sT + 2, sT + 3)]
    else:
        L += ["s_mov_b32 s%d, 0" % (sT + 2)]
    L += ["s_lshl_b32 s%d, s%d, 15" % (sT + 3, sT + 2), "s_add_u32 s%d, s%d, s%d" % (sS2, sW2h, sT + 3),
          "s_lshl_b32 s%d, s%d, 12" % (sT + 3, sT + 2), "s_add_u32 s%d, s%d, s%d" % (sSA, sAh, sT + 3)]
    return L


def store_offsets(nb, base_sreg):
    L = []
    for b in range(nb):
        L += [["s_add_u32 s%d, s%d, %d" % (sU, base_sreg, b), "s_lshr_b32 s%d, s%d, 2" % (sU + 1, sU)],
              ["s_mul_i32 s%d, s%d, %d" % (sU + 1, sU + 1, MT_STRIDE), "s_and_b32 s%d, s%d, 3" % (sU, sU)],
              ["s_lshl_b32 s%d, s%d, 10" % (sU, sU), "s_add_u32 s%d, s%d, s%d" % (sST + b, sU, sU + 1)]]
    return L


vFO, vSH, vTG = 13, 14, 16


def flag_setup(vm):
    t = 18
    L = [["s_mul_i32 s%d, s%d, 43" % (sU, sMT), "s_lshr_b32 s%d, s%d, 7" % (sU, sU)],
         ["s_lshl_b32 s%d, s%d, 3" % (sU, sU), "s_mul_i32 s%d, s%d, %d" % (sU + 1, sMT, 4 * 187)],
         ["s_add_u32 s%d, s%d, %d" % (sU + 2, sU + 1, 3 * 187), "s_lshr_b32 s%d, s%d, 11" % (sU + 1, sU + 1)],
         ["s_lshr_b32 s%d, s%d, 11" % (sU + 2, sU + 2), "s_mul_i32 s%d, s%d, 14" % (sU + 1, sU + 1)],
         ["s_mul_i32 s%d, s%d, 14" % (sU + 2, sU + 2), "s_add_u32 s%d, s%d, 88" % (sU + 1, sU + 1)],
         "s_add_u32 s%d, s%d, 88" % (sU + 2, sU + 2),
         "v_and_b32 v%d, 15, v%d" % (t, vLANE), "v_min_u32 v%d, 13, v%d" % (t, t),
         "v_and_b32 v%d, 7, v%d" % (t + 1, vLANE), "v_add_u32 v%d, s%d, v%d" % (t + 1, sU, t + 1),
         "v_add_u32 v%d, s%d, v%d" % (t + 2, sU + 1, t), "v_add_u32 v%d, s%d, v%d" % (t + 3, sU + 2, t),
         "v_cmp_gt_u32 vcc, 16, v%d" % vLANE, "v_mov_b32 v%d, s%d" % (t, sPID),
         "v_cndmask_b32 v%d, v%d, v%d, vcc" % (t + 1, t + 2, t + 1),
         "v_cmp_gt_u32 vcc, 48, v%d" % vLANE,
         "v_cndmask_b32 v%d, v%d, v%d, vcc" % (t, t, t + 3),
         "v_cmp_gt_u32 vcc, 32, v%d" % vLANE,
         "v_cndmask_b32 v%d, v%d, v%d, vcc" % (t, t, t + 1),
         "v_lshlrev_b32 v%d, 7, v%d" % (vFO, t), "v_and_b32 v%d, 31, v%d" % (vSH, t),
         "v_lshrrev_b32 v%d, 5, v%d" % (t, t), "v_lshlrev_b32 v%d, 3, v%d" % (vFO + 2, t)]
    return L


def tag_load():
    return "buffer_load_dwordx2 %s, v%d, %s, 0 offen sc1" % (v2(vTG), vFO + 2, s4(sD))


class W2:
    AW2 = 128

    def __init__(self, sched, vm, vW2, trregs, region_free):
        self.sched, self.vm, self.vW2 = sched, vm, vW2
        self.pat = trregs[:4]
        self.lb = LdsBases(trregs[4:], chunk=0x10000)
        order = sorted(range(20), key=lambda r: (region_free[r], r))
        self.region = {}
        self.items = {}
        for n in range(36):
            if n < 20:
                self.region[n] = order[n]
                av = region_free[order[n]]
            else:
                self.region[n] = self.region[n - 20]
                av = None
            kb, h = n >> 1, n & 1
            isO = kb >= 14
            sr = sWO if isO else sWD
            its = []
            for i in range(2):
                pre = []
                if i == 0 and n > 0:
                    if n == 28:
                        pre = ["s_mov_b32 s%d, s%d" % (sS2, sW2o)]
                    else:
                        pre = ["s_add_u32 s%d, s%d, 16384" % (sS2, sS2)]
                        if h == 0 and not isO and OPT['rot2']:
                            pre += ["s_cmp_eq_u32 s%d, s%d" % (sS2, sW2e), "s_cselect_b32 s%d, s%d, s%d" % (sS2, sW2h, sS2)]
                d = Dma('w2', ('w2', n), (sM2, 8192 * self.region[n]), pre,
                        "buffer_load_dwordx4 v%d, %s, s%d offen offset:%d lds" % (vW2[i], s4(sr), sS2, 1024 * i), av, 1000 + n)
                its.append(d)
                sched.add(d)
            self.items[n] = its
        self.nread = 0
        for t in range(4):
            for ch in (1, 2):
                self.lb.addr(self.pat[t], ch * 0x10000)

    def setup_dma(self):
        a, b = self.vW2
        return ["v_lshrrev_b32 v%d, 4, v%d" % (a, vLANE), "v_lshlrev_b32 v%d, 1, v%d" % (a, a),
                "v_and_b32 v%d, 7, v%d" % (b, vLANE), "v_xor_b32 v%d, v%d, v%d" % (a, a, b), "v_lshlrev_b32 v%d, 4, v%d" % (a, a),
                "v_lshrrev_b32 v%d, 3, v%d" % (b, vLANE), "v_lshl_add_u32 v%d, v%d, 10, v%d" % (a, b, a),
                ["s_lshl_b32 s%d, s%d, 7" % (sU, sNT), "v_add_u32 v%d, s%d, v%d" % (a, sU, a)],
                "v_add_u32 v%d, 7168, v%d" % (b, a)]

    def setup_rd(self):
        p = self.pat
        L = ["v_lshrrev_b32 v%d, 2, v%d" % (p[1], vLANE), "v_lshrrev_b32 v%d, 3, v%d" % (p[2], vLANE),
             "v_and_b32 v%d, 3, v%d" % (p[2], p[2]), "v_lshlrev_b32 v%d, 5, v%d" % (p[2], p[2]),
             "v_lshl_add_u32 v%d, v%d, 7, v%d" % (p[1], p[1], p[2]), "v_and_b32 v%d, 3, v%d" % (p[2], vLANE),
             "v_lshl_add_u32 v%d, v%d, 3, v%d" % (p[1], p[2], p[1]), "v_add_u32 v%d, s%d, v%d" % (p[0], sM2, p[1])]
        L += ["v_xor_b32 v%d, %d, v%d" % (p[t], 32 * t, p[0]) for t in range(1, 4)]
        return L + self.lb.setup

    def reads(self, n, dstf):
        out = []
        for t in range(4):
            r, o = self.lb.addr(self.pat[t], 8192 * self.region[n])
            out.append("ds_read_b64_tr_b16 %s, v%d offset:%d" % (dstf(t), r, o))
        return out

    def take_reads(self, cnt, issued_upto, slot):
        out = []
        last = None
        while cnt > 0 and self.nread < 16 and self.nread < issued_upto:
            n = self.nread
            out += self.reads(n, lambda t: a2(self.AW2 + 16 * (n >> 1) + 4 * t + 2 * (n & 1)))
            for d in self.items[n + 20]:
                d.avail = slot + 1
            last = n
            self.nread += 1
            cnt -= 1
        return out, last


class Phase1:
    def __init__(self, typ, PF, xslot, wbase, wslot, nws, wpitch, nwd, gw_range, vW2, trregs):
        self.typ, self.PF = typ, PF
        self.xslot, self.wbase, self.wslot, self.nws = xslot, wbase, wslot, nws
        self.vm = VmTracker()
        self.sched = Sched(self.vm)
        nxd = 7 if typ == 'Q' else 6
        for s in range(8):
            slot = (s % 3) * xslot
            for d in range(nxd):
                m0 = (sMX, slot) if d < 4 else (sMX, slot + 4096) if d < 6 else (sM7, slot + 24576)
                imm = 1024 * (d & 3) if d < 6 else 0
                pre = stage_pre(s, sKX, 128) if d == 0 else []
                self.sched.add(Dma('x', ('x', s), m0, pre,
                                   "buffer_load_dwordx4 v%d, %s, s%d offen offset:%d lds" % (vXD + d, s4(sX), sKX, imm),
                                   -1 if s < 3 else 2 * (s - 3) + 1, 2 * s - 0.5))
        for t in range(16):
            slot = wbase + (t % nws) * wslot
            for e in range(nwd):
                pre = []
                if e == 0:
                    pre = stage_pre(t >> 1, sKW, 64 * wpitch) if t % 2 == 0 else ["s_add_u32 s%d, s%d, %d" % (sKW, sKW, 32 * wpitch)]
                self.sched.add(Dma('w', ('w', t), (sMW, slot), pre,
                                   "buffer_load_dwordx4 v%d, %s, s%d offen offset:%d lds" % (vWD + e, s4(sW), sKW, 1024 * e),
                                   -1 if t < nws else t - nws, t))
        busy = []
        for s in (5, 6, 7):
            busy.append(((s % 3) * xslot, (s % 3 + 1) * xslot, 2 * s + 1))
        for t in range(16 - nws, 16):
            busy.append((wbase + (t % nws) * wslot, wbase + (t % nws + 1) * wslot, t))
        if gw_range:
            busy.append((gw_range[0], gw_range[1], 15))
        first = 16 - nws
        rf = []
        for r in range(20):
            f = first
            for lo, hi, t in busy:
                if lo < 8192 * (r + 1) and hi > 8192 * r:
                    f = max(f, t)
            rf.append(f)
        self.w2 = W2(self.sched, self.vm, vW2, trregs, rf)
        self.w2_issued_at = {}

    def n_w2_issued(self):
        return (72 - len(self.sched.streams['w2'])) // 2

    def prologue(self):
        g, _ = self.sched.take(-1, OPT['npro'])
        return sum(g, [])

    def main(self, xreads, wreads, mfmas, extra, extra_need={}):
        PF, vm = self.PF, self.vm

        def need(t):
            return lambda tag: (tag[0] == 'x' and tag[1] <= t // 2) or (tag[0] == 'w' and tag[1] <= t)

        def reads(t):
            return wreads(t, t & 1, self.wbase + (t % self.nws) * self.wslot) + xreads(t, t & 1, ((t // 2) % 3) * self.xslot)

        def check_issued(t):
            for q in ('x', 'w'):
                for d in self.sched.streams[q]:
                    assert not need(t)(d.tag), ("not issued in time", t, d.tag)
        body = PF.stamp()
        check_issued(0)
        body += ["s_waitcnt vmcnt(%d)" % vm.wait_for(need(0)), "s_barrier"] + reads(0) + ["s_waitcnt lgkmcnt(0)"]
        for t in range(16):
            body += PF.stamp()
            rd = []
            w2r, last = [], None
            if OPT['rdmain'] and t - 2 in self.w2_issued_at:
                w2r, last = self.w2.take_reads(4, self.w2_issued_at[t - 2], t)
            nd = need(min(t + 1, 15))
            check_issued(min(t + 1, 15))
            n = vm.wait_for(lambda tag: nd(tag) or tag == extra_need.get(t) or (last is not None and tag[0] == 'w2' and tag[1] <= last))
            body += ["s_waitcnt vmcnt(%d)" % n, "s_barrier"]
            if t < 15:
                rd = reads(t + 1)
            rd += w2r
            dm, _ = self.sched.take(t, OPT['maxd'] if t < 11 else OPT['maxd2'])
            self.w2_issued_at[t] = self.n_w2_issued()
            mf = mfmas(t, t & 1)
            nuse = len(mf) - 4
            pos = {}
            for i, r in enumerate(rd):
                pos.setdefault(i * nuse // max(len(rd), 1), []).append(r)
            for i, g in enumerate(dm):
                pos.setdefault((i * len(mf)) // max(len(dm), 1), []).extend(g)
            ef = extra.get(t, [])
            for i, g in enumerate(ef):
                pos.setdefault((i * len(mf)) // len(ef), []).extend([g] if isinstance(g, str) else g)
            for i, m in enumerate(mf):
                body.append(m)
                body += pos.get(i, [])
            if rd:
                body += ["s_waitcnt lgkmcnt(0)"]
        body += PF.stamp()
        return body

    def epi_slot(self, k, ndma=None, nrd=2):
        slot = 16 + k
        L = []
        if ndma is None:
            ndma = OPT['edma']
        pend = getattr(self, 'epi_reads_pending', False)
        if pend:
            L += ["s_waitcnt lgkmcnt(0)"]
            self.epi_reads_pending = False
        upto = self.w2_issued_at.get(slot - 3, 0) if k >= 1 else 0
        if k >= 1:
            upto = self.w2_issued_at[max(s for s in self.w2_issued_at if s <= max(slot - 3, 14))]
        r, last = self.w2.take_reads(nrd, upto, slot)
        if r:
            L += ["s_waitcnt vmcnt(%d)" % self.vm.wait_for(lambda tag: tag[0] == 'w2' and tag[1] <= last)] + r
            self.epi_reads_pending = True
        dm, _ = self.sched.take(slot, ndma)
        L += sum(dm, [])
        self.w2_issued_at[slot] = self.n_w2_issued()
        return L

    def flush_w2(self, slot):
        L = []
        while self.w2.nread < 16 or self.sched.pending():
            L += self.epi_slot(slot - 16, ndma=64, nrd=16)
            slot += 1
        if getattr(self, 'epi_reads_pending', False):
            L += ["s_waitcnt lgkmcnt(0)"]
        return L


def phase2(P1, PF, lab):
    vm, w2 = P1.vm, P1.w2
    L = []
    vAD, vG, vXW, vXR, vOUT, vP, vT = 32, 36, 44, 45, 48, 49, 52
    ACO, ACH, VWF = 64, 128, 192
    L += ["v_lshlrev_b32 v%d, 4, v%d" % (vT, vLANE), "v_and_b32 v%d, 15, v%d" % (vT + 1, vLANE), "v_lshrrev_b32 v%d, 4, v%d" % (vT + 2, vLANE)]
    for q in range(4):
        L += ["s_add_u32 s%d, s%d, %d" % (sU, sWV, q), "s_and_b32 s%d, s%d, 3" % (sU, sU), "s_lshl_b32 s%d, s%d, 10" % (sU + 1, sU),
              "v_add_u32 v%d, s%d, v%d" % (vAD + q, sU + 1, vT),
              "s_lshl_b32 s%d, s%d, 2" % (sU + 1, sMT), "s_add_u32 s%d, s%d, s%d" % (sU + 1, sU + 1, sU), "s_lshl_b32 s%d, s%d, 6" % (sU + 1, sU + 1),
              "v_lshl_add_u32 v%d, v%d, 2, s%d" % (vG + q, vT + 1, sU + 1)]
        if q:
            L += ["s_sub_u32 s%d, s%d, %d" % (sU, sWV, q), "s_and_b32 s%d, s%d, 3" % (sU, sU), "s_lshl_b32 s%d, s%d, 11" % (sU, sU),
                  "v_add_u32 v%d, s%d, v%d" % (vXR + q - 1, sU, vT)]
    L += ["v_add_u32 v%d, s%d, v%d" % (vXW, sM2, vT),
          "s_lshl_b32 s%d, s%d, 6" % (sU, sMT), "s_lshr_b32 s%d, s%d, 1" % (sU + 1, sWV), "s_lshl_b32 s%d, s%d, 5" % (sU + 1, sU + 1),
          "s_add_u32 s%d, s%d, s%d" % (sU, sU, sU + 1), "s_and_b32 s%d, s%d, 1" % (sU + 1, sWV), "s_add_u32 s%d, s%d, s%d" % (sU, sU, sU + 1),
          "s_lshl_b32 s%d, s%d, 10" % (sU, sU), "s_lshl_b32 s%d, s%d, 7" % (sU + 1, sNT), "s_add_u32 s%d, s%d, s%d" % (sU, sU, sU + 1),
          "v_lshlrev_b32 v%d, 11, v%d" % (vT + 3, vT + 1), "v_lshl_add_u32 v%d, v%d, 3, v%d" % (vT + 3, vT + 2, vT + 3),
          "v_add_u32 v%d, s%d, v%d" % (vOUT, sU, vT + 3)]
    L += srd(sG, pWS, 8192, add=G_OFF)
    L += ["s_waitcnt vmcnt(%d)" % vm.wait_for(lambda tag: tag[0] == 'st')]
    L += PF.stamp()
    slp = ["s_sleep %d" % OPT['sleep']] if OPT['sleep'] else []
    L += ["s_barrier", "s_cmp_lg_u32 s%d, 0" % sWV, "s_cbranch_scc1 %s_pub" % lab,
          "s_mov_b32 s%d, 0" % sU,
          "%s_tag:" % lab,
          "v_cmp_eq_u32 vcc, 0, v%d" % (vTG + 1),
          "s_cmp_eq_u64 vcc, 0", "s_cbranch_scc1 %s_tagok" % lab,
          tag_load(), "s_add_u32 s%d, s%d, 1" % (sU, sU), "s_waitcnt vmcnt(0)",
          "s_cmp_lt_u32 s%d, 0x8000" % sU, "s_cbranch_scc1 %s_tag" % lab,
          "%s_tagok:" % lab,
          "v_lshrrev_b32 v%d, v%d, v%d" % (vTG, vSH, vTG), "v_and_b32 v%d, 1, v%d" % (vTG, vTG),
          "s_mov_b32 exec_lo, 0", "s_brev_b32 exec_hi, 1",
          "buffer_store_dword v%d, v%d, %s, 0 offen sc1" % (vTG, vFO, s4(sF)),
          "s_mov_b64 exec, -1",
          "%s_pub:" % lab]
    L += P1.flush_w2(60)
    L += ["s_cmp_lg_u32 s%d, 0" % sWV, "s_cbranch_scc1 %s_go" % lab,
          "s_mov_b32 s%d, 0" % sU,
          "%s_poll:" % lab,
          "buffer_load_dword v%d, v%d, %s, 0 offen sc1" % (vP, vFO, s4(sF)),
          "s_add_u32 s%d, s%d, 1" % (sU, sU),
          "s_waitcnt vmcnt(0)",
          "v_and_b32 v%d, 1, v%d" % (vP, vP),
          "v_cmp_ne_u32 vcc, v%d, v%d" % (vTG, vP),
          "s_cmp_eq_u64 vcc, 0", "s_cbranch_scc1 %s_go" % lab] + slp
    L += ["s_cmp_lt_u32 s%d, 0x8000" % sU, "s_cbranch_scc1 %s_poll" % lab,
          "%s_go:" % lab, "s_barrier"]
    L += PF.stamp()
    LA = OPT['la']
    NAB = 7

    def issue(kb):
        out = []
        for q in range(4):
            g = ["buffer_load_dwordx4 %s, v%d, %s, s%d offen sc1" % (a4(16 * (kb % NAB) + 4 * q), vAD + q, s4(sA), sSA)]
            vm.issue(('a', kb))
            if q == 3 and kb < 17:
                if kb == 13:
                    g += ["s_mov_b32 s%d, s%d" % (sSA, sAo)]
                else:
                    g += ["s_add_u32 s%d, s%d, 4096" % (sSA, sSA)]
                    if kb < 13 and OPT['rot2']:
                        g += ["s_cmp_eq_u32 s%d, s%d" % (sSA, sAe), "s_cselect_b32 s%d, s%d, s%d" % (sSA, sAh, sSA)]
            out.append(g)
        return out
    nxt = [0]
    for kb in range(OPT['la0']):
        L += sum(issue(kb), [])
        nxt[0] += 1

    def wfrag(kb, t):
        return a4(W2.AW2 + 16 * kb + 4 * t) if kb < 8 else v4(VWF + 16 * (kb & 1) + 4 * t)
    for kb in range(18):
        n = vm.wait_for(lambda g: g[0] == 'a' and g[1] <= kb)
        L += ["s_waitcnt vmcnt(%d)%s" % (n, " lgkmcnt(0)" if kb >= 8 else "")]
        L += PF.stamp()
        rd = []
        if 8 <= kb + 1 < 18:
            for h in range(2):
                rd += w2.reads(2 * (kb + 1) + h, lambda t: v2(VWF + 16 * ((kb + 1) & 1) + 4 * t + 2 * h))
        dm = []
        for _ in range(2):
            if nxt[0] < 18 and nxt[0] <= kb + LA:
                dm += issue(nxt[0])
                nxt[0] += 1
        if kb == 4:
            for q in range(4):
                dm += [["buffer_load_dword v%d, v%d, %s, 0 offen sc1" % (vG + q, vG + q, s4(sG))]]
                vm.issue(('g', 0))
        ex = []
        if kb == 13:
            ex = ["v_sub_f32 v%d, 1.0, v%d" % (vG + 4 + q, vG + q) for q in range(4)]
        if kb in (15, 16):
            for q in ((0, 1) if kb == 15 else (2, 3)):
                ex += ["v_mul_f32 v%d, v%d, v%d" % (ACH + 16 * q + i, ACH + 16 * q + i, vG + 4 + q) for i in range(16)]
        mix = dm + rd + ex
        acc = ACH if kb < 14 else ACO
        first = kb in (0, 14)
        mf = []
        for q in (1, 2, 3, 0):
            for t in range(4):
                d = v4(acc + 16 * q + 4 * t)
                mf.append("v_mfma_f32_16x16x32_bf16 %s, %s, %s, %s" % (d, wfrag(kb, t), a4(16 * (kb % NAB) + 4 * q), "0" if first else d))
        L += interleave(mf, mix)
    L += PF.stamp()
    for q in (1, 2, 3, 0):
        for i in range(0, 16, 2):
            L += ["v_pk_fma_f32 %s, %s, %s, %s op_sel_hi:[1,0,1]%s" % (v2(ACH + 16 * q + i), v2(ACO + 16 * q + i), v2((vG + q) & ~1), v2(ACH + 16 * q + i),
                                                                    "")] if False else []
        L += ["v_fma_f32 v%d, v%d, v%d, v%d" % (ACH + 16 * q + i, ACO + 16 * q + i, vG + q, ACH + 16 * q + i) for i in range(16)]
        if q:
            for t in range(4):
                L += ["ds_write_b128 v%d, %s offset:%d" % (vXW, v4(ACH + 16 * q + 4 * t), 8192 * ((q - 1) * 2 + (t >> 1)) + 1024 * (t & 1))]
    L += ["s_waitcnt lgkmcnt(0)", "s_barrier"]
    for q in range(1, 4):
        for t in range(4):
            L += ["ds_read_b128 %s, v%d offset:%d" % (v4(ACO + 16 * q + 4 * t), vXR + q - 1, 8192 * ((q - 1) * 2 + (t >> 1)) + 1024 * (t & 1))]
    for q in range(1, 4):
        L += ["s_waitcnt lgkmcnt(%d)" % (12 - 4 * q)]
        L += ["v_pk_add_f32 %s, %s, %s" % (v2(ACH + i), v2(ACH + i), v2(ACO + 16 * q + i)) for i in range(0, 16, 2)]
    for t in range(4):
        L += ["v_cvt_pk_bf16_f32 v%d, v%d, v%d" % (ACH + 4 * t, ACH + 4 * t, ACH + 4 * t + 1),
              "v_cvt_pk_bf16_f32 v%d, v%d, v%d" % (ACH + 4 * t + 1, ACH + 4 * t + 2, ACH + 4 * t + 3),
              "buffer_store_dwordx2 %s, v%d, %s, 0 offen offset:%d" % (v2(ACH + 4 * t), vOUT, s4(sO), 32 * t)]
    L += PF.stamp() + PF.dump() + ["s_endpgm"]
    return L


def gen_H():
    PF = Prof(255)
    L = PF.stamp()
    L += ["s_mul_i32 s%d, s%d, 21" % (sT, sXCD), "s_add_u32 s%d, s%d, s%d" % (sT, sT, sIDX), "s_sub_u32 s%d, s%d, 11" % (sT, sT),
          "s_mul_i32 s%d, s%d, 171" % (sCG, sT), "s_lshr_b32 s%d, s%d, 11" % (sCG, sCG),
          "s_mul_i32 s%d, s%d, 12" % (sT + 1, sCG), "s_sub_u32 s%d, s%d, s%d" % (sT, sT, sT + 1),
          "s_mul_i32 s%d, s%d, 11" % (sRB0, sT),
          "s_mul_i32 s%d, s%d, 14" % (sPID, sT), "s_add_u32 s%d, s%d, s%d" % (sPID, sPID, sCG), "s_add_u32 s%d, s%d, 88" % (sPID, sPID),
          "s_add_u32 s%d, s%d, s%d" % (sROT, sT, sCG)]
    x_setup(L, 'H')
    L += ["v_and_b32 v38, 1, v33", "v_lshlrev_b32 v38, 1, v38", "v_xor_b32 v38, v34, v38", "v_lshlrev_b32 v38, 4, v38",
          "s_movk_i32 s%d, 3584" % sT, "v_mad_u32_u24 v38, v32, s%d, v38" % sT, "v_xor_b32 v39, 64, v38",
          "s_and_b32 s%d, s%d, 1" % (sT, sWV), "s_lshl_b32 s%d, s%d, 7" % (sT, sT),
          "s_lshl_b32 s%d, s%d, 8" % (sT + 1, sCG), "s_add_u32 s%d, s%d, s%d" % (sT, sT, sT + 1)]
    for e in range(4):
        L += ["s_add_u32 s%d, s%d, %d" % (sT + 1, sT, e * (8 * 3584 - 1024)), "v_add_u32 v%d, s%d, v%d" % (vWD + e, sT + 1, 38 + (e & 1))]
    L += ["s_mul_i32 s%d, s%d, 6144" % (sMX, sWV), "s_lshl_b32 s%d, s%d, 12" % (sMW, sWV)]
    L += ["s_waitcnt lgkmcnt(0)"]
    L += srd(sX, pX, 2048 * 1024, bias=4096)
    L += ["s_cmp_lt_u32 s%d, 2" % sWV, "s_cselect_b32 s%d, s%d, s%d" % (sW, pWG, pWU), "s_cselect_b32 s%d, s%d, s%d" % (sW + 1, pWG + 1, pWU + 1),
          "s_mov_b32 s%d, %d" % (sW + 2, 512 * 3584), "s_mov_b32 s%d, 0x20000" % (sW + 3)]
    XS, WB, WS = 24576, 73728, 16384
    P1 = Phase1('H', PF, XS, WB, WS, 5, 3584, 4, None, (61, 62), list(range(240, 252)))
    lb = LdsBases(range(vRD + 4, 32))
    vx0, vx1, vw0, vw1 = vRD, vRD + 1, vRD + 2, vRD + 3
    S2 = ["v_and_b32 v40, 15, v%d" % vLANE, "v_lshrrev_b32 v41, 1, v40", "v_xor_b32 v41, v41, v33",
          "v_lshlrev_b32 v41, 4, v41", "v_lshl_add_u32 v%d, v40, 7, v41" % vx0, "v_xor_b32 v%d, 64, v%d" % (vx1, vx0)]
    S2 += ["v_lshrrev_b32 v42, 2, v40", "v_lshl_add_u32 v43, v33, 3, v42",
           "v_lshrrev_b32 v44, 1, v42", "v_and_b32 v45, 1, v33", "v_lshl_add_u32 v44, v45, 1, v44",
           "s_and_b32 s%d, s%d, 1" % (sT, sWV), "s_lshl_b32 s%d, s%d, 1" % (sT, sT), "v_xor_b32 v44, s%d, v44" % sT,
           "v_lshlrev_b32 v44, 5, v44", "v_lshl_add_u32 v43, v43, 7, v44",
           "v_and_b32 v45, 3, v%d" % vLANE, "v_lshl_add_u32 v43, v45, 3, v43",
           "s_lshr_b32 s%d, s%d, 1" % (sT, sWV), "s_lshl_b32 s%d, s%d, 12" % (sT, sT),
           "v_add_u32 v%d, s%d, v43" % (vw0, sT), "v_xor_b32 v%d, 32, v%d" % (vw1, vw0)]
    AW, AX = 0, 32

    def xreads(t, buf, xo):
        out = []
        for b in range(11):
            r, o = lb.addr(vx1 if (t & 1) else vx0, xo + 2048 * b)
            out.append("ds_read_b128 %s, v%d offset:%d" % (a4(AX + 44 * buf + 4 * b), r, o))
        return out

    def wreads(t, buf, wo):
        out = []
        for q in range(4):
            for h in range(2):
                r, o = lb.addr(vw1 if (q & 1) else vw0, wo + (8192 if q >= 2 else 0) + 512 * h)
                out.append("ds_read_b64_tr_b16 %s, v%d offset:%d" % (a2(AW + 16 * buf + 4 * q + 2 * h), r, o))
        return out

    def mfmas(t, buf):
        out = []
        for b in range(11):
            for q in range(4):
                d = v4(ACC + 16 * b + 4 * q)
                out.append("v_mfma_f32_16x16x32_bf16 %s, %s, %s, %s" % (d, a4(AW + 16 * buf + 4 * q), a4(AX + 44 * buf + 4 * b), d if t else "0"))
        return out
    vST = 60
    ES = ["s_mov_b32 s%d, 0x%x" % (sC0, NLOG2E), "s_mov_b32 s%d, 0x%x" % (sC0 + 1, NLOG2E),
          "s_mov_b32 s%d, 1.0" % (sC0 + 2), "s_mov_b32 s%d, 1.0" % (sC0 + 3),
          ["s_lshl_b32 s%d, s%d, 2" % (sU, sCG), "s_add_u32 s%d, s%d, s%d" % (sU, sU, sWV)],
          ["s_add_u32 s%d, s%d, 16" % (sU, sU), "s_lshl_b32 s%d, s%d, 12" % (sU, sU)],
          "v_lshlrev_b32 v%d, 4, v%d" % (vST, vLANE), "v_add_u32 v%d, s%d, v%d" % (vST, sU, vST)]
    so = store_offsets(11, sRB0)
    pro = P1.prologue()
    body = P1.main(xreads, wreads, mfmas, {5: ES + P1.w2.setup_dma(), 6: P1.w2.setup_rd(), 7: so[:17], 8: so[17:], 15: flag_setup(P1.vm)})
    L += pro + S2 + lb.setup + late_scalar_setup() + body
    L += [tag_load()]
    P1.vm.issue(('tag', 0))
    for b in range(11):
        base = ACC + 16 * b
        G = [base + i for i in range(8)]
        U = [base + 8 + i for i in range(8)]
        L += ["v_pk_mul_f32 %s, %s, s[%d:%d]" % (v2(G[i]), v2(G[i]), sC0, sC0 + 1) for i in range(0, 8, 2)]
        L += ["v_exp_f32 v%d, v%d" % (g, g) for g in G]
        L += P1.epi_slot(b)
        L += ["v_pk_add_f32 %s, %s, s[%d:%d]" % (v2(G[i]), v2(G[i]), sC0 + 2, sC0 + 3) for i in range(0, 8, 2)]
        L += ["v_rcp_f32 v%d, v%d" % (g, g) for g in G]
        L += ["v_pk_mul_f32 %s, %s, %s" % (v2(U[i]), v2(U[i]), v2(G[i])) for i in range(0, 8, 2)]
        L += ["v_cvt_pk_bf16_f32 v%d, v%d, v%d" % (G[i], U[2 * i], U[2 * i + 1]) for i in range(4)]
        L += ["buffer_store_dwordx4 %s, v%d, %s, s%d offen sc1" % (v4(base), vST, s4(sA), sST + b)]
        P1.vm.issue(('st', b))
    L += PF.stamp()
    L += P1.epi_slot(20, ndma=OPT['postdma'], nrd=16)
    L += phase2(P1, PF, "H")
    return L


def gen_Q():
    PF = Prof(10 if False else 31)
    L = PF.stamp()
    L += ["s_mov_b32 s%d, s%d" % (sCG, sXCD), "s_mul_i32 s%d, s%d, 12" % (sRB0, sIDX),
          "s_lshl_b32 s%d, s%d, 3" % (sPID, sIDX), "s_add_u32 s%d, s%d, s%d" % (sPID, sPID, sXCD),
          "s_add_u32 s%d, s%d, s%d" % (sROT, sIDX, sXCD), "s_add_u32 s%d, s%d, 2" % (sROT, sROT)]
    x_setup(L, 'Q')
    L += ["s_lshl_b32 s%d, s%d, 4" % (sT, sRB0), "s_add_u32 s%d, s%d, s%d" % (sT, sT, sWV),
          "s_sub_u32 s%d, s%d, 16" % (sT, sT), "s_lshl_b32 s%d, s%d, 10" % (sT, sT), "s_add_u32 s%d, s%d, 4096" % (sT, sT),
          "s_cmp_eq_u32 s%d, 0" % sRB0, "s_cselect_b32 s%d, 0x%x, s%d" % (sT, BIG, sT),
          "s_cmp_ge_u32 s%d, 2" % sWV, "s_cselect_b32 s%d, 0x%x, s%d" % (sT, BIG, sT),
          "s_and_b32 s%d, s%d, 1" % (sT + 1, sWV), "s_lshl_b32 s%d, s%d, 6" % (sT + 1, sT + 1),
          "v_xor_b32 v38, s%d, v36" % (sT + 1), "v_add_u32 v%d, s%d, v38" % (vXD + 6, sT)]
    L += ["v_and_b32 v38, 1, v33", "v_lshlrev_b32 v38, 1, v38", "v_xor_b32 v38, v34, v38", "v_lshlrev_b32 v38, 4, v38",
          "s_movk_i32 s%d, 3072" % sT, "v_mad_u32_u24 v38, v32, s%d, v38" % sT,
          "s_mul_i32 s%d, s%d, 3" % (sT, sWV), "s_lshl_b32 s%d, s%d, 7" % (sT + 4, sCG)]
    for e in range(3):
        L += ["s_add_u32 s%d, s%d, %d" % (sT + 1, sT, e),
              "s_and_b32 s%d, s%d, 3" % (sT + 2, sT + 1), "s_mul_i32 s%d, s%d, %d" % (sT + 2, sT + 2, 8 * 3072),
              "s_lshr_b32 s%d, s%d, 2" % (sT + 3, sT + 1), "s_lshl_b32 s%d, s%d, 10" % (sT + 3, sT + 3),
              "s_add_u32 s%d, s%d, s%d" % (sT + 2, sT + 2, sT + 3), "s_add_u32 s%d, s%d, s%d" % (sT + 2, sT + 2, sT + 4),
              "s_sub_u32 s%d, s%d, %d" % (sT + 2, sT + 2, 1024 * e),
              "s_and_b32 s%d, s%d, 1" % (sT + 1, sT + 1), "s_lshl_b32 s%d, s%d, 6" % (sT + 1, sT + 1),
              "v_xor_b32 v39, s%d, v38" % (sT + 1), "v_add_u32 v%d, s%d, v39" % (vWD + e, sT + 2)]
    L += ["s_mul_i32 s%d, s%d, 6144" % (sMX, sWV), "s_mul_i32 s%d, s%d, 3072" % (sMW, sWV), "s_lshl_b32 s%d, s%d, 10" % (sM7, sWV)]
    L += ["v_lshlrev_b32 v39, 2, v32", "s_mov_b32 s%d, 0x%x" % (sT, OPT['masks'] & 0x77777777),
          "v_lshrrev_b32 v39, v39, s%d" % sT, "s_and_b32 s%d, s%d, 7" % (sT + 1, sROT), "v_and_b32 v39, s%d, v39" % (sT + 1),
          "v_xor_b32 v39, v39, v32", "v_lshl_add_u32 v39, v39, 3, v34", "v_lshlrev_b32 v39, 4, v39"]
    L += ["s_waitcnt lgkmcnt(0)"]
    L += srd(sX, pX, 2048 * 1024, bias=4096) + srd(sW, pQKV, 512 * 3072) + srd(sG, pGW, 1024)
    XS, WB, WS, NWS = 28672, 86016, 12288, 6
    GW = WB + NWS * WS
    L += ["s_mov_b32 m0, %d" % GW, "s_nop 0", "buffer_load_dwordx4 v39, %s, 0 offen lds" % s4(sG)]
    P1 = Phase1('Q', PF, XS, WB, WS, NWS, 3072, 3, (GW, GW + 1024), (12, 0), [2, 3, 4, 5, 6, 7, 8, 9, 10, 28, 29, 30])
    lb = LdsBases(range(vRD + 9, 28))
    lb2 = LdsBases(range(46, 60))
    vx0, vx1, vw0, vw1, vh0, vh1, vt0, vt1, vg = [vRD + i for i in range(9)]
    S2 = ["v_and_b32 v40, 15, v%d" % vLANE, "v_lshrrev_b32 v41, 1, v40", "v_xor_b32 v41, v41, v33",
          "v_lshlrev_b32 v41, 4, v41", "v_lshl_add_u32 v42, v40, 7, v41",
          "s_lshr_b32 s%d, s%d, 1" % (sT, sWV), "s_mul_i32 s%d, s%d, %d" % (sT + 1, sT, 6 * 2048),
          "v_add_u32 v%d, s%d, v42" % (vx0, sT + 1), "v_xor_b32 v%d, 64, v%d" % (vx1, vx0)]
    S2 += ["s_lshl_b32 s%d, s%d, 2" % (sT + 1, sCG), "s_add_u32 s%d, s%d, s%d" % (sT + 1, sT + 1, sWV),
           "s_min_u32 s%d, s%d, 11" % (sT + 1, sT + 1), "s_lshl_b32 s%d, s%d, 11" % (sT + 1, sT + 1),
           "v_add_u32 v%d, s%d, v42" % (vt0, sT + 1), "v_xor_b32 v%d, 64, v%d" % (vt1, vt0)]
    S2 += ["v_or_b32 v43, 8, v40", "v_lshrrev_b32 v44, 1, v43", "v_xor_b32 v44, v44, v33", "v_lshlrev_b32 v44, 4, v44",
           "v_lshl_add_u32 v44, v43, 7, v44",
           "v_lshrrev_b32 v45, 3, v40", "v_lshl_add_u32 v44, v45, 11, v44", "v_add_u32 v44, %d, v44" % (4 * 2048),
           "v_add_u32 v45, %d, v42" % (12 * 2048),
           "s_cmp_eq_u32 s%d, 0" % sT, "s_cselect_b64 vcc, -1, 0",
           "v_cndmask_b32 v%d, v44, v45, vcc" % vh0, "v_xor_b32 v%d, 64, v%d" % (vh1, vh0)]
    S2 += ["v_lshrrev_b32 v42, 2, v40", "v_lshl_add_u32 v43, v33, 3, v42",
           "v_lshrrev_b32 v44, 1, v42", "v_and_b32 v45, 1, v33", "v_lshl_add_u32 v44, v45, 1, v44",
           "s_and_b32 s%d, s%d, 1" % (sT, sWV), "s_lshl_b32 s%d, s%d, 1" % (sT, sT), "v_xor_b32 v44, s%d, v44" % sT,
           "v_lshlrev_b32 v44, 5, v44", "v_lshl_add_u32 v43, v43, 7, v44",
           "v_and_b32 v45, 3, v%d" % vLANE, "v_lshl_add_u32 v%d, v45, 3, v43" % vw0,
           "v_xor_b32 v%d, 32, v%d" % (vw1, vw0),
           "v_lshlrev_b32 v45, 4, v33", "v_add_u32 v%d, %d, v45" % (vg, GW)]
    AW, AX = 0, 48

    def Qa(hh, b): return ACC + 4 * (hh * 20 + b)
    def Ka(hh, b): return ACC + 4 * (hh * 20 + 6 + b)
    def Va(hh, b): return ACC + 4 * (hh * 20 + 13 + b)
    TA = ACC + 160

    def xreads(t, buf, xo):
        out = []
        for b in range(6):
            r, o = lb.addr(vx1 if (t & 1) else vx0, xo + 2048 * b)
            out.append("ds_read_b128 %s, v%d offset:%d" % (a4(AX + 36 * buf + 4 * b), r, o))
        r, o = lb.addr(vh1 if (t & 1) else vh0, xo)
        out.append("ds_read_b128 %s, v%d offset:%d" % (a4(AX + 36 * buf + 24), r, o))
        r, o = lb.addr(vt1 if (t & 1) else vt0, xo)
        out.append("ds_read_b128 %s, v%d offset:%d" % (a4(AX + 36 * buf + 28), r, o))
        out.append("ds_read_b128 %s, v%d offset:%d" % (a4(AX + 36 * buf + 32), vg, 64 * t))
        return out

    def wreads(t, buf, wo):
        out = []
        for seg in range(3):
            for hh in range(2):
                for h in range(2):
                    r, o = lb2.addr(vw1 if hh else vw0, wo + 4096 * seg + 512 * h)
                    out.append("ds_read_b64_tr_b16 %s, v%d offset:%d" % (a2(AW + 24 * buf + 4 * (seg * 2 + hh) + 2 * h), r, o))
        return out

    def mfmas(t, buf):
        out = []
        W = lambda seg, hh: a4(AW + 24 * buf + 4 * (seg * 2 + hh))
        for b in range(7):
            X = a4(AX + 36 * buf + 4 * b)
            for hh in range(2):
                if b < 6:
                    d = v4(Qa(hh, b)); out.append("v_mfma_f32_16x16x32_bf16 %s, %s, %s, %s" % (d, W(0, hh), X, d if t else "0"))
                d = v4(Ka(hh, b)); out.append("v_mfma_f32_16x16x32_bf16 %s, %s, %s, %s" % (d, W(1, hh), X, d if t else "0"))
                d = v4(Va(hh, b)); out.append("v_mfma_f32_16x16x32_bf16 %s, %s, %s, %s" % (d, X, W(2, hh), d if t else "0"))
        d = v4(TA)
        out.append("v_mfma_f32_16x16x32_bf16 %s, %s, %s, %s" % (d, a4(AX + 36 * buf + 32), a4(AX + 36 * buf + 28), d if t else "0"))
        return out
    MC, MP, MH0, MH1, AM, ONES, SPARE = 228, 232, 236, 240, 244, 248, 252
    vST, vGO = 250, 251
    ES = [srd(sG, pWS, 8192, add=G_OFF),
          "s_mov_b32 s%d, 0x%x" % (sC0, SCL), "s_mov_b32 s%d, 0x%x" % (sC0 + 1, NLOG2E),
          ["s_lshl_b32 s%d, s%d, 1" % (sU, sCG), "s_and_b32 s%d, s%d, 1" % (sU + 1, sWV)],
          ["s_add_u32 s%d, s%d, s%d" % (sU, sU, sU + 1), "s_lshl_b32 s%d, s%d, 12" % (sU, sU)],
          "v_lshlrev_b32 v%d, 4, v%d" % (vST, vLANE), "v_add_u32 v%d, s%d, v%d" % (vST, sU, vST),
          ["s_lshl_b32 s%d, s%d, 2" % (sU, sCG), "s_add_u32 s%d, s%d, s%d" % (sU, sU, sWV)],
          ["s_add_u32 s%d, s%d, s%d" % (sU + 1, sU, sRB0), "s_lshl_b32 s%d, s%d, 6" % (sU + 1, sU + 1)],
          ["s_cmp_lt_u32 s%d, 12" % sU, "s_cselect_b32 s%d, s%d, 0x%x" % (sU + 1, sU + 1, BIG)],
          "v_lshl_add_u32 v%d, v%d, 2, s%d" % (vGO, vLANE, sU + 1),
          "v_mov_b32 v%d, 0x%x" % (SPARE, BIG),
          "v_cmp_gt_u32 vcc, 16, v%d" % vLANE,
          "v_mov_b32 v%d, 0x3f803f80" % ONES, "v_mov_b32 v%d, 0x3f803f80" % (ONES + 1),
          "v_cndmask_b32 v%d, v%d, v%d, vcc" % (vGO, SPARE, vGO),
          ["s_lshr_b32 s%d, s%d, 1" % (sU + 2, sWV), "s_mul_i32 s%d, s%d, 6" % (sU + 2, sU + 2)],
          "s_add_u32 s%d, s%d, s%d" % (sU + 2, sU + 2, sRB0)]
    so = store_offsets(6, sU + 2)
    HV, HV2 = sU + 4, sU + 6
    ES2 = ["v_and_b32 v%d, 15, v%d" % (SPARE, vLANE), "v_lshrrev_b32 v%d, 4, v%d" % (SPARE + 1, vLANE),
           "v_lshlrev_b32 v%d, 2, v%d" % (SPARE + 1, SPARE + 1), "v_sub_u32 v%d, v%d, v%d" % (SPARE, SPARE, SPARE + 1),
           "v_mov_b32 v%d, 0xff800000" % (SPARE + 2),
           ["s_lshr_b32 s%d, s%d, 1" % (sU, sWV), "s_or_b32 s%d, s%d, s%d" % (sU, sU, sRB0)],
           ["s_cmp_lg_u32 s%d, 0" % sU, "s_cselect_b64 s[%d:%d], -1, 0" % (HV, HV + 1)],
           ["s_mov_b32 s%d, s%d" % (HV2, HV), "s_mov_b32 s%d, 0" % (HV2 + 1)],
           "v_mov_b32 v%d, 0" % AM, "v_mov_b32 v%d, 0" % (AM + 1)]
    ES3 = []
    for r in range(4):
        ES3 += ["v_subrev_u32 v%d, %d, v%d" % (SPARE + 3, r, SPARE), "v_cmp_gt_u32 vcc, 8, v%d" % (SPARE + 3),
                "v_mov_b32 v%d, 0x%x" % (SPARE + 1, 0xffff0000 if (r & 1) else 0xffff),
                "v_add_u32 v%d, %d, v%d" % (SPARE + 3, 16 - r, SPARE),
                "v_cndmask_b32 v%d, v%d, 0, vcc" % (MC + r, SPARE + 2),
                "v_cndmask_b32 v%d, 0, v%d, vcc" % (SPARE + 1, SPARE + 1),
                "v_cmp_gt_u32 vcc, 8, v%d" % (SPARE + 3),
                "v_or_b32 v%d, v%d, v%d" % (AM + (r >> 1), AM + (r >> 1), SPARE + 1),
                "v_add_u32 v%d, %d, v%d" % (SPARE + 3, 8 - r, SPARE),
                "v_cndmask_b32 v%d, v%d, 0, vcc" % (MP + r, SPARE + 2),
                "s_and_b64 vcc, vcc, s[%d:%d]" % (HV, HV + 1),
                "v_cndmask_b32 v%d, v%d, 0, vcc" % (MH1 + r, SPARE + 2),
                "v_cmp_gt_u32 vcc, 8, v%d" % (SPARE + 3),
                "s_and_b64 vcc, vcc, s[%d:%d]" % (HV2, HV2 + 1),
                "v_cndmask_b32 v%d, v%d, 0, vcc" % (MH0 + r, SPARE + 2)]
    ES3 += ["v_not_b32 v%d, v%d" % (AM + 2, AM), "v_not_b32 v%d, v%d" % (AM + 3, AM + 1)]
    TL = ["s_lshl_b32 s%d, s%d, 12" % (sT, sXCD), "s_lshl_b32 s%d, s%d, 3" % (sT + 1, sXCD),
          "s_lshl_b32 s%d, s%d, 4" % (sT + 2, sWV), "s_add_u32 s%d, s%d, s%d" % (sT + 2, sT + 2, sIDX),
          "s_cmp_eq_u32 s%d, 10" % (sT + 2), "s_cselect_b32 s%d, s%d, 0x%x" % (sT, sT, BIG), "s_cselect_b32 s%d, s%d, 0x%x" % (sT + 1, sT + 1, BIG),
          "v_and_b32 v60, 31, v%d" % vLANE, "v_lshl_add_u32 v60, v60, 7, s%d" % sT,
          "v_lshl_add_u32 v62, v%d, 24, s%d" % (vLANE, sT + 1),
          "buffer_load_dword v60, v60, %s, 0 offen sc1" % s4(sF)]
    TP = ["v_and_b32 v60, 1, v60", "v_cmp_eq_u32 vcc, 0, v60", "v_mov_b32 v61, 1", "v_mov_b32 v60, vcc_lo",
          "buffer_store_dwordx2 v[60:61], v62, %s, 0 offen sc1" % s4(sD)]
    pro = P1.prologue()
    P1.vm.issue(('tp', 0))
    body = P1.main(xreads, wreads, mfmas, {3: ES, 4: so, 5: ES2 + P1.w2.setup_dma(), 6: ES3[:21], 7: ES3[21:42], 8: ES3[42:], 11: P1.w2.setup_rd(), 2: TP, 15: flag_setup(P1.vm)}, {2: ('tp', 0)})
    L += pro + S2 + lb.setup + lb2.setup + late_scalar_setup() + TL + body
    L += [tag_load()]
    P1.vm.issue(('tag', 0))
    VB = 32
    def Vb(hh, par, k): return VB + 16 * hh + 8 * par + 2 * k
    def cvt2(dst, src): return ["v_cvt_pk_bf16_f32 v%d, v%d, v%d" % (dst, src, src + 1), "v_cvt_pk_bf16_f32 v%d, v%d, v%d" % (dst + 1, src + 2, src + 3)]
    units = [(hh, b) for b in range(6) for hh in range(2)]
    seg = [0]

    def slot():
        seg[0] += 1
        return P1.epi_slot(seg[0] - 1)
    for b in range(6):
        for hh in range(2):
            L += cvt2(Qa(hh, b), Qa(hh, b)) + cvt2(Qa(hh, b) + 2, Ka(hh, b)) + cvt2(Vb(hh, b & 1, 1 + (b >> 1)), Va(hh, b))
        if b in (1, 4):
            L += slot()
    for hh in range(2):
        L += cvt2(Ka(hh, 6), Ka(hh, 6)) + cvt2(Vb(hh, 0, 0), Va(hh, 6)) + cvt2(Vb(hh, 1, 0), Va(hh, 6))
    L += ["v_mul_f32 v%d, s%d, v%d" % (TA, sC0 + 1, TA), "v_exp_f32 v%d, v%d" % (TA, TA)]
    mf = []
    for (hh, b) in units:
        mf += ["v_mfma_f32_16x16x16_bf16 %s, %s, %s, %s" % (v4(Ka(hh, b)), v2(Qa(hh, b) + 2), v2(Qa(hh, b)), v4(MC))]
        kp = Ka(hh, 6) if b < 2 else Qa(hh, b - 2) + 2
        mk = MH0 if b == 0 else MH1 if b == 1 else MP
        mf += ["v_mfma_f32_16x16x16_bf16 %s, %s, %s, %s" % (v4(Va(hh, b)), v2(kp), v2(Qa(hh, b)), v4(mk))]
    mx = []
    for (hh, b) in units:
        S, P = Ka(hh, b), Va(hh, b)
        mx += ["v_max_f32 v%d, v%d, v%d" % (S + r, S + r, P + r) for r in range(4)]
        mx += ["v_max3_f32 v%d, v%d, v%d, v%d" % (P, S, S + 1, S + 2), "v_max_f32 v%d, v%d, v%d" % (P, P, S + 3)]
    L += interleave(mf[:8], slot()) + interleave(mf[8:], mx[:32])
    L += ["v_add_f32 v%d, 1.0, v%d" % (TA, TA), "v_rcp_f32 v%d, v%d" % (TA, TA)]
    L += mx[32:]
    L += ["buffer_store_dword v%d, v%d, %s, 0 offen sc1" % (TA, vGO, s4(sG))]
    P1.vm.issue(('st', 100))
    L += slot()
    grp = [[Va(*units[4 * k + i]) for i in range(4)] for k in range(3)]
    for A, B, C, D in grp:
        L += ["v_permlane32_swap_b32 v%d, v%d" % (A, B), "v_permlane32_swap_b32 v%d, v%d" % (C, D)]
    for A, B, C, D in grp:
        L += ["v_max_f32 v%d, v%d, v%d" % (A, A, B), "v_max_f32 v%d, v%d, v%d" % (C, C, D)]
    for A, B, C, D in grp:
        L += ["v_permlane16_swap_b32 v%d, v%d" % (A, C)]
    for A, B, C, D in grp:
        L += ["v_max_f32 v%d, v%d, v%d" % (A, A, C)]
    for A, B, C, D in grp:
        L += ["v_mul_f32 v%d, s%d, v%d" % (C, sC0, A)]
    for A, B, C, D in grp:
        L += ["v_mul_f32 v%d, s%d, v%d" % (A, sC0, A)]
    for A, B, C, D in grp:
        L += ["v_permlane16_swap_b32 v%d, v%d" % (A, C)]
    for A, B, C, D in grp:
        L += ["v_mov_b32 v%d, v%d" % (B, A), "v_mov_b32 v%d, v%d" % (D, C)]
    for A, B, C, D in grp:
        L += ["v_permlane32_swap_b32 v%d, v%d" % (A, B), "v_permlane32_swap_b32 v%d, v%d" % (C, D)]
    prevP = SPARE
    sums = {}
    pend_mf = []
    for k in range(0, 12, 2):
        us = units[k:k + 2]
        L += slot()
        a = []
        for (hh, b) in us:
            S, P = Ka(hh, b), Va(hh, b)
            a += ["v_fma_f32 v%d, v%d, s%d, -v%d" % (S + r, S + r, sC0, P) for r in range(4)]
        L += interleave(pend_mf, a) if pend_mf else a
        for (hh, b) in us:
            S = Ka(hh, b)
            L += ["v_exp_f32 v%d, v%d" % (S + r, S + r) for r in range(4)]
        for (hh, b) in us:
            L += cvt2(Va(hh, b) + 2, Ka(hh, b))
        for (hh, b) in us:
            P, Q = Va(hh, b), Qa(hh, b)
            L += ["v_and_b32 v%d, v%d, v%d" % (Q, P + 2, AM + 2), "v_and_b32 v%d, v%d, v%d" % (Q + 1, P + 3, AM + 3),
                  "v_and_b32 v%d, v%d, v%d" % (Q + 2, P + 2, AM), "v_and_b32 v%d, v%d, v%d" % (Q + 3, P + 3, AM + 1)]
        pend_mf = []
        for (hh, b) in us:
            P = Va(hh, b)
            pend_mf += ["v_mfma_f32_16x16x16_bf16 %s, %s, %s, 0" % (v4(prevP), v2(ONES), v2(P + 2))]
            sums[(hh, b)] = prevP
            prevP = P
        for (hh, b) in us:
            pend_mf += ["v_mfma_f32_16x16x32_bf16 %s, %s, %s, 0" % (v4(Ka(hh, b)), v4(Vb(hh, b & 1, b >> 1)), v4(Qa(hh, b)))]
    rc = ["v_rcp_f32 v%d, v%d" % (sums[u], sums[u]) for u in units]
    L += interleave(pend_mf, rc[:4]) + rc[4:]
    for b in range(6):
        for hh in range(2):
            S = Ka(hh, b)
            sm = sums[(hh, b)]
            L += ["v_pk_mul_f32 %s, %s, %s op_sel_hi:[1,0]" % (v2(S + r), v2(S + r), v2(sm)) for r in (0, 2)]
        for hh in range(2):
            L += cvt2(Qa(0, b) + 2 * hh, Ka(hh, b))
        L += ["buffer_store_dwordx4 %s, v%d, %s, s%d offen sc1" % (v4(Qa(0, b)), vST, s4(sA), sST + b)]
        P1.vm.issue(('st', b))
    L += PF.stamp()
    L += P1.epi_slot(20, ndma=OPT['postdma'], nrd=16)
    L += phase2(P1, PF, "Q")
    return L


def main():
    K = NAME + "_kernel"
    L = [K + ":", "s_cmp_ge_u32 s2, 256", "s_cbranch_scc1 L_exit",
         "s_load_dwordx8 s[4:11], s[0:1], 0", "s_load_dwordx8 s[12:19], s[0:1], 32",
         "s_load_dwordx4 s[20:23], s[0:1], 64", "s_load_dwordx2 s[24:25], s[0:1], 80",
         "v_lshrrev_b32 v2, 6, v0", "v_and_b32 v%d, 63, v0" % vLANE, "v_readfirstlane_b32 s%d, v2" % sWV,
         "s_and_b32 s%d, s2, 7" % sXCD, "s_lshr_b32 s%d, s2, 3" % sIDX, "s_cmp_lt_u32 s%d, 11" % sIDX, "s_cbranch_scc1 L_Q"]
    pf = ["s_getpc_b64 s[26:27]", "v_lshlrev_b32 v63, 7, v0", "global_load_dword v63, v63, s[26:27]"] if OPT['iprefetch'] else []
    rep = {}
    H = fix_hazards(["s_nop 3"] + pf + gen_H(), rep)
    sys.stderr.write("H: %d lines, nops %d\n" % (len(H), rep['nops']))
    Q = fix_hazards(["s_nop 3"] + pf + gen_Q(), rep)
    sys.stderr.write("Q: %d lines, nops %d\n" % (len(Q), rep['nops']))
    out = ["; generated by gen2.py: single persistent kernel, flag hand-off between GEMM1 and GEMM2",
           "; @launch grid=(256,1,1) block=(256,1,1) lds=163840",
           '.amdgcn_target "amdgcn-amd-amdhsa--gfx950"', ".text", ".globl " + K, ".p2align 8", ".type %s,@function" % K]
    out += fix_hazards(L) + H + ["L_exit:", "s_endpgm", ".p2align 6", "L_Q:"] + Q
    out += [".p2align 8", ".fill 4096, 4, 0xbf800000", "s_endpgm"]
    out += ['.section .rodata,"a"', ".p2align 6", """.amdhsa_kernel %s
  .amdhsa_next_free_vgpr 512
  .amdhsa_next_free_sgpr 102
  .amdhsa_accum_offset 256
  .amdhsa_group_segment_fixed_size 0
  .amdhsa_kernarg_size 88
  .amdhsa_user_sgpr_count 2
  .amdhsa_user_sgpr_kernarg_segment_ptr 1
  .amdhsa_system_sgpr_workgroup_id_x 1
.end_amdhsa_kernel""" % K]
    print("\n".join(out))


main()
```

```python
import sys
from asmlib import *

NAME = "gated_mix__sliding_local_dilated__glu_gated_glu__prompt"
A2_BYTES = 32 * 72 * 4096
G_OFF = A2_BYTES
F_OFF = A2_BYTES + 8192
MT_STRIDE = 72 * 4096
NLOG2E = 0xbfb8aa3b
SCL = 0x3eb8aa3b
BIG = 0x40000000

OPT = dict(masks=0x33333333, pk=1, iprefetch=1, prof=0, maxd=11, rot2=1, flags=0, la=6, la0=3, rdmain=1, npro=20, sleep=1, edma=2, postdma=6, maxd2=8, rnt=7, rmt=3, diag=-1, diagc=0, c0=-1, c1=-1)
for a in sys.argv[1:]:
    if '=' in a:
        k, v = a.split('=')
        assert k in OPT, k
        OPT[k] = int(v, 0)

pX, pQKV, pWO, pWG, pWU, pWD, pGW, pOUT, pDBG, pWS = 4, 6, 8, 12, 14, 16, 18, 20, 22, 24
sX, sW, sA, sG, sWO, sWD, sO, sD = 28, 32, 36, 40, 44, 48, 52, 56
sWV, sRB0, sCG, sXCD, sIDX, sKX, sKW, sMX, sMW, sM7, sROT, sM2 = 60, 61, 62, 63, 64, 65, 66, 67, 68, 69, 70, 71
sMT, sNT, sW2o, sW2h, sW2e, sS2, sAo, sAh, sAe, sSA = 72, 73, 74, 75, 76, 77, 78, 79, 80, 81
sC0 = 82
sST = 86
sF = 20
sPID = 98
sK = 97
sT = 88
sU = 4
vLANE = 1
vXD, vWD, vRD = 2, 9, 13
ACC = 64


def v4(b): return "v[%d:%d]" % (b, b + 3)
def v2(b): return "v[%d:%d]" % (b, b + 1)
def a4(b): return "a[%d:%d]" % (b, b + 3)
def a2(b): return "a[%d:%d]" % (b, b + 1)
def s4(b): return "s[%d:%d]" % (b, b + 3)


class Prof:
    def __init__(self, vreg):
        self.n = 0
        self.v = vreg

    def stamp(self):
        self.n += 1
        if OPT['diag'] >= 0:
            L = []
            if OPT['diag'] == self.n - 1:
                L += ["s_memrealtime s[100:101]", "s_waitcnt lgkmcnt(0)", "s_mov_b32 s99, s100"]
            if OPT['c0'] == self.n - 1:
                L += ["s_memtime s[100:101]", "s_waitcnt lgkmcnt(0)", "s_mov_b32 s3, s100"]
            if OPT['c1'] == self.n - 1:
                L += ["s_memtime s[100:101]", "s_waitcnt lgkmcnt(0)", "s_sub_u32 s3, s100, s3"]
            return L
        if not OPT['prof']:
            return []
        return ["s_memtime s[100:101]", "s_waitcnt lgkmcnt(0)", "v_writelane_b32 v%d, s100, %d" % (self.v, self.n - 1)]

    def dump(self):
        if OPT['diag'] >= 0:
            lab = "D%d" % self.v
            L = ["s_waitcnt vmcnt(0)"] + self.stamp() + ["s_mov_b32 s4, 10000"]
            if OPT['c0'] >= 0:
                L += ["s_lshr_b32 s3, s3, 2", "s_add_u32 s4, s3, 5000"]
            L += ["s_mov_b32 s5, 0", lab + ":", "s_memrealtime s[100:101]", "s_waitcnt lgkmcnt(0)", "s_sub_u32 s6, s100, s99",
                  "s_add_u32 s5, s5, 1", "s_cmp_gt_u32 s5, 100000", "s_cbranch_scc1 %s_x" % lab,
                  "s_cmp_lt_u32 s6, s4", "s_cbranch_scc1 " + lab, lab + "_x:"]
            return L
        if not OPT['prof']:
            return []
        L = ["s_waitcnt vmcnt(0)"] + self.stamp()
        L += ["s_memrealtime s[100:101]", "s_waitcnt lgkmcnt(0)", "v_writelane_b32 v%d, s100, 63" % self.v]
        L += ["s_lshl_b32 s100, s2, 2", "s_add_u32 s100, s100, s%d" % sWV, "s_lshl_b32 s100, s100, 8",
              "s_add_u32 s100, s100, %d" % (16 << 20), "v_lshl_add_u32 v2, v%d, 2, s100" % vLANE,
              "global_store_dword v2, v%d, s[%d:%d]" % (self.v, pWS, pWS + 1)]
        return L


def srd(d, p, nbytes, bias=0, add=0):
    L = []
    if bias:
        L += ["s_sub_u32 s%d, s%d, %d" % (d, p, bias), "s_subb_u32 s%d, s%d, 0" % (d + 1, p + 1)]
    elif add:
        L += ["s_add_u32 s%d, s%d, %d" % (d, p, add), "s_addc_u32 s%d, s%d, 0" % (d + 1, p + 1)]
    else:
        L += ["s_mov_b32 s%d, s%d" % (d, p), "s_mov_b32 s%d, s%d" % (d + 1, p + 1)]
    L += ["s_mov_b32 s%d, 0x%x" % (d + 2, nbytes + bias), "s_mov_b32 s%d, 0x20000" % (d + 3)]
    return L


class LdsBases:
    def __init__(self, regs, chunk=0xC000):
        self.regs = list(regs)
        self.map = {}
        self.setup = []
        self.chunk = chunk

    def addr(self, patreg, off):
        ch = off // self.chunk
        if ch == 0:
            return patreg, off
        key = (patreg, ch)
        if key not in self.map:
            r = self.regs.pop(0)
            self.map[key] = r
            self.setup.append("v_add_u32 v%d, 0x%x, v%d" % (r, ch * self.chunk, patreg))
        return self.map[key], off - ch * self.chunk


class Dma:
    def __init__(self, stream, tag, m0, pre, text, avail, need):
        self.stream, self.tag, self.m0, self.pre, self.text, self.avail, self.need = stream, tag, m0, pre, text, avail, need


class Sched:
    def __init__(self, vm):
        self.vm = vm
        self.streams = {}
        self.m0 = None

    def add(self, d):
        self.streams.setdefault(d.stream, []).append(d)

    def take(self, slot, cap):
        picked = []
        while len(picked) < cap:
            best = None
            for s, q in self.streams.items():
                if q and q[0].avail is not None and q[0].avail <= slot:
                    if best is None or q[0].need < self.streams[best][0].need:
                        best = s
            if best is None:
                break
            picked.append(self.streams[best].pop(0))
        groups = [[]]
        for d in picked:
            setup = list(d.pre)
            if d.m0 != self.m0:
                setup.append("s_add_u32 m0, s%d, %d" % d.m0)
                self.m0 = d.m0
            groups[-1] += setup
            groups.append([d.text])
            self.vm.issue(d.tag)
        return [g for g in groups if g], picked

    def pending(self):
        return sum(len(q) for q in self.streams.values())


def stage_pre(s, dst, mul):
    m = (OPT['masks'] >> (4 * s)) & 7
    if m == 0:
        return ["s_mov_b32 s%d, %d" % (dst, s * mul)]
    return ["s_and_b32 s%d, s%d, %d" % (sK, sROT, m), "s_xor_b32 s%d, s%d, %d" % (sK, sK, s), "s_mul_i32 s%d, s%d, %d" % (dst, sK, mul)]


def x_setup(L, typ):
    L += ["v_lshrrev_b32 v32, 3, v%d" % vLANE, "v_lshrrev_b32 v33, 4, v%d" % vLANE, "v_and_b32 v34, 7, v%d" % vLANE,
          "v_xor_b32 v35, v34, v33", "v_lshlrev_b32 v35, 4, v35", "v_lshl_add_u32 v36, v32, 11, v35", "v_xor_b32 v37, 64, v36"]
    L += ["s_mul_i32 s%d, s%d, 3" % (sT, sWV), "s_add_u32 s%d, s%d, s%d" % (sT, sT, sRB0)]
    for bb in range(3):
        L += ["s_add_u32 s%d, s%d, %d" % (sT + 1, sT, bb),
              "s_lshr_b32 s%d, s%d, 1" % (sT + 2, sT + 1), "s_lshl_b32 s%d, s%d, 15" % (sT + 2, sT + 2),
              "s_and_b32 s%d, s%d, 1" % (sT + 1, sT + 1), "s_lshl_b32 s%d, s%d, 10" % (sT + 1, sT + 1),
              "s_add_u32 s%d, s%d, s%d" % (sT + 2, sT + 2, sT + 1)]
        if typ == 'H' and bb == 2:
            L += ["s_cmp_eq_u32 s%d, 3" % sWV, "s_cselect_b32 s%d, 0x%x, s%d" % (sT + 2, BIG, sT + 2)]
        for dd in range(2):
            d = 2 * bb + dd
            add = 4096 - 1024 * (d & 3) + (16384 if dd else 0)
            L += ["s_add_u32 s%d, s%d, %d" % (sT + 3, sT + 2, add), "v_add_u32 v%d, s%d, v%d" % (vXD + d, sT + 3, 36 + dd)]


def late_scalar_setup():
    L = []
    L += srd(sA, pWS, A2_BYTES)
    L += srd(sWO, pWO, 512 * 1024) + srd(sWD, pWD, 1792 * 1024) + srd(sO, pOUT, 2048 * 1024)
    L += srd(sD, pDBG, 256)
    L += srd(sF, pWS, 32768, add=F_OFF)
    L += ["s_lshl_b32 s%d, s%d, 2" % (sMT, sXCD), "s_lshr_b32 s%d, s%d, 3" % (sT, sIDX), "s_add_u32 s%d, s%d, s%d" % (sMT, sMT, sT),
          "s_and_b32 s%d, s%d, 7" % (sNT, sIDX),
          "s_lshl_b32 s%d, s%d, 11" % (sM2, sWV),
          "s_lshl_b32 s%d, s%d, 17" % (sW2o, sWV),
          "s_mul_i32 s%d, s%d, %d" % (sW2h, sWV, 14 * 32768), "s_add_u32 s%d, s%d, %d" % (sW2e, sW2h, 14 * 32768),
          "s_mul_i32 s%d, s%d, %d" % (sT + 1, sMT, MT_STRIDE),
          "s_lshl_b32 s%d, s%d, 14" % (sAo, sWV), "s_add_u32 s%d, s%d, s%d" % (sAo, sAo, sT + 1),
          "s_mul_i32 s%d, s%d, %d" % (sAh, sWV, 14 * 4096), "s_add_u32 s%d, s%d, s%d" % (sAh, sAh, sT + 1),
          "s_add_u32 s%d, s%d, %d" % (sAh, sAh, 16 * 4096), "s_add_u32 s%d, s%d, %d" % (sAe, sAh, 14 * 4096)]
    if OPT['rot2']:
        L += ["s_and_b32 s%d, s%d, 1" % (sT + 2, sNT), "s_mul_i32 s%d, s%d, %d" % (sT + 2, sT + 2, OPT['rnt']),
              "s_mul_i32 s%d, s%d, %d" % (sT + 3, sT, OPT['rmt']), "s_add_u32 s%d, s%d, s%d" % (sT + 2, sT + 2, sT + 3),
              "s_and_b32 s%d, s%d, %d" % (sT + 3, sXCD, 3 if OPT['rmt'] else 0), "s_add_u32 s%d, s%d, s%d" % (sT + 2, sT + 2, sT + 3),
              "s_cmp_ge_u32 s%d, 14" % (sT + 2), "s_cselect_b32 s%d, 14, 0" % (sT + 3), "s_sub_u32 s%d, s%d, s%d" % (sT + 2, sT + 2, sT + 3)]
    else:
        L += ["s_mov_b32 s%d, 0" % (sT + 2)]
    L += ["s_lshl_b32 s%d, s%d, 15" % (sT + 3, sT + 2), "s_add_u32 s%d, s%d, s%d" % (sS2, sW2h, sT + 3),
          "s_lshl_b32 s%d, s%d, 12" % (sT + 3, sT + 2), "s_add_u32 s%d, s%d, s%d" % (sSA, sAh, sT + 3)]
    return L


def store_offsets(nb, base_sreg):
    L = []
    for b in range(nb):
        L += [["s_add_u32 s%d, s%d, %d" % (sU, base_sreg, b), "s_lshr_b32 s%d, s%d, 2" % (sU + 1, sU)],
              ["s_mul_i32 s%d, s%d, %d" % (sU + 1, sU + 1, MT_STRIDE), "s_and_b32 s%d, s%d, 3" % (sU, sU)],
              ["s_lshl_b32 s%d, s%d, 10" % (sU, sU), "s_add_u32 s%d, s%d, s%d" % (sST + b, sU, sU + 1)]]
    return L


vFO, vSH, vTG = 13, 14, 16


def flag_setup(vm):
    t = 18
    L = [["s_mul_i32 s%d, s%d, 43" % (sU, sMT), "s_lshr_b32 s%d, s%d, 7" % (sU, sU)],
         ["s_lshl_b32 s%d, s%d, 3" % (sU, sU), "s_mul_i32 s%d, s%d, %d" % (sU + 1, sMT, 4 * 187)],
         ["s_add_u32 s%d, s%d, %d" % (sU + 2, sU + 1, 3 * 187), "s_lshr_b32 s%d, s%d, 11" % (sU + 1, sU + 1)],
         ["s_lshr_b32 s%d, s%d, 11" % (sU + 2, sU + 2), "s_mul_i32 s%d, s%d, 14" % (sU + 1, sU + 1)],
         ["s_mul_i32 s%d, s%d, 14" % (sU + 2, sU + 2), "s_add_u32 s%d, s%d, 88" % (sU + 1, sU + 1)],
         "s_add_u32 s%d, s%d, 88" % (sU + 2, sU + 2),
         "v_and_b32 v%d, 15, v%d" % (t, vLANE), "v_min_u32 v%d, 13, v%d" % (t, t),
         "v_and_b32 v%d, 7, v%d" % (t + 1, vLANE), "v_add_u32 v%d, s%d, v%d" % (t + 1, sU, t + 1),
         "v_add_u32 v%d, s%d, v%d" % (t + 2, sU + 1, t), "v_add_u32 v%d, s%d, v%d" % (t + 3, sU + 2, t),
         "v_cmp_gt_u32 vcc, 16, v%d" % vLANE, "v_mov_b32 v%d, s%d" % (t, sPID),
         "v_cndmask_b32 v%d, v%d, v%d, vcc" % (t + 1, t + 2, t + 1),
         "v_cmp_gt_u32 vcc, 48, v%d" % vLANE,
         "v_cndmask_b32 v%d, v%d, v%d, vcc" % (t, t, t + 3),
         "v_cmp_gt_u32 vcc, 32, v%d" % vLANE,
         "v_cndmask_b32 v%d, v%d, v%d, vcc" % (t, t, t + 1),
         "v_lshlrev_b32 v%d, 7, v%d" % (vFO, t), "v_and_b32 v%d, 31, v%d" % (vSH, t),
         "v_lshrrev_b32 v%d, 5, v%d" % (t, t), "v_lshlrev_b32 v%d, 3, v%d" % (vFO + 2, t)]
    return L


def tag_load():
    return "buffer_load_dwordx2 %s, v%d, %s, 0 offen sc1" % (v2(vTG), vFO + 2, s4(sD))


class W2:
    AW2 = 128

    def __init__(self, sched, vm, vW2, trregs, region_free):
        self.sched, self.vm, self.vW2 = sched, vm, vW2
        self.pat = trregs[:4]
        self.lb = LdsBases(trregs[4:], chunk=0x10000)
        order = sorted(range(20), key=lambda r: (region_free[r], r))
        self.region = {}
        self.items = {}
        for n in range(36):
            if n < 20:
                self.region[n] = order[n]
                av = region_free[order[n]]
            else:
                self.region[n] = self.region[n - 20]
                av = None
            kb, h = n >> 1, n & 1
            isO = kb >= 14
            sr = sWO if isO else sWD
            its = []
            for i in range(2):
                pre = []
                if i == 0 and n > 0:
                    if n == 28:
                        pre = ["s_mov_b32 s%d, s%d" % (sS2, sW2o)]
                    else:
                        pre = ["s_add_u32 s%d, s%d, 16384" % (sS2, sS2)]
                        if h == 0 and not isO and OPT['rot2']:
                            pre += ["s_cmp_eq_u32 s%d, s%d" % (sS2, sW2e), "s_cselect_b32 s%d, s%d, s%d" % (sS2, sW2h, sS2)]
                d = Dma('w2', ('w2', n), (sM2, 8192 * self.region[n]), pre,
                        "buffer_load_dwordx4 v%d, %s, s%d offen offset:%d lds" % (vW2[i], s4(sr), sS2, 1024 * i), av, 1000 + n)
                its.append(d)
                sched.add(d)
            self.items[n] = its
        self.nread = 0
        for t in range(4):
            for ch in (1, 2):
                self.lb.addr(self.pat[t], ch * 0x10000)

    def setup_dma(self):
        a, b = self.vW2
        return ["v_lshrrev_b32 v%d, 4, v%d" % (a, vLANE), "v_lshlrev_b32 v%d, 1, v%d" % (a, a),
                "v_and_b32 v%d, 7, v%d" % (b, vLANE), "v_xor_b32 v%d, v%d, v%d" % (a, a, b), "v_lshlrev_b32 v%d, 4, v%d" % (a, a),
                "v_lshrrev_b32 v%d, 3, v%d" % (b, vLANE), "v_lshl_add_u32 v%d, v%d, 10, v%d" % (a, b, a),
                ["s_lshl_b32 s%d, s%d, 7" % (sU, sNT), "v_add_u32 v%d, s%d, v%d" % (a, sU, a)],
                "v_add_u32 v%d, 7168, v%d" % (b, a)]

    def setup_rd(self):
        p = self.pat
        L = ["v_lshrrev_b32 v%d, 2, v%d" % (p[1], vLANE), "v_lshrrev_b32 v%d, 3, v%d" % (p[2], vLANE),
             "v_and_b32 v%d, 3, v%d" % (p[2], p[2]), "v_lshlrev_b32 v%d, 5, v%d" % (p[2], p[2]),
             "v_lshl_add_u32 v%d, v%d, 7, v%d" % (p[1], p[1], p[2]), "v_and_b32 v%d, 3, v%d" % (p[2], vLANE),
             "v_lshl_add_u32 v%d, v%d, 3, v%d" % (p[1], p[2], p[1]), "v_add_u32 v%d, s%d, v%d" % (p[0], sM2, p[1])]
        L += ["v_xor_b32 v%d, %d, v%d" % (p[t], 32 * t, p[0]) for t in range(1, 4)]
        return L + self.lb.setup

    def reads(self, n, dstf):
        out = []
        for t in range(4):
            r, o = self.lb.addr(self.pat[t], 8192 * self.region[n])
            out.append("ds_read_b64_tr_b16 %s, v%d offset:%d" % (dstf(t), r, o))
        return out

    def take_reads(self, cnt, issued_upto, slot):
        out = []
        last = None
        while cnt > 0 and self.nread < 16 and self.nread < issued_upto:
            n = self.nread
            out += self.reads(n, lambda t: a2(self.AW2 + 16 * (n >> 1) + 4 * t + 2 * (n & 1)))
            for d in self.items[n + 20]:
                d.avail = slot + 1
            last = n
            self.nread += 1
            cnt -= 1
        return out, last


class Phase1:
    def __init__(self, typ, PF, xslot, wbase, wslot, nws, wpitch, nwd, gw_range, vW2, trregs):
        self.typ, self.PF = typ, PF
        self.xslot, self.wbase, self.wslot, self.nws = xslot, wbase, wslot, nws
        self.vm = VmTracker()
        self.sched = Sched(self.vm)
        nxd = 7 if typ == 'Q' else 6
        for s in range(8):
            slot = (s % 3) * xslot
            for d in range(nxd):
                m0 = (sMX, slot) if d < 4 else (sMX, slot + 4096) if d < 6 else (sM7, slot + 24576)
                imm = 1024 * (d & 3) if d < 6 else 0
                pre = stage_pre(s, sKX, 128) if d == 0 else []
                self.sched.add(Dma('x', ('x', s), m0, pre,
                                   "buffer_load_dwordx4 v%d, %s, s%d offen offset:%d lds" % (vXD + d, s4(sX), sKX, imm),
                                   -1 if s < 3 else 2 * (s - 3) + 1, 2 * s - 0.5))
        for t in range(16):
            slot = wbase + (t % nws) * wslot
            for e in range(nwd):
                pre = []
                if e == 0:
                    pre = stage_pre(t >> 1, sKW, 64 * wpitch) if t % 2 == 0 else ["s_add_u32 s%d, s%d, %d" % (sKW, sKW, 32 * wpitch)]
                self.sched.add(Dma('w', ('w', t), (sMW, slot), pre,
                                   "buffer_load_dwordx4 v%d, %s, s%d offen offset:%d lds" % (vWD + e, s4(sW), sKW, 1024 * e),
                                   -1 if t < nws else t - nws, t))
        busy = []
        for s in (5, 6, 7):
            busy.append(((s % 3) * xslot, (s % 3 + 1) * xslot, 2 * s + 1))
        for t in range(16 - nws, 16):
            busy.append((wbase + (t % nws) * wslot, wbase + (t % nws + 1) * wslot, t))
        if gw_range:
            busy.append((gw_range[0], gw_range[1], 15))
        first = 16 - nws
        rf = []
        for r in range(20):
            f = first
            for lo, hi, t in busy:
                if lo < 8192 * (r + 1) and hi > 8192 * r:
                    f = max(f, t)
            rf.append(f)
        self.w2 = W2(self.sched, self.vm, vW2, trregs, rf)
        self.w2_issued_at = {}

    def n_w2_issued(self):
        return (72 - len(self.sched.streams['w2'])) // 2

    def prologue(self):
        g, _ = self.sched.take(-1, OPT['npro'])
        return sum(g, [])

    def main(self, xreads, wreads, mfmas, extra, extra_need={}):
        PF, vm = self.PF, self.vm

        def need(t):
            return lambda tag: (tag[0] == 'x' and tag[1] <= t // 2) or (tag[0] == 'w' and tag[1] <= t)

        def reads(t):
            return wreads(t, t & 1, self.wbase + (t % self.nws) * self.wslot) + xreads(t, t & 1, ((t // 2) % 3) * self.xslot)

        def check_issued(t):
            for q in ('x', 'w'):
                for d in self.sched.streams[q]:
                    assert not need(t)(d.tag), ("not issued in time", t, d.tag)
        body = PF.stamp()
        check_issued(0)
        body += ["s_waitcnt vmcnt(%d)" % vm.wait_for(need(0)), "s_barrier"] + reads(0) + ["s_waitcnt lgkmcnt(0)"]
        for t in range(16):
            body += PF.stamp()
            rd = []
            w2r, last = [], None
            if OPT['rdmain'] and t - 2 in self.w2_issued_at:
                w2r, last = self.w2.take_reads(4, self.w2_issued_at[t - 2], t)
            nd = need(min(t + 1, 15))
            check_issued(min(t + 1, 15))
            n = vm.wait_for(lambda tag: nd(tag) or tag == extra_need.get(t) or (last is not None and tag[0] == 'w2' and tag[1] <= last))
            body += ["s_waitcnt vmcnt(%d)" % n, "s_barrier"]
            if t < 15:
                rd = reads(t + 1)
            rd += w2r
            dm, _ = self.sched.take(t, OPT['maxd'] if t < 11 else OPT['maxd2'])
            self.w2_issued_at[t] = self.n_w2_issued()
            mf = mfmas(t, t & 1)
            nuse = len(mf) - 4
            pos = {}
            for i, r in enumerate(rd):
                pos.setdefault(i * nuse // max(len(rd), 1), []).append(r)
            for i, g in enumerate(dm):
                pos.setdefault((i * len(mf)) // max(len(dm), 1), []).extend(g)
            ef = extra.get(t, [])
            for i, g in enumerate(ef):
                pos.setdefault((i * len(mf)) // len(ef), []).extend([g] if isinstance(g, str) else g)
            for i, m in enumerate(mf):
                body.append(m)
                body += pos.get(i, [])
            if rd:
                body += ["s_waitcnt lgkmcnt(0)"]
        body += PF.stamp()
        return body

    def epi_slot(self, k, ndma=None, nrd=2):
        slot = 16 + k
        L = []
        if ndma is None:
            ndma = OPT['edma']
        pend = getattr(self, 'epi_reads_pending', False)
        if pend:
            L += ["s_waitcnt lgkmcnt(0)"]
            self.epi_reads_pending = False
        upto = self.w2_issued_at.get(slot - 3, 0) if k >= 1 else 0
        if k >= 1:
            upto = self.w2_issued_at[max(s for s in self.w2_issued_at if s <= max(slot - 3, 14))]
        r, last = self.w2.take_reads(nrd, upto, slot)
        if r:
            L += ["s_waitcnt vmcnt(%d)" % self.vm.wait_for(lambda tag: tag[0] == 'w2' and tag[1] <= last)] + r
            self.epi_reads_pending = True
        dm, _ = self.sched.take(slot, ndma)
        L += sum(dm, [])
        self.w2_issued_at[slot] = self.n_w2_issued()
        return L

    def flush_w2(self, slot):
        L = []
        while self.w2.nread < 16 or self.sched.pending():
            L += self.epi_slot(slot - 16, ndma=64, nrd=16)
            slot += 1
        if getattr(self, 'epi_reads_pending', False):
            L += ["s_waitcnt lgkmcnt(0)"]
        return L


def phase2(P1, PF, lab):
    vm, w2 = P1.vm, P1.w2
    L = []
    vAD, vG, vXW, vXR, vOUT, vP, vT = 32, 36, 44, 45, 48, 49, 52
    ACO, ACH, VWF = 64, 128, 192
    L += ["v_lshlrev_b32 v%d, 4, v%d" % (vT, vLANE), "v_and_b32 v%d, 15, v%d" % (vT + 1, vLANE), "v_lshrrev_b32 v%d, 4, v%d" % (vT + 2, vLANE)]
    for q in range(4):
        L += ["s_add_u32 s%d, s%d, %d" % (sU, sWV, q), "s_and_b32 s%d, s%d, 3" % (sU, sU), "s_lshl_b32 s%d, s%d, 10" % (sU + 1, sU),
              "v_add_u32 v%d, s%d, v%d" % (vAD + q, sU + 1, vT),
              "s_lshl_b32 s%d, s%d, 2" % (sU + 1, sMT), "s_add_u32 s%d, s%d, s%d" % (sU + 1, sU + 1, sU), "s_lshl_b32 s%d, s%d, 6" % (sU + 1, sU + 1),
              "v_lshl_add_u32 v%d, v%d, 2, s%d" % (vG + q, vT + 1, sU + 1)]
        if q:
            L += ["s_sub_u32 s%d, s%d, %d" % (sU, sWV, q), "s_and_b32 s%d, s%d, 3" % (sU, sU), "s_lshl_b32 s%d, s%d, 11" % (sU, sU),
                  "v_add_u32 v%d, s%d, v%d" % (vXR + q - 1, sU, vT)]
    L += ["v_add_u32 v%d, s%d, v%d" % (vXW, sM2, vT),
          "s_lshl_b32 s%d, s%d, 6" % (sU, sMT), "s_lshr_b32 s%d, s%d, 1" % (sU + 1, sWV), "s_lshl_b32 s%d, s%d, 5" % (sU + 1, sU + 1),
          "s_add_u32 s%d, s%d, s%d" % (sU, sU, sU + 1), "s_and_b32 s%d, s%d, 1" % (sU + 1, sWV), "s_add_u32 s%d, s%d, s%d" % (sU, sU, sU + 1),
          "s_lshl_b32 s%d, s%d, 10" % (sU, sU), "s_lshl_b32 s%d, s%d, 7" % (sU + 1, sNT), "s_add_u32 s%d, s%d, s%d" % (sU, sU, sU + 1),
          "v_lshlrev_b32 v%d, 11, v%d" % (vT + 3, vT + 1), "v_lshl_add_u32 v%d, v%d, 3, v%d" % (vT + 3, vT + 2, vT + 3),
          "v_add_u32 v%d, s%d, v%d" % (vOUT, sU, vT + 3)]
    L += srd(sG, pWS, 8192, add=G_OFF)
    L += ["s_waitcnt vmcnt(%d)" % vm.wait_for(lambda tag: tag[0] == 'st')]
    L += PF.stamp()
    slp = ["s_sleep %d" % OPT['sleep']] if OPT['sleep'] else []
    L += ["s_barrier", "s_cmp_lg_u32 s%d, 0" % sWV, "s_cbranch_scc1 %s_pub" % lab,
          "s_mov_b32 s%d, 0" % sU,
          "%s_tag:" % lab,
          "v_cmp_eq_u32 vcc, 0, v%d" % (vTG + 1),
          "s_cmp_eq_u64 vcc, 0", "s_cbranch_scc1 %s_tagok" % lab,
          tag_load(), "s_add_u32 s%d, s%d, 1" % (sU, sU), "s_waitcnt vmcnt(0)",
          "s_cmp_lt_u32 s%d, 0x8000" % sU, "s_cbranch_scc1 %s_tag" % lab,
          "%s_tagok:" % lab,
          "v_lshrrev_b32 v%d, v%d, v%d" % (vTG, vSH, vTG), "v_and_b32 v%d, 1, v%d" % (vTG, vTG),
          "s_mov_b32 exec_lo, 0", "s_brev_b32 exec_hi, 1",
          "buffer_store_dword v%d, v%d, %s, 0 offen sc1" % (vTG, vFO, s4(sF)),
          "s_mov_b64 exec, -1",
          "%s_pub:" % lab]
    L += P1.flush_w2(60)
    L += ["s_cmp_lg_u32 s%d, 0" % sWV, "s_cbranch_scc1 %s_go" % lab,
          "s_mov_b32 s%d, 0" % sU,
          "%s_poll:" % lab,
          "buffer_load_dword v%d, v%d, %s, 0 offen sc1" % (vP, vFO, s4(sF)),
          "s_add_u32 s%d, s%d, 1" % (sU, sU),
          "s_waitcnt vmcnt(0)",
          "v_and_b32 v%d, 1, v%d" % (vP, vP),
          "v_cmp_ne_u32 vcc, v%d, v%d" % (vTG, vP),
          "s_cmp_eq_u64 vcc, 0", "s_cbranch_scc1 %s_go" % lab] + slp
    L += ["s_cmp_lt_u32 s%d, 0x8000" % sU, "s_cbranch_scc1 %s_poll" % lab,
          "%s_go:" % lab, "s_barrier"]
    L += PF.stamp()
    LA = OPT['la']
    NAB = 7

    def issue(kb):
        out = []
        for q in range(4):
            g = ["buffer_load_dwordx4 %s, v%d, %s, s%d offen sc1" % (a4(16 * (kb % NAB) + 4 * q), vAD + q, s4(sA), sSA)]
            vm.issue(('a', kb))
            if q == 3 and kb < 17:
                if kb == 13:
                    g += ["s_mov_b32 s%d, s%d" % (sSA, sAo)]
                else:
                    g += ["s_add_u32 s%d, s%d, 4096" % (sSA, sSA)]
                    if kb < 13 and OPT['rot2']:
                        g += ["s_cmp_eq_u32 s%d, s%d" % (sSA, sAe), "s_cselect_b32 s%d, s%d, s%d" % (sSA, sAh, sSA)]
            out.append(g)
        return out
    nxt = [0]
    for kb in range(OPT['la0']):
        L += sum(issue(kb), [])
        nxt[0] += 1

    def wfrag(kb, t):
        return a4(W2.AW2 + 16 * kb + 4 * t) if kb < 8 else v4(VWF + 16 * (kb & 1) + 4 * t)
    for kb in range(18):
        n = vm.wait_for(lambda g: g[0] == 'a' and g[1] <= kb)
        L += ["s_waitcnt vmcnt(%d)%s" % (n, " lgkmcnt(0)" if kb >= 8 else "")]
        L += PF.stamp()
        rd = []
        if 8 <= kb + 1 < 18:
            for h in range(2):
                rd += w2.reads(2 * (kb + 1) + h, lambda t: v2(VWF + 16 * ((kb + 1) & 1) + 4 * t + 2 * h))
        dm = []
        for _ in range(2):
            if nxt[0] < 18 and nxt[0] <= kb + LA:
                dm += issue(nxt[0])
                nxt[0] += 1
        if kb == 4:
            for q in range(4):
                dm += [["buffer_load_dword v%d, v%d, %s, 0 offen sc1" % (vG + q, vG + q, s4(sG))]]
                vm.issue(('g', 0))
        ex = []
        if kb == 13:
            ex = ["v_sub_f32 v%d, 1.0, v%d" % (vG + 4 + q, vG + q) for q in range(4)]
        if kb in (15, 16):
            for q in ((0, 1) if kb == 15 else (2, 3)):
                ex += ["v_mul_f32 v%d, v%d, v%d" % (ACH + 16 * q + i, ACH + 16 * q + i, vG + 4 + q) for i in range(16)]
        mix = dm + rd + ex
        acc = ACH if kb < 14 else ACO
        first = kb in (0, 14)
        mf = []
        for q in (1, 2, 3, 0):
            for t in range(4):
                d = v4(acc + 16 * q + 4 * t)
                mf.append("v_mfma_f32_16x16x32_bf16 %s, %s, %s, %s" % (d, wfrag(kb, t), a4(16 * (kb % NAB) + 4 * q), "0" if first else d))
        L += interleave(mf, mix)
    L += PF.stamp()
    for q in (1, 2, 3, 0):
        for i in range(0, 16, 2):
            L += ["v_pk_fma_f32 %s, %s, %s, %s op_sel_hi:[1,0,1]%s" % (v2(ACH + 16 * q + i), v2(ACO + 16 * q + i), v2((vG + q) & ~1), v2(ACH + 16 * q + i),
                                                                    "")] if False else []
        L += ["v_fma_f32 v%d, v%d, v%d, v%d" % (ACH + 16 * q + i, ACO + 16 * q + i, vG + q, ACH + 16 * q + i) for i in range(16)]
        if q:
            for t in range(4):
                L += ["ds_write_b128 v%d, %s offset:%d" % (vXW, v4(ACH + 16 * q + 4 * t), 8192 * ((q - 1) * 2 + (t >> 1)) + 1024 * (t & 1))]
    L += ["s_waitcnt lgkmcnt(0)", "s_barrier"]
    for q in range(1, 4):
        for t in range(4):
            L += ["ds_read_b128 %s, v%d offset:%d" % (v4(ACO + 16 * q + 4 * t), vXR + q - 1, 8192 * ((q - 1) * 2 + (t >> 1)) + 1024 * (t & 1))]
    for q in range(1, 4):
        L += ["s_waitcnt lgkmcnt(%d)" % (12 - 4 * q)]
        L += ["v_pk_add_f32 %s, %s, %s" % (v2(ACH + i), v2(ACH + i), v2(ACO + 16 * q + i)) for i in range(0, 16, 2)]
    for t in range(4):
        L += ["v_cvt_pk_bf16_f32 v%d, v%d, v%d" % (ACH + 4 * t, ACH + 4 * t, ACH + 4 * t + 1),
              "v_cvt_pk_bf16_f32 v%d, v%d, v%d" % (ACH + 4 * t + 1, ACH + 4 * t + 2, ACH + 4 * t + 3),
              "buffer_store_dwordx2 %s, v%d, %s, 0 offen offset:%d" % (v2(ACH + 4 * t), vOUT, s4(sO), 32 * t)]
    L += PF.stamp() + PF.dump() + ["s_endpgm"]
    return L


def gen_H():
    PF = Prof(255)
    L = PF.stamp()
    L += ["s_mul_i32 s%d, s%d, 21" % (sT, sXCD), "s_add_u32 s%d, s%d, s%d" % (sT, sT, sIDX), "s_sub_u32 s%d, s%d, 11" % (sT, sT),
          "s_mul_i32 s%d, s%d, 171" % (sCG, sT), "s_lshr_b32 s%d, s%d, 11" % (sCG, sCG),
          "s_mul_i32 s%d, s%d, 12" % (sT + 1, sCG), "s_sub_u32 s%d, s%d, s%d" % (sT, sT, sT + 1),
          "s_mul_i32 s%d, s%d, 11" % (sRB0, sT),
          "s_mul_i32 s%d, s%d, 14" % (sPID, sT), "s_add_u32 s%d, s%d, s%d" % (sPID, sPID, sCG), "s_add_u32 s%d, s%d, 88" % (sPID, sPID),
          "s_add_u32 s%d, s%d, s%d" % (sROT, sT, sCG)]
    x_setup(L, 'H')
    L += ["v_and_b32 v38, 1, v33", "v_lshlrev_b32 v38, 1, v38", "v_xor_b32 v38, v34, v38", "v_lshlrev_b32 v38, 4, v38",
          "s_movk_i32 s%d, 3584" % sT, "v_mad_u32_u24 v38, v32, s%d, v38" % sT, "v_xor_b32 v39, 64, v38",
          "s_and_b32 s%d, s%d, 1" % (sT, sWV), "s_lshl_b32 s%d, s%d, 7" % (sT, sT),
          "s_lshl_b32 s%d, s%d, 8" % (sT + 1, sCG), "s_add_u32 s%d, s%d, s%d" % (sT, sT, sT + 1)]
    for e in range(4):
        L += ["s_add_u32 s%d, s%d, %d" % (sT + 1, sT, e * (8 * 3584 - 1024)), "v_add_u32 v%d, s%d, v%d" % (vWD + e, sT + 1, 38 + (e & 1))]
    L += ["s_mul_i32 s%d, s%d, 6144" % (sMX, sWV), "s_lshl_b32 s%d, s%d, 12" % (sMW, sWV)]
    L += ["s_waitcnt lgkmcnt(0)"]
    L += srd(sX, pX, 2048 * 1024, bias=4096)
    L += ["s_cmp_lt_u32 s%d, 2" % sWV, "s_cselect_b32 s%d, s%d, s%d" % (sW, pWG, pWU), "s_cselect_b32 s%d, s%d, s%d" % (sW + 1, pWG + 1, pWU + 1),
          "s_mov_b32 s%d, %d" % (sW + 2, 512 * 3584), "s_mov_b32 s%d, 0x20000" % (sW + 3)]
    XS, WB, WS = 24576, 73728, 16384
    P1 = Phase1('H', PF, XS, WB, WS, 5, 3584, 4, None, (61, 62), list(range(240, 252)))
    lb = LdsBases(range(vRD + 4, 32))
    vx0, vx1, vw0, vw1 = vRD, vRD + 1, vRD + 2, vRD + 3
    S2 = ["v_and_b32 v40, 15, v%d" % vLANE, "v_lshrrev_b32 v41, 1, v40", "v_xor_b32 v41, v41, v33",
          "v_lshlrev_b32 v41, 4, v41", "v_lshl_add_u32 v%d, v40, 7, v41" % vx0, "v_xor_b32 v%d, 64, v%d" % (vx1, vx0)]
    S2 += ["v_lshrrev_b32 v42, 2, v40", "v_lshl_add_u32 v43, v33, 3, v42",
           "v_lshrrev_b32 v44, 1, v42", "v_and_b32 v45, 1, v33", "v_lshl_add_u32 v44, v45, 1, v44",
           "s_and_b32 s%d, s%d, 1" % (sT, sWV), "s_lshl_b32 s%d, s%d, 1" % (sT, sT), "v_xor_b32 v44, s%d, v44" % sT,
           "v_lshlrev_b32 v44, 5, v44", "v_lshl_add_u32 v43, v43, 7, v44",
           "v_and_b32 v45, 3, v%d" % vLANE, "v_lshl_add_u32 v43, v45, 3, v43",
           "s_lshr_b32 s%d, s%d, 1" % (sT, sWV), "s_lshl_b32 s%d, s%d, 12" % (sT, sT),
           "v_add_u32 v%d, s%d, v43" % (vw0, sT), "v_xor_b32 v%d, 32, v%d" % (vw1, vw0)]
    AW, AX = 0, 32

    def xreads(t, buf, xo):
        out = []
        for b in range(11):
            r, o = lb.addr(vx1 if (t & 1) else vx0, xo + 2048 * b)
            out.append("ds_read_b128 %s, v%d offset:%d" % (a4(AX + 44 * buf + 4 * b), r, o))
        return out

    def wreads(t, buf, wo):
        out = []
        for q in range(4):
            for h in range(2):
                r, o = lb.addr(vw1 if (q & 1) else vw0, wo + (8192 if q >= 2 else 0) + 512 * h)
                out.append("ds_read_b64_tr_b16 %s, v%d offset:%d" % (a2(AW + 16 * buf + 4 * q + 2 * h), r, o))
        return out

    def mfmas(t, buf):
        out = []
        for b in range(11):
            for q in range(4):
                d = v4(ACC + 16 * b + 4 * q)
                out.append("v_mfma_f32_16x16x32_bf16 %s, %s, %s, %s" % (d, a4(AW + 16 * buf + 4 * q), a4(AX + 44 * buf + 4 * b), d if t else "0"))
        return out
    vST = 60
    ES = ["s_mov_b32 s%d, 0x%x" % (sC0, NLOG2E), "s_mov_b32 s%d, 0x%x" % (sC0 + 1, NLOG2E),
          "s_mov_b32 s%d, 1.0" % (sC0 + 2), "s_mov_b32 s%d, 1.0" % (sC0 + 3),
          ["s_lshl_b32 s%d, s%d, 2" % (sU, sCG), "s_add_u32 s%d, s%d, s%d" % (sU, sU, sWV)],
          ["s_add_u32 s%d, s%d, 16" % (sU, sU), "s_lshl_b32 s%d, s%d, 12" % (sU, sU)],
          "v_lshlrev_b32 v%d, 4, v%d" % (vST, vLANE), "v_add_u32 v%d, s%d, v%d" % (vST, sU, vST)]
    so = store_offsets(11, sRB0)
    pro = P1.prologue()
    body = P1.main(xreads, wreads, mfmas, {5: ES + P1.w2.setup_dma(), 6: P1.w2.setup_rd(), 7: so[:17], 8: so[17:], 15: flag_setup(P1.vm)})
    L += pro + S2 + lb.setup + late_scalar_setup() + body
    L += [tag_load()]
    P1.vm.issue(('tag', 0))
    for b in range(11):
        base = ACC + 16 * b
        G = [base + i for i in range(8)]
        U = [base + 8 + i for i in range(8)]
        L += ["v_pk_mul_f32 %s, %s, s[%d:%d]" % (v2(G[i]), v2(G[i]), sC0, sC0 + 1) for i in range(0, 8, 2)]
        L += ["v_exp_f32 v%d, v%d" % (g, g) for g in G]
        L += P1.epi_slot(b)
        L += ["v_pk_add_f32 %s, %s, s[%d:%d]" % (v2(G[i]), v2(G[i]), sC0 + 2, sC0 + 3) for i in range(0, 8, 2)]
        L += ["v_rcp_f32 v%d, v%d" % (g, g) for g in G]
        L += ["v_pk_mul_f32 %s, %s, %s" % (v2(U[i]), v2(U[i]), v2(G[i])) for i in range(0, 8, 2)]
        L += ["v_cvt_pk_bf16_f32 v%d, v%d, v%d" % (G[i], U[2 * i], U[2 * i + 1]) for i in range(4)]
        L += ["buffer_store_dwordx4 %s, v%d, %s, s%d offen sc1" % (v4(base), vST, s4(sA), sST + b)]
        P1.vm.issue(('st', b))
    L += PF.stamp()
    L += P1.epi_slot(20, ndma=OPT['postdma'], nrd=16)
    L += phase2(P1, PF, "H")
    return L


def gen_Q():
    PF = Prof(10 if False else 31)
    L = PF.stamp()
    L += ["s_mov_b32 s%d, s%d" % (sCG, sXCD), "s_mul_i32 s%d, s%d, 12" % (sRB0, sIDX),
          "s_lshl_b32 s%d, s%d, 3" % (sPID, sIDX), "s_add_u32 s%d, s%d, s%d" % (sPID, sPID, sXCD),
          "s_add_u32 s%d, s%d, s%d" % (sROT, sIDX, sXCD), "s_add_u32 s%d, s%d, 2" % (sROT, sROT)]
    x_setup(L, 'Q')
    L += ["s_lshl_b32 s%d, s%d, 4" % (sT, sRB0), "s_add_u32 s%d, s%d, s%d" % (sT, sT, sWV),
          "s_sub_u32 s%d, s%d, 16" % (sT, sT), "s_lshl_b32 s%d, s%d, 10" % (sT, sT), "s_add_u32 s%d, s%d, 4096" % (sT, sT),
          "s_cmp_eq_u32 s%d, 0" % sRB0, "s_cselect_b32 s%d, 0x%x, s%d" % (sT, BIG, sT),
          "s_cmp_ge_u32 s%d, 2" % sWV, "s_cselect_b32 s%d, 0x%x, s%d" % (sT, BIG, sT),
          "s_and_b32 s%d, s%d, 1" % (sT + 1, sWV), "s_lshl_b32 s%d, s%d, 6" % (sT + 1, sT + 1),
          "v_xor_b32 v38, s%d, v36" % (sT + 1), "v_add_u32 v%d, s%d, v38" % (vXD + 6, sT)]
    L += ["v_and_b32 v38, 1, v33", "v_lshlrev_b32 v38, 1, v38", "v_xor_b32 v38, v34, v38", "v_lshlrev_b32 v38, 4, v38",
          "s_movk_i32 s%d, 3072" % sT, "v_mad_u32_u24 v38, v32, s%d, v38" % sT,
          "s_mul_i32 s%d, s%d, 3" % (sT, sWV), "s_lshl_b32 s%d, s%d, 7" % (sT + 4, sCG)]
    for e in range(3):
        L += ["s_add_u32 s%d, s%d, %d" % (sT + 1, sT, e),
              "s_and_b32 s%d, s%d, 3" % (sT + 2, sT + 1), "s_mul_i32 s%d, s%d, %d" % (sT + 2, sT + 2, 8 * 3072),
              "s_lshr_b32 s%d, s%d, 2" % (sT + 3, sT + 1), "s_lshl_b32 s%d, s%d, 10" % (sT + 3, sT + 3),
              "s_add_u32 s%d, s%d, s%d" % (sT + 2, sT + 2, sT + 3), "s_add_u32 s%d, s%d, s%d" % (sT + 2, sT + 2, sT + 4),
              "s_sub_u32 s%d, s%d, %d" % (sT + 2, sT + 2, 1024 * e),
              "s_and_b32 s%d, s%d, 1" % (sT + 1, sT + 1), "s_lshl_b32 s%d, s%d, 6" % (sT + 1, sT + 1),
              "v_xor_b32 v39, s%d, v38" % (sT + 1), "v_add_u32 v%d, s%d, v39" % (vWD + e, sT + 2)]
    L += ["s_mul_i32 s%d, s%d, 6144" % (sMX, sWV), "s_mul_i32 s%d, s%d, 3072" % (sMW, sWV), "s_lshl_b32 s%d, s%d, 10" % (sM7, sWV)]
    L += ["v_lshlrev_b32 v39, 2, v32", "s_mov_b32 s%d, 0x%x" % (sT, OPT['masks'] & 0x77777777),
          "v_lshrrev_b32 v39, v39, s%d" % sT, "s_and_b32 s%d, s%d, 7" % (sT + 1, sROT), "v_and_b32 v39, s%d, v39" % (sT + 1),
          "v_xor_b32 v39, v39, v32", "v_lshl_add_u32 v39, v39, 3, v34", "v_lshlrev_b32 v39, 4, v39"]
    L += ["s_waitcnt lgkmcnt(0)"]
    L += srd(sX, pX, 2048 * 1024, bias=4096) + srd(sW, pQKV, 512 * 3072) + srd(sG, pGW, 1024)
    XS, WB, WS, NWS = 28672, 86016, 12288, 6
    GW = WB + NWS * WS
    L += ["s_mov_b32 m0, %d" % GW, "s_nop 0", "buffer_load_dwordx4 v39, %s, 0 offen lds" % s4(sG)]
    P1 = Phase1('Q', PF, XS, WB, WS, NWS, 3072, 3, (GW, GW + 1024), (12, 0), [2, 3, 4, 5, 6, 7, 8, 9, 10, 28, 29, 30])
    lb = LdsBases(range(vRD + 9, 28))
    lb2 = LdsBases(range(46, 60))
    vx0, vx1, vw0, vw1, vh0, vh1, vt0, vt1, vg = [vRD + i for i in range(9)]
    S2 = ["v_and_b32 v40, 15, v%d" % vLANE, "v_lshrrev_b32 v41, 1, v40", "v_xor_b32 v41, v41, v33",
          "v_lshlrev_b32 v41, 4, v41", "v_lshl_add_u32 v42, v40, 7, v41",
          "s_lshr_b32 s%d, s%d, 1" % (sT, sWV), "s_mul_i32 s%d, s%d, %d" % (sT + 1, sT, 6 * 2048),
          "v_add_u32 v%d, s%d, v42" % (vx0, sT + 1), "v_xor_b32 v%d, 64, v%d" % (vx1, vx0)]
    S2 += ["s_lshl_b32 s%d, s%d, 2" % (sT + 1, sCG), "s_add_u32 s%d, s%d, s%d" % (sT + 1, sT + 1, sWV),
           "s_min_u32 s%d, s%d, 11" % (sT + 1, sT + 1), "s_lshl_b32 s%d, s%d, 11" % (sT + 1, sT + 1),
           "v_add_u32 v%d, s%d, v42" % (vt0, sT + 1), "v_xor_b32 v%d, 64, v%d" % (vt1, vt0)]
    S2 += ["v_or_b32 v43, 8, v40", "v_lshrrev_b32 v44, 1, v43", "v_xor_b32 v44, v44, v33", "v_lshlrev_b32 v44, 4, v44",
           "v_lshl_add_u32 v44, v43, 7, v44",
           "v_lshrrev_b32 v45, 3, v40", "v_lshl_add_u32 v44, v45, 11, v44", "v_add_u32 v44, %d, v44" % (4 * 2048),
           "v_add_u32 v45, %d, v42" % (12 * 2048),
           "s_cmp_eq_u32 s%d, 0" % sT, "s_cselect_b64 vcc, -1, 0",
           "v_cndmask_b32 v%d, v44, v45, vcc" % vh0, "v_xor_b32 v%d, 64, v%d" % (vh1, vh0)]
    S2 += ["v_lshrrev_b32 v42, 2, v40", "v_lshl_add_u32 v43, v33, 3, v42",
           "v_lshrrev_b32 v44, 1, v42", "v_and_b32 v45, 1, v33", "v_lshl_add_u32 v44, v45, 1, v44",
           "s_and_b32 s%d, s%d, 1" % (sT, sWV), "s_lshl_b32 s%d, s%d, 1" % (sT, sT), "v_xor_b32 v44, s%d, v44" % sT,
           "v_lshlrev_b32 v44, 5, v44", "v_lshl_add_u32 v43, v43, 7, v44",
           "v_and_b32 v45, 3, v%d" % vLANE, "v_lshl_add_u32 v%d, v45, 3, v43" % vw0,
           "v_xor_b32 v%d, 32, v%d" % (vw1, vw0),
           "v_lshlrev_b32 v45, 4, v33", "v_add_u32 v%d, %d, v45" % (vg, GW)]
    AW, AX = 0, 48

    def Qa(hh, b): return ACC + 4 * (hh * 20 + b)
    def Ka(hh, b): return ACC + 4 * (hh * 20 + 6 + b)
    def Va(hh, b): return ACC + 4 * (hh * 20 + 13 + b)
    TA = ACC + 160

    def xreads(t, buf, xo):
        out = []
        for b in range(6):
            r, o = lb.addr(vx1 if (t & 1) else vx0, xo + 2048 * b)
            out.append("ds_read_b128 %s, v%d offset:%d" % (a4(AX + 36 * buf + 4 * b), r, o))
        r, o = lb.addr(vh1 if (t & 1) else vh0, xo)
        out.append("ds_read_b128 %s, v%d offset:%d" % (a4(AX + 36 * buf + 24), r, o))
        r, o = lb.addr(vt1 if (t & 1) else vt0, xo)
        out.append("ds_read_b128 %s, v%d offset:%d" % (a4(AX + 36 * buf + 28), r, o))
        out.append("ds_read_b128 %s, v%d offset:%d" % (a4(AX + 36 * buf + 32), vg, 64 * t))
        return out

    def wreads(t, buf, wo):
        out = []
        for seg in range(3):
            for hh in range(2):
                for h in range(2):
                    r, o = lb2.addr(vw1 if hh else vw0, wo + 4096 * seg + 512 * h)
                    out.append("ds_read_b64_tr_b16 %s, v%d offset:%d" % (a2(AW + 24 * buf + 4 * (seg * 2 + hh) + 2 * h), r, o))
        return out

    def mfmas(t, buf):
        out = []
        W = lambda seg, hh: a4(AW + 24 * buf + 4 * (seg * 2 + hh))
        for b in range(7):
            X = a4(AX + 36 * buf + 4 * b)
            for hh in range(2):
                if b < 6:
                    d = v4(Qa(hh, b)); out.append("v_mfma_f32_16x16x32_bf16 %s, %s, %s, %s" % (d, W(0, hh), X, d if t else "0"))
                d = v4(Ka(hh, b)); out.append("v_mfma_f32_16x16x32_bf16 %s, %s, %s, %s" % (d, W(1, hh), X, d if t else "0"))
                d = v4(Va(hh, b)); out.append("v_mfma_f32_16x16x32_bf16 %s, %s, %s, %s" % (d, X, W(2, hh), d if t else "0"))
        d = v4(TA)
        out.append("v_mfma_f32_16x16x32_bf16 %s, %s, %s, %s" % (d, a4(AX + 36 * buf + 32), a4(AX + 36 * buf + 28), d if t else "0"))
        return out
    MC, MP, MH0, MH1, AM, ONES, SPARE = 228, 232, 236, 240, 244, 248, 252
    vST, vGO = 250, 251
    ES = [srd(sG, pWS, 8192, add=G_OFF),
          "s_mov_b32 s%d, 0x%x" % (sC0, SCL), "s_mov_b32 s%d, 0x%x" % (sC0 + 1, NLOG2E),
          ["s_lshl_b32 s%d, s%d, 1" % (sU, sCG), "s_and_b32 s%d, s%d, 1" % (sU + 1, sWV)],
          ["s_add_u32 s%d, s%d, s%d" % (sU, sU, sU + 1), "s_lshl_b32 s%d, s%d, 12" % (sU, sU)],
          "v_lshlrev_b32 v%d, 4, v%d" % (vST, vLANE), "v_add_u32 v%d, s%d, v%d" % (vST, sU, vST),
          ["s_lshl_b32 s%d, s%d, 2" % (sU, sCG), "s_add_u32 s%d, s%d, s%d" % (sU, sU, sWV)],
          ["s_add_u32 s%d, s%d, s%d" % (sU + 1, sU, sRB0), "s_lshl_b32 s%d, s%d, 6" % (sU + 1, sU + 1)],
          ["s_cmp_lt_u32 s%d, 12" % sU, "s_cselect_b32 s%d, s%d, 0x%x" % (sU + 1, sU + 1, BIG)],
          "v_lshl_add_u32 v%d, v%d, 2, s%d" % (vGO, vLANE, sU + 1),
          "v_mov_b32 v%d, 0x%x" % (SPARE, BIG),
          "v_cmp_gt_u32 vcc, 16, v%d" % vLANE,
          "v_mov_b32 v%d, 0x3f803f80" % ONES, "v_mov_b32 v%d, 0x3f803f80" % (ONES + 1),
          "v_cndmask_b32 v%d, v%d, v%d, vcc" % (vGO, SPARE, vGO),
          ["s_lshr_b32 s%d, s%d, 1" % (sU + 2, sWV), "s_mul_i32 s%d, s%d, 6" % (sU + 2, sU + 2)],
          "s_add_u32 s%d, s%d, s%d" % (sU + 2, sU + 2, sRB0)]
    so = store_offsets(6, sU + 2)
    HV, HV2 = sU + 4, sU + 6
    ES2 = ["v_and_b32 v%d, 15, v%d" % (SPARE, vLANE), "v_lshrrev_b32 v%d, 4, v%d" % (SPARE + 1, vLANE),
           "v_lshlrev_b32 v%d, 2, v%d" % (SPARE + 1, SPARE + 1), "v_sub_u32 v%d, v%d, v%d" % (SPARE, SPARE, SPARE + 1),
           "v_mov_b32 v%d, 0xff800000" % (SPARE + 2),
           ["s_lshr_b32 s%d, s%d, 1" % (sU, sWV), "s_or_b32 s%d, s%d, s%d" % (sU, sU, sRB0)],
           ["s_cmp_lg_u32 s%d, 0" % sU, "s_cselect_b64 s[%d:%d], -1, 0" % (HV, HV + 1)],
           ["s_mov_b32 s%d, s%d" % (HV2, HV), "s_mov_b32 s%d, 0" % (HV2 + 1)],
           "v_mov_b32 v%d, 0" % AM, "v_mov_b32 v%d, 0" % (AM + 1)]
    ES3 = []
    for r in range(4):
        ES3 += ["v_subrev_u32 v%d, %d, v%d" % (SPARE + 3, r, SPARE), "v_cmp_gt_u32 vcc, 8, v%d" % (SPARE + 3),
                "v_mov_b32 v%d, 0x%x" % (SPARE + 1, 0xffff0000 if (r & 1) else 0xffff),
                "v_add_u32 v%d, %d, v%d" % (SPARE + 3, 16 - r, SPARE),
                "v_cndmask_b32 v%d, v%d, 0, vcc" % (MC + r, SPARE + 2),
                "v_cndmask_b32 v%d, 0, v%d, vcc" % (SPARE + 1, SPARE + 1),
                "v_cmp_gt_u32 vcc, 8, v%d" % (SPARE + 3),
                "v_or_b32 v%d, v%d, v%d" % (AM + (r >> 1), AM + (r >> 1), SPARE + 1),
                "v_add_u32 v%d, %d, v%d" % (SPARE + 3, 8 - r, SPARE),
                "v_cndmask_b32 v%d, v%d, 0, vcc" % (MP + r, SPARE + 2),
                "s_and_b64 vcc, vcc, s[%d:%d]" % (HV, HV + 1),
                "v_cndmask_b32 v%d, v%d, 0, vcc" % (MH1 + r, SPARE + 2),
                "v_cmp_gt_u32 vcc, 8, v%d" % (SPARE + 3),
                "s_and_b64 vcc, vcc, s[%d:%d]" % (HV2, HV2 + 1),
                "v_cndmask_b32 v%d, v%d, 0, vcc" % (MH0 + r, SPARE + 2)]
    ES3 += ["v_not_b32 v%d, v%d" % (AM + 2, AM), "v_not_b32 v%d, v%d" % (AM + 3, AM + 1)]
    TL = ["s_lshl_b32 s%d, s%d, 12" % (sT, sXCD), "s_lshl_b32 s%d, s%d, 3" % (sT + 1, sXCD),
          "s_lshl_b32 s%d, s%d, 4" % (sT + 2, sWV), "s_add_u32 s%d, s%d, s%d" % (sT + 2, sT + 2, sIDX),
          "s_cmp_eq_u32 s%d, 10" % (sT + 2), "s_cselect_b32 s%d, s%d, 0x%x" % (sT, sT, BIG), "s_cselect_b32 s%d, s%d, 0x%x" % (sT + 1, sT + 1, BIG),
          "v_and_b32 v60, 31, v%d" % vLANE, "v_lshl_add_u32 v60, v60, 7, s%d" % sT,
          "v_lshl_add_u32 v62, v%d, 24, s%d" % (vLANE, sT + 1),
          "buffer_load_dword v60, v60, %s, 0 offen sc1" % s4(sF)]
    TP = ["v_and_b32 v60, 1, v60", "v_cmp_eq_u32 vcc, 0, v60", "v_mov_b32 v61, 1", "v_mov_b32 v60, vcc_lo",
          "buffer_store_dwordx2 v[60:61], v62, %s, 0 offen sc1" % s4(sD)]
    pro = P1.prologue()
    P1.vm.issue(('tp', 0))
    body = P1.main(xreads, wreads, mfmas, {3: ES, 4: so, 5: ES2 + P1.w2.setup_dma(), 6: ES3[:21], 7: ES3[21:42], 8: ES3[42:], 11: P1.w2.setup_rd(), 2: TP, 15: flag_setup(P1.vm)}, {2: ('tp', 0)})
    L += pro + S2 + lb.setup + lb2.setup + late_scalar_setup() + TL + body
    L += [tag_load()]
    P1.vm.issue(('tag', 0))
    VB = 32
    def Vb(hh, par, k): return VB + 16 * hh + 8 * par + 2 * k
    def cvt2(dst, src): return ["v_cvt_pk_bf16_f32 v%d, v%d, v%d" % (dst, src, src + 1), "v_cvt_pk_bf16_f32 v%d, v%d, v%d" % (dst + 1, src + 2, src + 3)]
    units = [(hh, b) for b in range(6) for hh in range(2)]
    seg = [0]

    def slot():
        seg[0] += 1
        return P1.epi_slot(seg[0] - 1)
    for b in range(6):
        for hh in range(2):
            L += cvt2(Qa(hh, b), Qa(hh, b)) + cvt2(Qa(hh, b) + 2, Ka(hh, b)) + cvt2(Vb(hh, b & 1, 1 + (b >> 1)), Va(hh, b))
        if b in (1, 4):
            L += slot()
    for hh in range(2):
        L += cvt2(Ka(hh, 6), Ka(hh, 6)) + cvt2(Vb(hh, 0, 0), Va(hh, 6)) + cvt2(Vb(hh, 1, 0), Va(hh, 6))
    L += ["v_mul_f32 v%d, s%d, v%d" % (TA, sC0 + 1, TA), "v_exp_f32 v%d, v%d" % (TA, TA)]
    mf = []
    for (hh, b) in units:
        mf += ["v_mfma_f32_16x16x16_bf16 %s, %s, %s, %s" % (v4(Ka(hh, b)), v2(Qa(hh, b) + 2), v2(Qa(hh, b)), v4(MC))]
        kp = Ka(hh, 6) if b < 2 else Qa(hh, b - 2) + 2
        mk = MH0 if b == 0 else MH1 if b == 1 else MP
        mf += ["v_mfma_f32_16x16x16_bf16 %s, %s, %s, %s" % (v4(Va(hh, b)), v2(kp), v2(Qa(hh, b)), v4(mk))]
    mx = []
    for (hh, b) in units:
        S, P = Ka(hh, b), Va(hh, b)
        mx += ["v_max_f32 v%d, v%d, v%d" % (S + r, S + r, P + r) for r in range(4)]
        mx += ["v_max3_f32 v%d, v%d, v%d, v%d" % (P, S, S + 1, S + 2), "v_max_f32 v%d, v%d, v%d" % (P, P, S + 3)]
    L += interleave(mf[:8], slot()) + interleave(mf[8:], mx[:32])
    L += ["v_add_f32 v%d, 1.0, v%d" % (TA, TA), "v_rcp_f32 v%d, v%d" % (TA, TA)]
    L += mx[32:]
    L += ["buffer_store_dword v%d, v%d, %s, 0 offen sc1" % (TA, vGO, s4(sG))]
    P1.vm.issue(('st', 100))
    L += slot()
    grp = [[Va(*units[4 * k + i]) for i in range(4)] for k in range(3)]
    for A, B, C, D in grp:
        L += ["v_permlane32_swap_b32 v%d, v%d" % (A, B), "v_permlane32_swap_b32 v%d, v%d" % (C, D)]
    for A, B, C, D in grp:
        L += ["v_max_f32 v%d, v%d, v%d" % (A, A, B), "v_max_f32 v%d, v%d, v%d" % (C, C, D)]
    for A, B, C, D in grp:
        L += ["v_permlane16_swap_b32 v%d, v%d" % (A, C)]
    for A, B, C, D in grp:
        L += ["v_max_f32 v%d, v%d, v%d" % (A, A, C)]
    for A, B, C, D in grp:
        L += ["v_mul_f32 v%d, s%d, v%d" % (C, sC0, A)]
    for A, B, C, D in grp:
        L += ["v_mul_f32 v%d, s%d, v%d" % (A, sC0, A)]
    for A, B, C, D in grp:
        L += ["v_permlane16_swap_b32 v%d, v%d" % (A, C)]
    for A, B, C, D in grp:
        L += ["v_mov_b32 v%d, v%d" % (B, A), "v_mov_b32 v%d, v%d" % (D, C)]
    for A, B, C, D in grp:
        L += ["v_permlane32_swap_b32 v%d, v%d" % (A, B), "v_permlane32_swap_b32 v%d, v%d" % (C, D)]
    prevP = SPARE
    sums = {}
    pend_mf = []
    for k in range(0, 12, 2):
        us = units[k:k + 2]
        L += slot()
        a = []
        for (hh, b) in us:
            S, P = Ka(hh, b), Va(hh, b)
            a += ["v_fma_f32 v%d, v%d, s%d, -v%d" % (S + r, S + r, sC0, P) for r in range(4)]
        L += interleave(pend_mf, a) if pend_mf else a
        for (hh, b) in us:
            S = Ka(hh, b)
            L += ["v_exp_f32 v%d, v%d" % (S + r, S + r) for r in range(4)]
        for (hh, b) in us:
            L += cvt2(Va(hh, b) + 2, Ka(hh, b))
        for (hh, b) in us:
            P, Q = Va(hh, b), Qa(hh, b)
            L += ["v_and_b32 v%d, v%d, v%d" % (Q, P + 2, AM + 2), "v_and_b32 v%d, v%d, v%d" % (Q + 1, P + 3, AM + 3),
                  "v_and_b32 v%d, v%d, v%d" % (Q + 2, P + 2, AM), "v_and_b32 v%d, v%d, v%d" % (Q + 3, P + 3, AM + 1)]
        pend_mf = []
        for (hh, b) in us:
            P = Va(hh, b)
            pend_mf += ["v_mfma_f32_16x16x16_bf16 %s, %s, %s, 0" % (v4(prevP), v2(ONES), v2(P + 2))]
            sums[(hh, b)] = prevP
            prevP = P
        for (hh, b) in us:
            pend_mf += ["v_mfma_f32_16x16x32_bf16 %s, %s, %s, 0" % (v4(Ka(hh, b)), v4(Vb(hh, b & 1, b >> 1)), v4(Qa(hh, b)))]
    rc = ["v_rcp_f32 v%d, v%d" % (sums[u], sums[u]) for u in units]
    L += interleave(pend_mf, rc[:4]) + rc[4:]
    for b in range(6):
        for hh in range(2):
            S = Ka(hh, b)
            sm = sums[(hh, b)]
            L += ["v_pk_mul_f32 %s, %s, %s op_sel_hi:[1,0]" % (v2(S + r), v2(S + r), v2(sm)) for r in (0, 2)]
        for hh in range(2):
            L += cvt2(Qa(0, b) + 2 * hh, Ka(hh, b))
        L += ["buffer_store_dwordx4 %s, v%d, %s, s%d offen sc1" % (v4(Qa(0, b)), vST, s4(sA), sST + b)]
        P1.vm.issue(('st', b))
    L += PF.stamp()
    L += P1.epi_slot(20, ndma=OPT['postdma'], nrd=16)
    L += phase2(P1, PF, "Q")
    return L


def main():
    K = NAME + "_kernel"
    L = [K + ":", "s_cmp_ge_u32 s2, 256", "s_cbranch_scc1 L_exit",
         "s_load_dwordx8 s[4:11], s[0:1], 0", "s_load_dwordx8 s[12:19], s[0:1], 32",
         "s_load_dwordx4 s[20:23], s[0:1], 64", "s_load_dwordx2 s[24:25], s[0:1], 80",
         "v_lshrrev_b32 v2, 6, v0", "v_and_b32 v%d, 63, v0" % vLANE, "v_readfirstlane_b32 s%d, v2" % sWV,
         "s_and_b32 s%d, s2, 7" % sXCD, "s_lshr_b32 s%d, s2, 3" % sIDX, "s_cmp_lt_u32 s%d, 11" % sIDX, "s_cbranch_scc1 L_Q"]
    pf = ["s_getpc_b64 s[26:27]", "v_lshlrev_b32 v63, 7, v0", "global_load_dword v63, v63, s[26:27]"] if OPT['iprefetch'] else []
    rep = {}
    H = fix_hazards(["s_nop 3"] + pf + gen_H(), rep)
    sys.stderr.write("H: %d lines, nops %d\n" % (len(H), rep['nops']))
    Q = fix_hazards(["s_nop 3"] + pf + gen_Q(), rep)
    sys.stderr.write("Q: %d lines, nops %d\n" % (len(Q), rep['nops']))
    out = ["; generated by gen2.py: single persistent kernel, flag hand-off between GEMM1 and GEMM2",
           "; @launch grid=(256,1,1) block=(256,1,1) lds=163840",
           '.amdgcn_target "amdgcn-amd-amdhsa--gfx950"', ".text", ".globl " + K, ".p2align 8", ".type %s,@function" % K]
    out += fix_hazards(L) + H + ["L_exit:", "s_endpgm", ".p2align 6", "L_Q:"] + Q
    out += [".p2align 8", ".fill 4096, 4, 0xbf800000", "s_endpgm"]
    out += ['.section .rodata,"a"', ".p2align 6", """.amdhsa_kernel %s
  .amdhsa_next_free_vgpr 512
  .amdhsa_next_free_sgpr 102
  .amdhsa_accum_offset 256
  .amdhsa_group_segment_fixed_size 0
  .amdhsa_kernarg_size 88
  .amdhsa_user_sgpr_count 2
  .amdhsa_user_sgpr_kernarg_segment_ptr 1
  .amdhsa_system_sgpr_workgroup_id_x 1
.end_amdhsa_kernel""" % K]
    print("\n".join(out))


main()
```

```python
import sys
from asmlib import *

NAME = "gated_mix__sliding_local_dilated__glu_gated_glu__prompt"
A2_BYTES = 32 * 72 * 4096
G_OFF = A2_BYTES
F_OFF = A2_BYTES + 8192
MT_STRIDE = 72 * 4096
NLOG2E = 0xbfb8aa3b
SCL = 0x3eb8aa3b
BIG = 0x40000000

OPT = dict(masks=0x33333333, pk=1, iprefetch=1, prof=0, maxd=11, rot2=1, flags=0, la=6, la0=3, rdmain=1, npro=20, sleep=1, edma=2, postdma=6, maxd2=8, rnt=7, rmt=3, diag=-1, diagc=0, c0=-1, c1=-1, sel=0, warm=1, warmt=1, spread=1, outsc=0, wt=2, rota=1, rotb=1, rotq=2)
for a in sys.argv[1:]:
    if '=' in a:
        k, v = a.split('=')
        assert k in OPT, k
        OPT[k] = int(v, 0)

pX, pQKV, pWO, pWG, pWU, pWD, pGW, pOUT, pDBG, pWS = 4, 6, 8, 12, 14, 16, 18, 20, 22, 24
sX, sW, sA, sG, sWO, sWD, sO, sD = 28, 32, 36, 40, 44, 48, 52, 56
sWV, sRB0, sCG, sXCD, sIDX, sKX, sKW, sMX, sMW, sM7, sROT, sM2 = 60, 61, 62, 63, 64, 65, 66, 67, 68, 69, 70, 71
sMT, sNT, sW2o, sW2h, sW2e, sS2, sAo, sAh, sAe, sSA = 72, 73, 74, 75, 76, 77, 78, 79, 80, 81
sC0 = 82
sST = 86
sF = 20
sPID = 98
sK = 97
sT = 88
sU = 4
vLANE = 1
vXD, vWD, vRD = 2, 9, 13
ACC = 64


def v4(b): return "v[%d:%d]" % (b, b + 3)
def v2(b): return "v[%d:%d]" % (b, b + 1)
def a4(b): return "a[%d:%d]" % (b, b + 3)
def a2(b): return "a[%d:%d]" % (b, b + 1)
def s4(b): return "s[%d:%d]" % (b, b + 3)


class Prof:
    def __init__(self, vreg):
        self.n = 0
        self.v = vreg

    def stamp(self):
        self.n += 1
        if OPT['diag'] >= 0:
            L = []
            if OPT['diag'] == self.n - 1:
                L += ["s_memrealtime s[100:101]", "s_waitcnt lgkmcnt(0)", "s_mov_b32 s99, s100"]
            if OPT['c0'] == self.n - 1:
                L += ["s_memtime s[100:101]", "s_waitcnt lgkmcnt(0)", "s_mov_b32 s3, s100"]
            if OPT['c1'] == self.n - 1:
                L += ["s_memtime s[100:101]", "s_waitcnt lgkmcnt(0)", "s_sub_u32 s3, s100, s3"]
            return L
        if not OPT['prof']:
            return []
        if OPT['sel'] and not (OPT['sel'] >> (self.n - 1)) & 1:
            return []
        return ["%s s[100:101]" % ("s_memtime" if OPT['prof'] == 1 else "s_memrealtime"), "s_waitcnt lgkmcnt(0)", "v_writelane_b32 v%d, s100, %d" % (self.v, self.n - 1)]

    def xstamp(self, lane):
        if OPT['prof'] != 2:
            return []
        return ["s_memrealtime s[100:101]", "s_waitcnt lgkmcnt(0)", "v_writelane_b32 v%d, s100, %d" % (self.v, lane)]

    def dump(self):
        if OPT['diag'] >= 0:
            lab = "D%d" % self.v
            L = ["s_waitcnt vmcnt(0)"] + self.stamp() + ["s_mov_b32 s4, 10000"]
            if OPT['c0'] >= 0:
                L += ["s_lshr_b32 s3, s3, 2", "s_add_u32 s4, s3, 5000"]
            L += ["s_mov_b32 s5, 0", lab + ":", "s_memrealtime s[100:101]", "s_waitcnt lgkmcnt(0)", "s_sub_u32 s6, s100, s99",
                  "s_add_u32 s5, s5, 1", "s_cmp_gt_u32 s5, 100000", "s_cbranch_scc1 %s_x" % lab,
                  "s_cmp_lt_u32 s6, s4", "s_cbranch_scc1 " + lab, lab + "_x:"]
            return L
        if not OPT['prof']:
            return []
        L = ["s_waitcnt vmcnt(0)"] + self.stamp()
        L += ["s_memrealtime s[100:101]", "s_waitcnt lgkmcnt(0)", "v_writelane_b32 v%d, s100, 63" % self.v]
        L += ["s_lshl_b32 s100, s2, 2", "s_add_u32 s100, s100, s%d" % sWV, "s_lshl_b32 s100, s100, 8",
              "s_add_u32 s100, s100, %d" % (16 << 20), "v_lshl_add_u32 v2, v%d, 2, s100" % vLANE,
              "global_store_dword v2, v%d, s[%d:%d]" % (self.v, pWS, pWS + 1)]
        return L


def srd(d, p, nbytes, bias=0, add=0):
    L = []
    if bias:
        L += ["s_sub_u32 s%d, s%d, %d" % (d, p, bias), "s_subb_u32 s%d, s%d, 0" % (d + 1, p + 1)]
    elif add:
        L += ["s_add_u32 s%d, s%d, %d" % (d, p, add), "s_addc_u32 s%d, s%d, 0" % (d + 1, p + 1)]
    else:
        L += ["s_mov_b32 s%d, s%d" % (d, p), "s_mov_b32 s%d, s%d" % (d + 1, p + 1)]
    L += ["s_mov_b32 s%d, 0x%x" % (d + 2, nbytes + bias), "s_mov_b32 s%d, 0x20000" % (d + 3)]
    return L


class LdsBases:
    def __init__(self, regs, chunk=0xC000):
        self.regs = list(regs)
        self.map = {}
        self.setup = []
        self.chunk = chunk

    def addr(self, patreg, off):
        ch = off // self.chunk
        if ch == 0:
            return patreg, off
        key = (patreg, ch)
        if key not in self.map:
            r = self.regs.pop(0)
            self.map[key] = r
            self.setup.append("v_add_u32 v%d, 0x%x, v%d" % (r, ch * self.chunk, patreg))
        return self.map[key], off - ch * self.chunk


class Dma:
    def __init__(self, stream, tag, m0, pre, text, avail, need):
        self.stream, self.tag, self.m0, self.pre, self.text, self.avail, self.need = stream, tag, m0, pre, text, avail, need


class Sched:
    def __init__(self, vm):
        self.vm = vm
        self.streams = {}
        self.m0 = None

    def add(self, d):
        self.streams.setdefault(d.stream, []).append(d)

    def take(self, slot, cap):
        picked = []
        while len(picked) < cap:
            best = None
            for s, q in self.streams.items():
                if q and q[0].avail is not None and q[0].avail <= slot:
                    if best is None or q[0].need < self.streams[best][0].need:
                        best = s
            if best is None:
                break
            picked.append(self.streams[best].pop(0))
        groups = [[]]
        for d in picked:
            setup = list(d.pre)
            if d.m0 != self.m0:
                setup.append("s_add_u32 m0, s%d, %d" % d.m0)
                self.m0 = d.m0
            groups[-1] += setup
            groups.append([d.text])
            self.vm.issue(d.tag)
        return [g for g in groups if g], picked

    def pending(self):
        return sum(len(q) for q in self.streams.values())


def stage_pre(s, dst, mul):
    m = (OPT['masks'] >> (4 * s)) & 7
    if m == 0:
        return ["s_mov_b32 s%d, %d" % (dst, s * mul)]
    return ["s_and_b32 s%d, s%d, %d" % (sK, sROT, m), "s_xor_b32 s%d, s%d, %d" % (sK, sK, s), "s_mul_i32 s%d, s%d, %d" % (dst, sK, mul)]


def x_setup(L, typ):
    L += ["v_lshrrev_b32 v32, 3, v%d" % vLANE, "v_lshrrev_b32 v33, 4, v%d" % vLANE, "v_and_b32 v34, 7, v%d" % vLANE,
          "v_xor_b32 v35, v34, v33", "v_lshlrev_b32 v35, 4, v35", "v_lshl_add_u32 v36, v32, 11, v35", "v_xor_b32 v37, 64, v36"]
    L += ["s_mul_i32 s%d, s%d, 3" % (sT, sWV), "s_add_u32 s%d, s%d, s%d" % (sT, sT, sRB0)]
    for bb in range(3):
        L += ["s_add_u32 s%d, s%d, %d" % (sT + 1, sT, bb),
              "s_lshr_b32 s%d, s%d, 1" % (sT + 2, sT + 1), "s_lshl_b32 s%d, s%d, 15" % (sT + 2, sT + 2),
              "s_and_b32 s%d, s%d, 1" % (sT + 1, sT + 1), "s_lshl_b32 s%d, s%d, 10" % (sT + 1, sT + 1),
              "s_add_u32 s%d, s%d, s%d" % (sT + 2, sT + 2, sT + 1)]
        if typ == 'H' and bb == 2:
            L += ["s_cmp_eq_u32 s%d, 3" % sWV, "s_cselect_b32 s%d, 0x%x, s%d" % (sT + 2, BIG, sT + 2)]
        for dd in range(2):
            d = 2 * bb + dd
            add = 4096 - 1024 * (d & 3) + (16384 if dd else 0)
            L += ["s_add_u32 s%d, s%d, %d" % (sT + 3, sT + 2, add), "v_add_u32 v%d, s%d, v%d" % (vXD + d, sT + 3, 36 + dd)]


def late_scalar_setup():
    L = []
    L += srd(sA, pWS, A2_BYTES)
    L += srd(sWO, pWO, 512 * 1024) + srd(sWD, pWD, 1792 * 1024) + srd(sO, pOUT, 2048 * 1024)
    L += srd(sD, pDBG, 256)
    L += srd(sF, pWS, 32768, add=F_OFF)
    L += ["s_lshl_b32 s%d, s%d, 2" % (sMT, sXCD), "s_lshr_b32 s%d, s%d, 3" % (sT, sIDX), "s_add_u32 s%d, s%d, s%d" % (sMT, sMT, sT),
          "s_and_b32 s%d, s%d, 7" % (sNT, sIDX),
          "s_lshl_b32 s%d, s%d, 11" % (sM2, sWV),
          "s_lshl_b32 s%d, s%d, 17" % (sW2o, sWV),
          "s_mul_i32 s%d, s%d, %d" % (sW2h, sWV, 14 * 32768), "s_add_u32 s%d, s%d, %d" % (sW2e, sW2h, 14 * 32768),
          "s_mul_i32 s%d, s%d, %d" % (sT + 1, sMT, MT_STRIDE),
          "s_lshl_b32 s%d, s%d, 14" % (sAo, sWV), "s_add_u32 s%d, s%d, s%d" % (sAo, sAo, sT + 1),
          "s_mul_i32 s%d, s%d, %d" % (sAh, sWV, 14 * 4096), "s_add_u32 s%d, s%d, s%d" % (sAh, sAh, sT + 1),
          "s_add_u32 s%d, s%d, %d" % (sAh, sAh, 16 * 4096), "s_add_u32 s%d, s%d, %d" % (sAe, sAh, 14 * 4096)]
    if OPT['rot2']:
        L += ["s_and_b32 s%d, s%d, 1" % (sT + 2, sNT), "s_mul_i32 s%d, s%d, %d" % (sT + 2, sT + 2, OPT['rnt']),
              "s_mul_i32 s%d, s%d, %d" % (sT + 3, sT, OPT['rmt']), "s_add_u32 s%d, s%d, s%d" % (sT + 2, sT + 2, sT + 3),
              "s_and_b32 s%d, s%d, %d" % (sT + 3, sXCD, 3 if OPT['rmt'] else 0), "s_add_u32 s%d, s%d, s%d" % (sT + 2, sT + 2, sT + 3),
              "s_cmp_ge_u32 s%d, 14" % (sT + 2), "s_cselect_b32 s%d, 14, 0" % (sT + 3), "s_sub_u32 s%d, s%d, s%d" % (sT + 2, sT + 2, sT + 3)]
    else:
        L += ["s_mov_b32 s%d, 0" % (sT + 2)]
    L += ["s_lshl_b32 s%d, s%d, 15" % (sT + 3, sT + 2), "s_add_u32 s%d, s%d, s%d" % (sS2, sW2h, sT + 3),
          "s_lshl_b32 s%d, s%d, 12" % (sT + 3, sT + 2), "s_add_u32 s%d, s%d, s%d" % (sSA, sAh, sT + 3)]
    return L


def warmups(va, vb):
    L = []
    if OPT['warm']:
        L += [["s_lshl_b32 s%d, s2, 2" % (sU + 12), "s_add_u32 s%d, s%d, s%d" % (sU + 12, sU + 12, sWV)],
              ["s_mul_i32 s%d, s%d, %d" % (sU + 13, sU + 12, 14 * 128), "s_lshl_b32 s%d, s%d, 9" % (sU + 12, sU + 12)],
              "v_min_u32 v%d, 13, v%d" % (va, vLANE), "v_lshl_add_u32 v%d, v%d, 7, s%d" % (va, va, sU + 13),
              "v_and_b32 v%d, 3, v%d" % (vb, vLANE), "v_lshl_add_u32 v%d, v%d, 7, s%d" % (vb, vb, sU + 12),
              "buffer_load_dword v%d, v%d, %s, 0 offen" % (va, va, s4(sWD)),
              "buffer_load_dword v%d, v%d, %s, 0 offen" % (vb, vb, s4(sWO))]
    return L


def warmt(va, vb):
    L = []
    if OPT['warmt'] == 2:
        L += [["s_lshl_b32 s%d, s%d, 16" % (sU + 14, sMT), "s_lshl_b32 s%d, s%d, 7" % (sU + 15, sNT)], "s_add_u32 s%d, s%d, s%d" % (sU + 14, sU + 14, sU + 15),
              "v_lshl_add_u32 v%d, v%d, 10, s%d" % (vb, vLANE, sU + 14),
              "buffer_load_dword v%d, v%d, %s, 0 offen" % (vb, vb, s4(sO))]
    elif OPT['warmt']:
        L += ["v_and_b32 v%d, 7, v%d" % (va, vLANE), "v_lshlrev_b32 v%d, 21, v%d" % (va, va),
              "v_and_b32 v%d, 1, v%d" % (vb, vLANE), "v_lshlrev_b32 v%d, 20, v%d" % (vb, vb),
              "buffer_load_dword v%d, v%d, %s, 0 offen" % (va, va, s4(sA)),
              "buffer_load_dword v%d, v%d, %s, 0 offen" % (vb, vb, s4(sO))]
    return L


def store_offsets(nb, base_sreg):
    L = []
    for b in range(nb):
        L += [["s_add_u32 s%d, s%d, %d" % (sU, base_sreg, b), "s_lshr_b32 s%d, s%d, 2" % (sU + 1, sU)],
              ["s_mul_i32 s%d, s%d, %d" % (sU + 1, sU + 1, MT_STRIDE), "s_and_b32 s%d, s%d, 3" % (sU, sU)],
              ["s_lshl_b32 s%d, s%d, 10" % (sU, sU), "s_add_u32 s%d, s%d, s%d" % (sST + b, sU, sU + 1)]]
    return L


vFO, vSH, vTG = 13, 14, 16


def flag_setup(vm):
    t = 18
    L = [["s_mul_i32 s%d, s%d, 43" % (sU, sMT), "s_lshr_b32 s%d, s%d, 7" % (sU, sU)],
         ["s_lshl_b32 s%d, s%d, 3" % (sU, sU), "s_mul_i32 s%d, s%d, %d" % (sU + 1, sMT, 4 * 187)],
         ["s_add_u32 s%d, s%d, %d" % (sU + 2, sU + 1, 3 * 187), "s_lshr_b32 s%d, s%d, 11" % (sU + 1, sU + 1)],
         ["s_lshr_b32 s%d, s%d, 11" % (sU + 2, sU + 2), "s_mul_i32 s%d, s%d, 14" % (sU + 1, sU + 1)],
         ["s_mul_i32 s%d, s%d, 14" % (sU + 2, sU + 2), "s_add_u32 s%d, s%d, 88" % (sU + 1, sU + 1)],
         "s_add_u32 s%d, s%d, 88" % (sU + 2, sU + 2),
         "v_and_b32 v%d, 15, v%d" % (t, vLANE), "v_min_u32 v%d, 13, v%d" % (t, t),
         "v_and_b32 v%d, 7, v%d" % (t + 1, vLANE), "v_add_u32 v%d, s%d, v%d" % (t + 1, sU, t + 1),
         "v_add_u32 v%d, s%d, v%d" % (t + 2, sU + 1, t), "v_add_u32 v%d, s%d, v%d" % (t + 3, sU + 2, t),
         "v_cmp_gt_u32 vcc, 16, v%d" % vLANE, "v_mov_b32 v%d, s%d" % (t, sPID),
         "v_cndmask_b32 v%d, v%d, v%d, vcc" % (t + 1, t + 2, t + 1),
         "v_cmp_gt_u32 vcc, 48, v%d" % vLANE,
         "v_cndmask_b32 v%d, v%d, v%d, vcc" % (t, t, t + 3),
         "v_cmp_gt_u32 vcc, 32, v%d" % vLANE,
         "v_cndmask_b32 v%d, v%d, v%d, vcc" % (t, t, t + 1),
         "v_lshlrev_b32 v%d, 7, v%d" % (vFO, t), "v_and_b32 v%d, 31, v%d" % (vSH, t),
         "v_lshrrev_b32 v%d, 5, v%d" % (t, t), "v_lshlrev_b32 v%d, 3, v%d" % (vFO + 2, t)]
    return L


def tag_load():
    return "buffer_load_dwordx2 %s, v%d, %s, 0 offen sc1" % (v2(vTG), vFO + 2, s4(sD))


class W2:
    AW2 = 128

    def __init__(self, sched, vm, vW2, trregs, region_free):
        self.sched, self.vm, self.vW2 = sched, vm, vW2
        self.pat = trregs[:4]
        self.lb = LdsBases(trregs[4:], chunk=0x10000)
        order = sorted(range(20), key=lambda r: (region_free[r], r))
        self.region = {}
        self.items = {}
        for n in range(36):
            if n < 20:
                self.region[n] = order[n]
                av = region_free[order[n]]
            else:
                self.region[n] = self.region[n - 20]
                av = None
            kb, h = n >> 1, n & 1
            isO = kb >= 14
            sr = sWO if isO else sWD
            its = []
            for i in range(2):
                pre = []
                if i == 0 and n > 0:
                    if n == 28:
                        pre = ["s_mov_b32 s%d, s%d" % (sS2, sW2o)]
                    else:
                        pre = ["s_add_u32 s%d, s%d, 16384" % (sS2, sS2)]
                        if h == 0 and not isO and OPT['rot2']:
                            pre += ["s_cmp_eq_u32 s%d, s%d" % (sS2, sW2e), "s_cselect_b32 s%d, s%d, s%d" % (sS2, sW2h, sS2)]
                d = Dma('w2', ('w2', n), (sM2, 8192 * self.region[n]), pre,
                        "buffer_load_dwordx4 v%d, %s, s%d offen offset:%d lds" % (vW2[i], s4(sr), sS2, 1024 * i), av, 1000 + n)
                its.append(d)
                sched.add(d)
            self.items[n] = its
        self.nread = 0
        for t in range(4):
            for ch in (1, 2):
                self.lb.addr(self.pat[t], ch * 0x10000)

    def setup_dma(self):
        a, b = self.vW2
        return ["v_lshrrev_b32 v%d, 4, v%d" % (a, vLANE), "v_lshlrev_b32 v%d, 1, v%d" % (a, a),
                "v_and_b32 v%d, 7, v%d" % (b, vLANE), "v_xor_b32 v%d, v%d, v%d" % (a, a, b), "v_lshlrev_b32 v%d, 4, v%d" % (a, a),
                "v_lshrrev_b32 v%d, 3, v%d" % (b, vLANE), "v_lshl_add_u32 v%d, v%d, 10, v%d" % (a, b, a),
                ["s_lshl_b32 s%d, s%d, 7" % (sU, sNT), "v_add_u32 v%d, s%d, v%d" % (a, sU, a)],
                "v_add_u32 v%d, 7168, v%d" % (b, a)]

    def setup_rd(self):
        p = self.pat
        L = ["v_lshrrev_b32 v%d, 2, v%d" % (p[1], vLANE), "v_lshrrev_b32 v%d, 3, v%d" % (p[2], vLANE),
             "v_and_b32 v%d, 3, v%d" % (p[2], p[2]), "v_lshlrev_b32 v%d, 5, v%d" % (p[2], p[2]),
             "v_lshl_add_u32 v%d, v%d, 7, v%d" % (p[1], p[1], p[2]), "v_and_b32 v%d, 3, v%d" % (p[2], vLANE),
             "v_lshl_add_u32 v%d, v%d, 3, v%d" % (p[1], p[2], p[1]), "v_add_u32 v%d, s%d, v%d" % (p[0], sM2, p[1])]
        L += ["v_xor_b32 v%d, %d, v%d" % (p[t], 32 * t, p[0]) for t in range(1, 4)]
        return L + self.lb.setup

    def reads(self, n, dstf):
        out = []
        for t in range(4):
            r, o = self.lb.addr(self.pat[t], 8192 * self.region[n])
            out.append("ds_read_b64_tr_b16 %s, v%d offset:%d" % (dstf(t), r, o))
        return out

    def take_reads(self, cnt, issued_upto, slot):
        out = []
        last = None
        while cnt > 0 and self.nread < 16 and self.nread < issued_upto:
            n = self.nread
            out += self.reads(n, lambda t: a2(self.AW2 + 16 * (n >> 1) + 4 * t + 2 * (n & 1)))
            for d in self.items[n + 20]:
                d.avail = slot + 1
            last = n
            self.nread += 1
            cnt -= 1
        return out, last


def spread(mf, rd, dm, ef, tail=4):
    n = len(mf)
    gaps = [[] for _ in range(n)]
    load = [0] * n
    seq = [x for g in dm for x in g]
    vm_idx = [i for i, x in enumerate(seq) if x.startswith("buffer_")]
    k = len(vm_idx)
    lead = 2 if (vm_idx and vm_idx[0] > 0) else 0
    vpos = [lead + (j * (n - lead)) // k for j in range(k)] if k else []
    prev = -1
    pi = 0
    for j, vi in enumerate(vm_idx):
        sal = seq[pi:vi]
        room = list(range(prev + 1, vpos[j]))
        if not room:
            gaps[vpos[j]] += sal
        else:
            chunks = []
            for x in sal:
                if chunks and (len(chunks[-1]) < 2 or chunks[-1][-1].startswith("s_cmp")):
                    chunks[-1].append(x)
                else:
                    chunks.append([x])
            for c, ch in enumerate(chunks):
                g = room[min(c, len(room) - 1)]
                gaps[g] += ch
                load[g] += len(ch)
        gaps[vpos[j]].append(seq[vi])
        load[vpos[j]] += 2
        prev = vpos[j]
        pi = vi + 1
    assert pi == len(seq)

    def place(items, lo, hi):
        m = len(items)
        g = lo
        for i, it in enumerate(items):
            want = lo + (i * (hi - lo)) // m
            g = max(g, want)
            cap = 2
            gg = g
            while gg < hi and load[gg] + len(it) > max(cap, len(it)):
                gg += 1
            rem = m - i
            if gg >= hi or gg > want + 3:
                gg = min(range(g, min(g + 4, hi)), key=lambda z: load[z]) if g < hi else hi - 1
            gaps[gg] += it
            load[gg] += len(it)
            g = gg
    if rd:
        place([[r] for r in rd], 0, n - tail)
    if ef:
        place(ef, 0, n)
    out = []
    for i, m in enumerate(mf):
        out.append(m)
        out += gaps[i]
    return out


class Phase1:
    def __init__(self, typ, PF, xslot, wbase, wslot, nws, wpitch, nwd, gw_range, vW2, trregs):
        self.typ, self.PF = typ, PF
        self.xslot, self.wbase, self.wslot, self.nws = xslot, wbase, wslot, nws
        self.vm = VmTracker()
        self.sched = Sched(self.vm)
        nxd = 7 if typ == 'Q' else 6
        for s in range(8):
            slot = (s % 3) * xslot
            for d in range(nxd):
                m0 = (sMX, slot) if d < 4 else (sMX, slot + 4096) if d < 6 else (sM7, slot + 24576)
                imm = 1024 * (d & 3) if d < 6 else 0
                pre = stage_pre(s, sKX, 128) if d == 0 else []
                self.sched.add(Dma('x', ('x', s), m0, pre,
                                   "buffer_load_dwordx4 v%d, %s, s%d offen offset:%d lds" % (vXD + d, s4(sX), sKX, imm),
                                   -1 if s < 3 else 2 * (s - 3) + 1, 2 * s - 0.5))
        for t in range(16):
            slot = wbase + (t % nws) * wslot
            for e in range(nwd):
                pre = []
                if e == 0:
                    pre = stage_pre(t >> 1, sKW, 64 * wpitch) if t % 2 == 0 else ["s_add_u32 s%d, s%d, %d" % (sKW, sKW, 32 * wpitch)]
                self.sched.add(Dma('w', ('w', t), (sMW, slot), pre,
                                   "buffer_load_dwordx4 v%d, %s, s%d offen offset:%d lds" % (vWD + e, s4(sW), sKW, 1024 * e),
                                   -1 if t < nws else t - nws, t))
        busy = []
        for s in (5, 6, 7):
            busy.append(((s % 3) * xslot, (s % 3 + 1) * xslot, 2 * s + 1))
        for t in range(16 - nws, 16):
            busy.append((wbase + (t % nws) * wslot, wbase + (t % nws + 1) * wslot, t))
        if gw_range:
            busy.append((gw_range[0], gw_range[1], 15))
        first = 16 - nws
        rf = []
        for r in range(20):
            f = first
            for lo, hi, t in busy:
                if lo < 8192 * (r + 1) and hi > 8192 * r:
                    f = max(f, t)
            rf.append(f)
        self.w2 = W2(self.sched, self.vm, vW2, trregs, rf)
        self.w2_issued_at = {}

    def n_w2_issued(self):
        return (72 - len(self.sched.streams['w2'])) // 2

    def prologue(self):
        g, _ = self.sched.take(-1, 10)
        g2, _ = self.sched.take(-1, OPT['npro'] - 10)
        return sum(g, []) + self.PF.xstamp(51), sum(g2, []) + self.PF.xstamp(52)

    def main(self, xreads, wreads, mfmas, extra, extra_need={}):
        PF, vm = self.PF, self.vm

        def need(t):
            return lambda tag: (tag[0] == 'x' and tag[1] <= t // 2) or (tag[0] == 'w' and tag[1] <= t)

        def reads(t):
            return wreads(t, t & 1, self.wbase + (t % self.nws) * self.wslot) + xreads(t, t & 1, ((t // 2) % 3) * self.xslot)

        def check_issued(t):
            for q in ('x', 'w'):
                for d in self.sched.streams[q]:
                    assert not need(t)(d.tag), ("not issued in time", t, d.tag)
        body = PF.stamp()
        check_issued(0)
        body += ["s_waitcnt vmcnt(%d)" % vm.wait_for(need(0)), "s_barrier"] + reads(0) + ["s_waitcnt lgkmcnt(0)"]
        for t in range(16):
            body += PF.stamp()
            rd = []
            w2r, last = [], None
            if OPT['rdmain'] and t - 2 in self.w2_issued_at:
                w2r, last = self.w2.take_reads(4, self.w2_issued_at[t - 2], t)
            nd = need(min(t + 1, 15))
            check_issued(min(t + 1, 15))
            n = vm.wait_for(lambda tag: nd(tag) or tag == extra_need.get(t) or (last is not None and tag[0] == 'w2' and tag[1] <= last))
            body += ["s_waitcnt vmcnt(%d)" % n, "s_barrier"]
            if t < 15:
                rd = reads(t + 1)
            rd += w2r
            dm, _ = self.sched.take(t, OPT['maxd'] if t < 11 else OPT['maxd2'])
            self.w2_issued_at[t] = self.n_w2_issued()
            mf = mfmas(t, t & 1)
            ef = [[g] if isinstance(g, str) else g for g in extra.get(t, []) + extra.get(t + 100, [])]
            body += spread(mf, rd, dm, ef)
            if rd:
                body += ["s_waitcnt lgkmcnt(0)"]
        body += PF.stamp()
        return body

    def epi_slot(self, k, ndma=None, nrd=2):
        slot = 16 + k
        L = []
        if ndma is None:
            ndma = OPT['edma']
        pend = getattr(self, 'epi_reads_pending', False)
        if pend:
            L += ["s_waitcnt lgkmcnt(0)"]
            self.epi_reads_pending = False
        upto = self.w2_issued_at.get(slot - 3, 0) if k >= 1 else 0
        if k >= 1:
            upto = self.w2_issued_at[max(s for s in self.w2_issued_at if s <= max(slot - 3, 14))]
        r, last = self.w2.take_reads(nrd, upto, slot)
        if r:
            L += ["s_waitcnt vmcnt(%d)" % self.vm.wait_for(lambda tag: tag[0] == 'w2' and tag[1] <= last)] + r
            self.epi_reads_pending = True
        dm, _ = self.sched.take(slot, ndma)
        L += sum(dm, [])
        self.w2_issued_at[slot] = self.n_w2_issued()
        return L

    def flush_w2(self, slot):
        L = []
        while self.w2.nread < 16 or self.sched.pending():
            L += self.epi_slot(slot - 16, ndma=64, nrd=16)
            slot += 1
        if getattr(self, 'epi_reads_pending', False):
            L += ["s_waitcnt lgkmcnt(0)"]
        return L


def phase2(P1, PF, lab):
    vm, w2 = P1.vm, P1.w2
    L = []
    vAD, vG, vXW, vXR, vOUT, vP, vT = 32, 36, 44, 45, 48, 49, 52
    ACO, ACH, VWF = 64, 128, 192
    L += ["v_lshlrev_b32 v%d, 4, v%d" % (vT, vLANE), "v_and_b32 v%d, 15, v%d" % (vT + 1, vLANE), "v_lshrrev_b32 v%d, 4, v%d" % (vT + 2, vLANE)]
    for q in range(4):
        L += ["s_add_u32 s%d, s%d, %d" % (sU, sWV, q), "s_and_b32 s%d, s%d, 3" % (sU, sU), "s_lshl_b32 s%d, s%d, 10" % (sU + 1, sU),
              "v_add_u32 v%d, s%d, v%d" % (vAD + q, sU + 1, vT),
              "s_lshl_b32 s%d, s%d, 2" % (sU + 1, sMT), "s_add_u32 s%d, s%d, s%d" % (sU + 1, sU + 1, sU), "s_lshl_b32 s%d, s%d, 6" % (sU + 1, sU + 1),
              "v_lshl_add_u32 v%d, v%d, 2, s%d" % (vG + q, vT + 1, sU + 1)]
        if q:
            L += ["s_sub_u32 s%d, s%d, %d" % (sU, sWV, q), "s_and_b32 s%d, s%d, 3" % (sU, sU), "s_lshl_b32 s%d, s%d, 11" % (sU, sU),
                  "v_add_u32 v%d, s%d, v%d" % (vXR + q - 1, sU, vT)]
    L += ["v_add_u32 v%d, s%d, v%d" % (vXW, sM2, vT),
          "s_lshl_b32 s%d, s%d, 6" % (sU, sMT), "s_lshr_b32 s%d, s%d, 1" % (sU + 1, sWV), "s_lshl_b32 s%d, s%d, 5" % (sU + 1, sU + 1),
          "s_add_u32 s%d, s%d, s%d" % (sU, sU, sU + 1), "s_and_b32 s%d, s%d, 1" % (sU + 1, sWV), "s_add_u32 s%d, s%d, s%d" % (sU, sU, sU + 1),
          "s_lshl_b32 s%d, s%d, 10" % (sU, sU), "s_lshl_b32 s%d, s%d, 7" % (sU + 1, sNT), "s_add_u32 s%d, s%d, s%d" % (sU, sU, sU + 1),
          "v_lshlrev_b32 v%d, 11, v%d" % (vT + 3, vT + 1), "v_lshl_add_u32 v%d, v%d, 3, v%d" % (vT + 3, vT + 2, vT + 3),
          "v_add_u32 v%d, s%d, v%d" % (vOUT, sU, vT + 3)]
    L += srd(sG, pWS, 8192, add=G_OFF)
    L += ["s_waitcnt vmcnt(%d)" % vm.wait_for(lambda tag: tag[0] == 'st')]
    L += PF.stamp()
    slp = ["s_sleep %d" % OPT['sleep']] if OPT['sleep'] else []
    L += ["s_barrier", "s_cmp_lg_u32 s%d, 0" % sWV, "s_cbranch_scc1 %s_pub" % lab,
          "s_mov_b32 s%d, 0" % sU,
          "%s_tag:" % lab,
          "v_cmp_eq_u32 vcc, 0, v%d" % (vTG + 1),
          "s_cmp_eq_u64 vcc, 0", "s_cbranch_scc1 %s_tagok" % lab,
          tag_load(), "s_add_u32 s%d, s%d, 1" % (sU, sU), "s_waitcnt vmcnt(0)",
          "s_cmp_lt_u32 s%d, 0x8000" % sU, "s_cbranch_scc1 %s_tag" % lab,
          "%s_tagok:" % lab,
          "v_lshrrev_b32 v%d, v%d, v%d" % (vTG, vSH, vTG), "v_and_b32 v%d, 1, v%d" % (vTG, vTG),
          "s_mov_b32 exec_lo, 0", "s_brev_b32 exec_hi, 1",
          "buffer_store_dword v%d, v%d, %s, 0 offen sc1" % (vTG, vFO, s4(sF)),
          "s_mov_b64 exec, -1",
          "%s_pub:" % lab]
    L += P1.flush_w2(60)
    L += ["s_cmp_lg_u32 s%d, 0" % sWV, "s_cbranch_scc1 %s_go" % lab,
          "s_mov_b32 s%d, 0" % sU,
          "%s_poll:" % lab,
          "buffer_load_dword v%d, v%d, %s, 0 offen sc1" % (vP, vFO, s4(sF)),
          "s_add_u32 s%d, s%d, 1" % (sU, sU),
          "s_waitcnt vmcnt(0)",
          "v_and_b32 v%d, 1, v%d" % (vP, vP),
          "v_cmp_ne_u32 vcc, v%d, v%d" % (vTG, vP),
          "s_cmp_eq_u64 vcc, 0", "s_cbranch_scc1 %s_go" % lab] + slp
    L += ["s_cmp_lt_u32 s%d, 0x8000" % sU, "s_cbranch_scc1 %s_poll" % lab,
          "%s_go:" % lab, "s_barrier"]
    L += PF.stamp()
    LA = OPT['la']
    NAB = 7

    def issue(kb):
        out = []
        for q in range(4):
            g = ["buffer_load_dwordx4 %s, v%d, %s, s%d offen sc1" % (a4(16 * (kb % NAB) + 4 * q), vAD + q, s4(sA), sSA)]
            vm.issue(('a', kb))
            if q == 3 and kb < 17:
                if kb == 13:
                    g += ["s_mov_b32 s%d, s%d" % (sSA, sAo)]
                else:
                    g += ["s_add_u32 s%d, s%d, 4096" % (sSA, sSA)]
                    if kb < 13 and OPT['rot2']:
                        g += ["s_cmp_eq_u32 s%d, s%d" % (sSA, sAe), "s_cselect_b32 s%d, s%d, s%d" % (sSA, sAh, sSA)]
            out.append(g)
        return out
    nxt = [0]
    for kb in range(OPT['la0']):
        L += sum(issue(kb), [])
        nxt[0] += 1

    def wfrag(kb, t):
        return a4(W2.AW2 + 16 * kb + 4 * t) if kb < 8 else v4(VWF + 16 * (kb & 1) + 4 * t)
    for kb in range(18):
        n = vm.wait_for(lambda g: g[0] == 'a' and g[1] <= kb)
        L += ["s_waitcnt vmcnt(%d)%s" % (n, " lgkmcnt(0)" if kb >= 8 else "")]
        L += PF.stamp()
        rd = []
        if 8 <= kb + 1 < 18:
            for h in range(2):
                rd += w2.reads(2 * (kb + 1) + h, lambda t: v2(VWF + 16 * ((kb + 1) & 1) + 4 * t + 2 * h))
        dm = []
        for _ in range(2):
            if nxt[0] < 18 and nxt[0] <= kb + LA:
                dm += issue(nxt[0])
                nxt[0] += 1
        if kb == 4:
            for q in range(4):
                dm += [["buffer_load_dword v%d, v%d, %s, 0 offen sc1" % (vG + q, vG + q, s4(sG))]]
                vm.issue(('g', 0))
        ex = []
        if kb == 13:
            ex = ["v_sub_f32 v%d, 1.0, v%d" % (vG + 4 + q, vG + q) for q in range(4)]
        if kb in (15, 16):
            for q in ((0, 1) if kb == 15 else (2, 3)):
                ex += ["v_mul_f32 v%d, v%d, v%d" % (ACH + 16 * q + i, ACH + 16 * q + i, vG + 4 + q) for i in range(16)]
        mix = dm + rd + ex
        acc = ACH if kb < 14 else ACO
        first = kb in (0, 14)
        mf = []
        for q in (1, 2, 3, 0):
            for t in range(4):
                d = v4(acc + 16 * q + 4 * t)
                mf.append("v_mfma_f32_16x16x32_bf16 %s, %s, %s, %s" % (d, wfrag(kb, t), a4(16 * (kb % NAB) + 4 * q), "0" if first else d))
        L += interleave(mf, mix)
    L += PF.stamp()
    for q in (1, 2, 3, 0):
        for i in range(0, 16, 2):
            L += ["v_pk_fma_f32 %s, %s, %s, %s op_sel_hi:[1,0,1]%s" % (v2(ACH + 16 * q + i), v2(ACO + 16 * q + i), v2((vG + q) & ~1), v2(ACH + 16 * q + i),
                                                                    "")] if False else []
        L += ["v_fma_f32 v%d, v%d, v%d, v%d" % (ACH + 16 * q + i, ACO + 16 * q + i, vG + q, ACH + 16 * q + i) for i in range(16)]
        if q:
            for t in range(4):
                L += ["ds_write_b128 v%d, %s offset:%d" % (vXW, v4(ACH + 16 * q + 4 * t), 8192 * ((q - 1) * 2 + (t >> 1)) + 1024 * (t & 1))]
    L += ["s_waitcnt lgkmcnt(0)", "s_barrier"]
    for q in range(1, 4):
        for t in range(4):
            L += ["ds_read_b128 %s, v%d offset:%d" % (v4(ACO + 16 * q + 4 * t), vXR + q - 1, 8192 * ((q - 1) * 2 + (t >> 1)) + 1024 * (t & 1))]
    for q in range(1, 4):
        L += ["s_waitcnt lgkmcnt(%d)" % (12 - 4 * q)]
        L += ["v_pk_add_f32 %s, %s, %s" % (v2(ACH + i), v2(ACH + i), v2(ACO + 16 * q + i)) for i in range(0, 16, 2)]
    for t in range(4):
        L += ["v_cvt_pk_bf16_f32 v%d, v%d, v%d" % (ACH + 4 * t, ACH + 4 * t, ACH + 4 * t + 1),
              "v_cvt_pk_bf16_f32 v%d, v%d, v%d" % (ACH + 4 * t + 1, ACH + 4 * t + 2, ACH + 4 * t + 3),
              "buffer_store_dwordx2 %s, v%d, %s, 0 offen offset:%d%s" % (v2(ACH + 4 * t), vOUT, s4(sO), 32 * t, ["", " sc1", " nt", " sc0 sc1"][OPT['outsc']])]
    L += PF.stamp() + PF.dump() + ["s_endpgm"]
    return L


def gen_H():
    PF = Prof(255)
    L = PF.stamp()
    L += ["s_mul_i32 s%d, s%d, 21" % (sT, sXCD), "s_add_u32 s%d, s%d, s%d" % (sT, sT, sIDX), "s_sub_u32 s%d, s%d, 11" % (sT, sT),
          "s_mul_i32 s%d, s%d, 171" % (sCG, sT), "s_lshr_b32 s%d, s%d, 11" % (sCG, sCG),
          "s_mul_i32 s%d, s%d, 12" % (sT + 1, sCG), "s_sub_u32 s%d, s%d, s%d" % (sT, sT, sT + 1),
          "s_mul_i32 s%d, s%d, 11" % (sRB0, sT),
          "s_mul_i32 s%d, s%d, 14" % (sPID, sT), "s_add_u32 s%d, s%d, s%d" % (sPID, sPID, sCG), "s_add_u32 s%d, s%d, 88" % (sPID, sPID),
          "s_mul_i32 s%d, s%d, %d" % (sROT, sCG, OPT['rotb']), "s_add_u32 s%d, s%d, s%d" % (sROT, sT, sROT)]
    x_setup(L, 'H')
    L += ["v_and_b32 v38, 1, v33", "v_lshlrev_b32 v38, 1, v38", "v_xor_b32 v38, v34, v38", "v_lshlrev_b32 v38, 4, v38",
          "s_movk_i32 s%d, 3584" % sT, "v_mad_u32_u24 v38, v32, s%d, v38" % sT, "v_xor_b32 v39, 64, v38",
          "s_and_b32 s%d, s%d, 1" % (sT, sWV), "s_lshl_b32 s%d, s%d, 7" % (sT, sT),
          "s_lshl_b32 s%d, s%d, 8" % (sT + 1, sCG), "s_add_u32 s%d, s%d, s%d" % (sT, sT, sT + 1)]
    for e in range(4):
        L += ["s_add_u32 s%d, s%d, %d" % (sT + 1, sT, e * (8 * 3584 - 1024)), "v_add_u32 v%d, s%d, v%d" % (vWD + e, sT + 1, 38 + (e & 1))]
    L += ["s_mul_i32 s%d, s%d, 6144" % (sMX, sWV), "s_lshl_b32 s%d, s%d, 12" % (sMW, sWV)]
    L += ["s_waitcnt lgkmcnt(0)"] + PF.xstamp(50)
    L += srd(sX, pX, 2048 * 1024, bias=4096)
    L += ["s_cmp_lt_u32 s%d, 2" % sWV, "s_cselect_b32 s%d, s%d, s%d" % (sW, pWG, pWU), "s_cselect_b32 s%d, s%d, s%d" % (sW + 1, pWG + 1, pWU + 1),
          "s_mov_b32 s%d, %d" % (sW + 2, 512 * 3584), "s_mov_b32 s%d, 0x20000" % (sW + 3)]
    XS, WB, WS = 24576, 73728, 16384
    P1 = Phase1('H', PF, XS, WB, WS, 5, 3584, 4, None, (61, 62), list(range(240, 252)))
    lb = LdsBases(range(vRD + 4, 32))
    vx0, vx1, vw0, vw1 = vRD, vRD + 1, vRD + 2, vRD + 3
    S2 = ["v_and_b32 v40, 15, v%d" % vLANE, "v_lshrrev_b32 v41, 1, v40", "v_xor_b32 v41, v41, v33",
          "v_lshlrev_b32 v41, 4, v41", "v_lshl_add_u32 v%d, v40, 7, v41" % vx0, "v_xor_b32 v%d, 64, v%d" % (vx1, vx0)]
    S2 += ["v_lshrrev_b32 v42, 2, v40", "v_lshl_add_u32 v43, v33, 3, v42",
           "v_lshrrev_b32 v44, 1, v42", "v_and_b32 v45, 1, v33", "v_lshl_add_u32 v44, v45, 1, v44",
           "s_and_b32 s%d, s%d, 1" % (sT, sWV), "s_lshl_b32 s%d, s%d, 1" % (sT, sT), "v_xor_b32 v44, s%d, v44" % sT,
           "v_lshlrev_b32 v44, 5, v44", "v_lshl_add_u32 v43, v43, 7, v44",
           "v_and_b32 v45, 3, v%d" % vLANE, "v_lshl_add_u32 v43, v45, 3, v43",
           "s_lshr_b32 s%d, s%d, 1" % (sT, sWV), "s_lshl_b32 s%d, s%d, 12" % (sT, sT),
           "v_add_u32 v%d, s%d, v43" % (vw0, sT), "v_xor_b32 v%d, 32, v%d" % (vw1, vw0)]
    AW, AX = 0, 32

    def xreads(t, buf, xo):
        out = []
        for b in range(11):
            r, o = lb.addr(vx1 if (t & 1) else vx0, xo + 2048 * b)
            out.append("ds_read_b128 %s, v%d offset:%d" % (a4(AX + 44 * buf + 4 * b), r, o))
        return out

    def wreads(t, buf, wo):
        out = []
        for q in range(4):
            for h in range(2):
                r, o = lb.addr(vw1 if (q & 1) else vw0, wo + (8192 if q >= 2 else 0) + 512 * h)
                out.append("ds_read_b64_tr_b16 %s, v%d offset:%d" % (a2(AW + 16 * buf + 4 * q + 2 * h), r, o))
        return out

    def mfmas(t, buf):
        out = []
        for b in range(11):
            for q in range(4):
                d = v4(ACC + 16 * b + 4 * q)
                out.append("v_mfma_f32_16x16x32_bf16 %s, %s, %s, %s" % (d, a4(AW + 16 * buf + 4 * q), a4(AX + 44 * buf + 4 * b), d if t else "0"))
        return out
    vST = 60
    ES = ["s_mov_b32 s%d, 0x%x" % (sC0, NLOG2E), "s_mov_b32 s%d, 0x%x" % (sC0 + 1, NLOG2E),
          "s_mov_b32 s%d, 1.0" % (sC0 + 2), "s_mov_b32 s%d, 1.0" % (sC0 + 3),
          ["s_lshl_b32 s%d, s%d, 2" % (sU, sCG), "s_add_u32 s%d, s%d, s%d" % (sU, sU, sWV)],
          ["s_add_u32 s%d, s%d, 16" % (sU, sU), "s_lshl_b32 s%d, s%d, 12" % (sU, sU)],
          "v_lshlrev_b32 v%d, 4, v%d" % (vST, vLANE), "v_add_u32 v%d, s%d, v%d" % (vST, sU, vST)]
    so = store_offsets(11, sRB0)
    pro = P1.prologue()
    body = P1.main(xreads, wreads, mfmas, {OPT['wt'] + 100: warmups(46, 47), 9: warmt(48, 49), 5: ES + P1.w2.setup_dma(), 6: P1.w2.setup_rd(), 7: so[:17], 8: so[17:], 15: flag_setup(P1.vm)})
    L += pro[0] + S2 + lb.setup + late_scalar_setup() + pro[1] + body
    L += [tag_load()]
    P1.vm.issue(('tag', 0))
    for b in range(11):
        base = ACC + 16 * b
        G = [base + i for i in range(8)]
        U = [base + 8 + i for i in range(8)]
        L += ["v_pk_mul_f32 %s, %s, s[%d:%d]" % (v2(G[i]), v2(G[i]), sC0, sC0 + 1) for i in range(0, 8, 2)]
        L += ["v_exp_f32 v%d, v%d" % (g, g) for g in G]
        L += P1.epi_slot(b)
        L += ["v_pk_add_f32 %s, %s, s[%d:%d]" % (v2(G[i]), v2(G[i]), sC0 + 2, sC0 + 3) for i in range(0, 8, 2)]
        L += ["v_rcp_f32 v%d, v%d" % (g, g) for g in G]
        L += ["v_pk_mul_f32 %s, %s, %s" % (v2(U[i]), v2(U[i]), v2(G[i])) for i in range(0, 8, 2)]
        L += ["v_cvt_pk_bf16_f32 v%d, v%d, v%d" % (G[i], U[2 * i], U[2 * i + 1]) for i in range(4)]
        L += ["buffer_store_dwordx4 %s, v%d, %s, s%d offen sc1" % (v4(base), vST, s4(sA), sST + b)]
        P1.vm.issue(('st', b))
    L += PF.stamp()
    L += P1.epi_slot(20, ndma=OPT['postdma'], nrd=16)
    L += phase2(P1, PF, "H")
    return L


def gen_Q():
    PF = Prof(10 if False else 31)
    L = PF.stamp()
    L += ["s_mov_b32 s%d, s%d" % (sCG, sXCD), "s_mul_i32 s%d, s%d, 12" % (sRB0, sIDX),
          "s_lshl_b32 s%d, s%d, 3" % (sPID, sIDX), "s_add_u32 s%d, s%d, s%d" % (sPID, sPID, sXCD),
          "s_add_u32 s%d, s%d, s%d" % (sROT, sIDX, sXCD), "s_add_u32 s%d, s%d, %d" % (sROT, sROT, OPT['rotq'])]
    x_setup(L, 'Q')
    L += ["s_lshl_b32 s%d, s%d, 4" % (sT, sRB0), "s_add_u32 s%d, s%d, s%d" % (sT, sT, sWV),
          "s_sub_u32 s%d, s%d, 16" % (sT, sT), "s_lshl_b32 s%d, s%d, 10" % (sT, sT), "s_add_u32 s%d, s%d, 4096" % (sT, sT),
          "s_cmp_eq_u32 s%d, 0" % sRB0, "s_cselect_b32 s%d, 0x%x, s%d" % (sT, BIG, sT),
          "s_cmp_ge_u32 s%d, 2" % sWV, "s_cselect_b32 s%d, 0x%x, s%d" % (sT, BIG, sT),
          "s_and_b32 s%d, s%d, 1" % (sT + 1, sWV), "s_lshl_b32 s%d, s%d, 6" % (sT + 1, sT + 1),
          "v_xor_b32 v38, s%d, v36" % (sT + 1), "v_add_u32 v%d, s%d, v38" % (vXD + 6, sT)]
    L += ["v_and_b32 v38, 1, v33", "v_lshlrev_b32 v38, 1, v38", "v_xor_b32 v38, v34, v38", "v_lshlrev_b32 v38, 4, v38",
          "s_movk_i32 s%d, 3072" % sT, "v_mad_u32_u24 v38, v32, s%d, v38" % sT,
          "s_mul_i32 s%d, s%d, 3" % (sT, sWV), "s_lshl_b32 s%d, s%d, 7" % (sT + 4, sCG)]
    for e in range(3):
        L += ["s_add_u32 s%d, s%d, %d" % (sT + 1, sT, e),
              "s_and_b32 s%d, s%d, 3" % (sT + 2, sT + 1), "s_mul_i32 s%d, s%d, %d" % (sT + 2, sT + 2, 8 * 3072),
              "s_lshr_b32 s%d, s%d, 2" % (sT + 3, sT + 1), "s_lshl_b32 s%d, s%d, 10" % (sT + 3, sT + 3),
              "s_add_u32 s%d, s%d, s%d" % (sT + 2, sT + 2, sT + 3), "s_add_u32 s%d, s%d, s%d" % (sT + 2, sT + 2, sT + 4),
              "s_sub_u32 s%d, s%d, %d" % (sT + 2, sT + 2, 1024 * e),
              "s_and_b32 s%d, s%d, 1" % (sT + 1, sT + 1), "s_lshl_b32 s%d, s%d, 6" % (sT + 1, sT + 1),
              "v_xor_b32 v39, s%d, v38" % (sT + 1), "v_add_u32 v%d, s%d, v39" % (vWD + e, sT + 2)]
    L += ["s_mul_i32 s%d, s%d, 6144" % (sMX, sWV), "s_mul_i32 s%d, s%d, 3072" % (sMW, sWV), "s_lshl_b32 s%d, s%d, 10" % (sM7, sWV)]
    L += ["v_lshlrev_b32 v39, 2, v32", "s_mov_b32 s%d, 0x%x" % (sT, OPT['masks'] & 0x77777777),
          "v_lshrrev_b32 v39, v39, s%d" % sT, "s_and_b32 s%d, s%d, 7" % (sT + 1, sROT), "v_and_b32 v39, s%d, v39" % (sT + 1),
          "v_xor_b32 v39, v39, v32", "v_lshl_add_u32 v39, v39, 3, v34", "v_lshlrev_b32 v39, 4, v39"]
    L += ["s_waitcnt lgkmcnt(0)"] + PF.xstamp(50)
    L += srd(sX, pX, 2048 * 1024, bias=4096) + srd(sW, pQKV, 512 * 3072) + srd(sG, pGW, 1024)
    XS, WB, WS, NWS = 28672, 86016, 12288, 6
    GW = WB + NWS * WS
    L += ["s_mov_b32 m0, %d" % GW, "s_nop 0", "buffer_load_dwordx4 v39, %s, 0 offen lds" % s4(sG)]
    P1 = Phase1('Q', PF, XS, WB, WS, NWS, 3072, 3, (GW, GW + 1024), (12, 0), [2, 3, 4, 5, 6, 7, 8, 9, 10, 28, 29, 30])
    lb = LdsBases(range(vRD + 9, 28))
    lb2 = LdsBases(range(46, 56))
    vx0, vx1, vw0, vw1, vh0, vh1, vt0, vt1, vg = [vRD + i for i in range(9)]
    S2 = ["v_and_b32 v40, 15, v%d" % vLANE, "v_lshrrev_b32 v41, 1, v40", "v_xor_b32 v41, v41, v33",
          "v_lshlrev_b32 v41, 4, v41", "v_lshl_add_u32 v42, v40, 7, v41",
          "s_lshr_b32 s%d, s%d, 1" % (sT, sWV), "s_mul_i32 s%d, s%d, %d" % (sT + 1, sT, 6 * 2048),
          "v_add_u32 v%d, s%d, v42" % (vx0, sT + 1), "v_xor_b32 v%d, 64, v%d" % (vx1, vx0)]
    S2 += ["s_lshl_b32 s%d, s%d, 2" % (sT + 1, sCG), "s_add_u32 s%d, s%d, s%d" % (sT + 1, sT + 1, sWV),
           "s_min_u32 s%d, s%d, 11" % (sT + 1, sT + 1), "s_lshl_b32 s%d, s%d, 11" % (sT + 1, sT + 1),
           "v_add_u32 v%d, s%d, v42" % (vt0, sT + 1), "v_xor_b32 v%d, 64, v%d" % (vt1, vt0)]
    S2 += ["v_or_b32 v43, 8, v40", "v_lshrrev_b32 v44, 1, v43", "v_xor_b32 v44, v44, v33", "v_lshlrev_b32 v44, 4, v44",
           "v_lshl_add_u32 v44, v43, 7, v44",
           "v_lshrrev_b32 v45, 3, v40", "v_lshl_add_u32 v44, v45, 11, v44", "v_add_u32 v44, %d, v44" % (4 * 2048),
           "v_add_u32 v45, %d, v42" % (12 * 2048),
           "s_cmp_eq_u32 s%d, 0" % sT, "s_cselect_b64 vcc, -1, 0",
           "v_cndmask_b32 v%d, v44, v45, vcc" % vh0, "v_xor_b32 v%d, 64, v%d" % (vh1, vh0)]
    S2 += ["v_lshrrev_b32 v42, 2, v40", "v_lshl_add_u32 v43, v33, 3, v42",
           "v_lshrrev_b32 v44, 1, v42", "v_and_b32 v45, 1, v33", "v_lshl_add_u32 v44, v45, 1, v44",
           "s_and_b32 s%d, s%d, 1" % (sT, sWV), "s_lshl_b32 s%d, s%d, 1" % (sT, sT), "v_xor_b32 v44, s%d, v44" % sT,
           "v_lshlrev_b32 v44, 5, v44", "v_lshl_add_u32 v43, v43, 7, v44",
           "v_and_b32 v45, 3, v%d" % vLANE, "v_lshl_add_u32 v%d, v45, 3, v43" % vw0,
           "v_xor_b32 v%d, 32, v%d" % (vw1, vw0),
           "v_lshlrev_b32 v45, 4, v33", "v_add_u32 v%d, %d, v45" % (vg, GW)]
    AW, AX = 0, 48

    def Qa(hh, b): return ACC + 4 * (hh * 20 + b)
    def Ka(hh, b): return ACC + 4 * (hh * 20 + 6 + b)
    def Va(hh, b): return ACC + 4 * (hh * 20 + 13 + b)
    TA = ACC + 160

    def xreads(t, buf, xo):
        out = []
        for b in range(6):
            r, o = lb.addr(vx1 if (t & 1) else vx0, xo + 2048 * b)
            out.append("ds_read_b128 %s, v%d offset:%d" % (a4(AX + 36 * buf + 4 * b), r, o))
        r, o = lb.addr(vh1 if (t & 1) else vh0, xo)
        out.append("ds_read_b128 %s, v%d offset:%d" % (a4(AX + 36 * buf + 24), r, o))
        r, o = lb.addr(vt1 if (t & 1) else vt0, xo)
        out.append("ds_read_b128 %s, v%d offset:%d" % (a4(AX + 36 * buf + 28), r, o))
        out.append("ds_read_b128 %s, v%d offset:%d" % (a4(AX + 36 * buf + 32), vg, 64 * t))
        return out

    def wreads(t, buf, wo):
        out = []
        for seg in range(3):
            for hh in range(2):
                for h in range(2):
                    r, o = lb2.addr(vw1 if hh else vw0, wo + 4096 * seg + 512 * h)
                    out.append("ds_read_b64_tr_b16 %s, v%d offset:%d" % (a2(AW + 24 * buf + 4 * (seg * 2 + hh) + 2 * h), r, o))
        return out

    def mfmas(t, buf):
        out = []
        W = lambda seg, hh: a4(AW + 24 * buf + 4 * (seg * 2 + hh))
        for b in range(7):
            X = a4(AX + 36 * buf + 4 * b)
            for hh in range(2):
                if b < 6:
                    d = v4(Qa(hh, b)); out.append("v_mfma_f32_16x16x32_bf16 %s, %s, %s, %s" % (d, W(0, hh), X, d if t else "0"))
                d = v4(Ka(hh, b)); out.append("v_mfma_f32_16x16x32_bf16 %s, %s, %s, %s" % (d, W(1, hh), X, d if t else "0"))
                d = v4(Va(hh, b)); out.append("v_mfma_f32_16x16x32_bf16 %s, %s, %s, %s" % (d, X, W(2, hh), d if t else "0"))
        d = v4(TA)
        out.append("v_mfma_f32_16x16x32_bf16 %s, %s, %s, %s" % (d, a4(AX + 36 * buf + 32), a4(AX + 36 * buf + 28), d if t else "0"))
        return out
    MC, MP, MH0, MH1, AM, ONES, SPARE = 228, 232, 236, 240, 244, 248, 252
    vST, vGO = 250, 251
    ES = [srd(sG, pWS, 8192, add=G_OFF),
          "s_mov_b32 s%d, 0x%x" % (sC0, SCL), "s_mov_b32 s%d, 0x%x" % (sC0 + 1, NLOG2E),
          ["s_lshl_b32 s%d, s%d, 1" % (sU, sCG), "s_and_b32 s%d, s%d, 1" % (sU + 1, sWV)],
          ["s_add_u32 s%d, s%d, s%d" % (sU, sU, sU + 1), "s_lshl_b32 s%d, s%d, 12" % (sU, sU)],
          "v_lshlrev_b32 v%d, 4, v%d" % (vST, vLANE), "v_add_u32 v%d, s%d, v%d" % (vST, sU, vST),
          ["s_lshl_b32 s%d, s%d, 2" % (sU, sCG), "s_add_u32 s%d, s%d, s%d" % (sU, sU, sWV)],
          ["s_add_u32 s%d, s%d, s%d" % (sU + 1, sU, sRB0), "s_lshl_b32 s%d, s%d, 6" % (sU + 1, sU + 1)],
          ["s_cmp_lt_u32 s%d, 12" % sU, "s_cselect_b32 s%d, s%d, 0x%x" % (sU + 1, sU + 1, BIG)],
          "v_lshl_add_u32 v%d, v%d, 2, s%d" % (vGO, vLANE, sU + 1),
          "v_mov_b32 v%d, 0x%x" % (SPARE, BIG),
          "v_cmp_gt_u32 vcc, 16, v%d" % vLANE,
          "v_mov_b32 v%d, 0x3f803f80" % ONES, "v_mov_b32 v%d, 0x3f803f80" % (ONES + 1),
          "v_cndmask_b32 v%d, v%d, v%d, vcc" % (vGO, SPARE, vGO),
          ["s_lshr_b32 s%d, s%d, 1" % (sU + 2, sWV), "s_mul_i32 s%d, s%d, 6" % (sU + 2, sU + 2)],
          "s_add_u32 s%d, s%d, s%d" % (sU + 2, sU + 2, sRB0)]
    so = store_offsets(6, sU + 2)
    HV, HV2 = sU + 4, sU + 6
    ES2 = ["v_and_b32 v%d, 15, v%d" % (SPARE, vLANE), "v_lshrrev_b32 v%d, 4, v%d" % (SPARE + 1, vLANE),
           "v_lshlrev_b32 v%d, 2, v%d" % (SPARE + 1, SPARE + 1), "v_sub_u32 v%d, v%d, v%d" % (SPARE, SPARE, SPARE + 1),
           "v_mov_b32 v%d, 0xff800000" % (SPARE + 2),
           ["s_lshr_b32 s%d, s%d, 1" % (sU, sWV), "s_or_b32 s%d, s%d, s%d" % (sU, sU, sRB0)],
           ["s_cmp_lg_u32 s%d, 0" % sU, "s_cselect_b64 s[%d:%d], -1, 0" % (HV, HV + 1)],
           ["s_mov_b32 s%d, s%d" % (HV2, HV), "s_mov_b32 s%d, 0" % (HV2 + 1)],
           "v_mov_b32 v%d, 0" % AM, "v_mov_b32 v%d, 0" % (AM + 1)]
    ES3 = []
    for r in range(4):
        ES3 += ["v_subrev_u32 v%d, %d, v%d" % (SPARE + 3, r, SPARE), "v_cmp_gt_u32 vcc, 8, v%d" % (SPARE + 3),
                "v_mov_b32 v%d, 0x%x" % (SPARE + 1, 0xffff0000 if (r & 1) else 0xffff),
                "v_add_u32 v%d, %d, v%d" % (SPARE + 3, 16 - r, SPARE),
                "v_cndmask_b32 v%d, v%d, 0, vcc" % (MC + r, SPARE + 2),
                "v_cndmask_b32 v%d, 0, v%d, vcc" % (SPARE + 1, SPARE + 1),
                "v_cmp_gt_u32 vcc, 8, v%d" % (SPARE + 3),
                "v_or_b32 v%d, v%d, v%d" % (AM + (r >> 1), AM + (r >> 1), SPARE + 1),
                "v_add_u32 v%d, %d, v%d" % (SPARE + 3, 8 - r, SPARE),
                "v_cndmask_b32 v%d, v%d, 0, vcc" % (MP + r, SPARE + 2),
                "s_and_b64 vcc, vcc, s[%d:%d]" % (HV, HV + 1),
                "v_cndmask_b32 v%d, v%d, 0, vcc" % (MH1 + r, SPARE + 2),
                "v_cmp_gt_u32 vcc, 8, v%d" % (SPARE + 3),
                "s_and_b64 vcc, vcc, s[%d:%d]" % (HV2, HV2 + 1),
                "v_cndmask_b32 v%d, v%d, 0, vcc" % (MH0 + r, SPARE + 2)]
    ES3 += ["v_not_b32 v%d, v%d" % (AM + 2, AM), "v_not_b32 v%d, v%d" % (AM + 3, AM + 1)]
    TL = ["s_lshl_b32 s%d, s%d, 12" % (sT, sXCD), "s_lshl_b32 s%d, s%d, 3" % (sT + 1, sXCD),
          "s_lshl_b32 s%d, s%d, 4" % (sT + 2, sWV), "s_add_u32 s%d, s%d, s%d" % (sT + 2, sT + 2, sIDX),
          "s_cmp_eq_u32 s%d, 10" % (sT + 2), "s_cselect_b32 s%d, s%d, 0x%x" % (sT, sT, BIG), "s_cselect_b32 s%d, s%d, 0x%x" % (sT + 1, sT + 1, BIG),
          "v_and_b32 v60, 31, v%d" % vLANE, "v_lshl_add_u32 v60, v60, 7, s%d" % sT,
          "v_lshl_add_u32 v62, v%d, 24, s%d" % (vLANE, sT + 1),
          "buffer_load_dword v60, v60, %s, 0 offen sc1" % s4(sF)]
    TP = ["v_and_b32 v60, 1, v60", "v_cmp_eq_u32 vcc, 0, v60", "v_mov_b32 v61, 1", "v_mov_b32 v60, vcc_lo",
          "buffer_store_dwordx2 v[60:61], v62, %s, 0 offen sc1" % s4(sD)]
    pro = P1.prologue()
    P1.vm.issue(('tp', 0))
    body = P1.main(xreads, wreads, mfmas, {3: ES, 4: so, 5: ES2 + P1.w2.setup_dma(), 6: ES3[:21], 7: ES3[21:42], 8: ES3[42:], 11: P1.w2.setup_rd(), 2: TP, OPT['wt'] + 100: warmups(56, 57), 9: warmt(58, 59), 15: flag_setup(P1.vm)}, {2: ('tp', 0)})
    L += pro[0] + S2 + lb.setup + lb2.setup + late_scalar_setup() + pro[1] + TL + body
    L += [tag_load()]
    P1.vm.issue(('tag', 0))
    VB = 32
    def Vb(hh, par, k): return VB + 16 * hh + 8 * par + 2 * k
    def cvt2(dst, src): return ["v_cvt_pk_bf16_f32 v%d, v%d, v%d" % (dst, src, src + 1), "v_cvt_pk_bf16_f32 v%d, v%d, v%d" % (dst + 1, src + 2, src + 3)]
    units = [(hh, b) for b in range(6) for hh in range(2)]
    seg = [0]

    def slot():
        seg[0] += 1
        return P1.epi_slot(seg[0] - 1)
    for b in range(6):
        for hh in range(2):
            L += cvt2(Qa(hh, b), Qa(hh, b)) + cvt2(Qa(hh, b) + 2, Ka(hh, b)) + cvt2(Vb(hh, b & 1, 1 + (b >> 1)), Va(hh, b))
        if b in (1, 4):
            L += slot()
    for hh in range(2):
        L += cvt2(Ka(hh, 6), Ka(hh, 6)) + cvt2(Vb(hh, 0, 0), Va(hh, 6)) + cvt2(Vb(hh, 1, 0), Va(hh, 6))
    L += ["v_mul_f32 v%d, s%d, v%d" % (TA, sC0 + 1, TA), "v_exp_f32 v%d, v%d" % (TA, TA)]
    mf = []
    for (hh, b) in units:
        mf += ["v_mfma_f32_16x16x16_bf16 %s, %s, %s, %s" % (v4(Ka(hh, b)), v2(Qa(hh, b) + 2), v2(Qa(hh, b)), v4(MC))]
        kp = Ka(hh, 6) if b < 2 else Qa(hh, b - 2) + 2
        mk = MH0 if b == 0 else MH1 if b == 1 else MP
        mf += ["v_mfma_f32_16x16x16_bf16 %s, %s, %s, %s" % (v4(Va(hh, b)), v2(kp), v2(Qa(hh, b)), v4(mk))]
    mx = []
    for (hh, b) in units:
        S, P = Ka(hh, b), Va(hh, b)
        mx += ["v_max_f32 v%d, v%d, v%d" % (S + r, S + r, P + r) for r in range(4)]
        mx += ["v_max3_f32 v%d, v%d, v%d, v%d" % (P, S, S + 1, S + 2), "v_max_f32 v%d, v%d, v%d" % (P, P, S + 3)]
    L += interleave(mf[:8], slot()) + interleave(mf[8:], mx[:32])
    L += ["v_add_f32 v%d, 1.0, v%d" % (TA, TA), "v_rcp_f32 v%d, v%d" % (TA, TA)]
    L += mx[32:]
    L += ["buffer_store_dword v%d, v%d, %s, 0 offen sc1" % (TA, vGO, s4(sG))]
    P1.vm.issue(('st', 100))
    L += slot()
    grp = [[Va(*units[4 * k + i]) for i in range(4)] for k in range(3)]
    for A, B, C, D in grp:
        L += ["v_permlane32_swap_b32 v%d, v%d" % (A, B), "v_permlane32_swap_b32 v%d, v%d" % (C, D)]
    for A, B, C, D in grp:
        L += ["v_max_f32 v%d, v%d, v%d" % (A, A, B), "v_max_f32 v%d, v%d, v%d" % (C, C, D)]
    for A, B, C, D in grp:
        L += ["v_permlane16_swap_b32 v%d, v%d" % (A, C)]
    for A, B, C, D in grp:
        L += ["v_max_f32 v%d, v%d, v%d" % (A, A, C)]
    for A, B, C, D in grp:
        L += ["v_mul_f32 v%d, s%d, v%d" % (C, sC0, A)]
    for A, B, C, D in grp:
        L += ["v_mul_f32 v%d, s%d, v%d" % (A, sC0, A)]
    for A, B, C, D in grp:
        L += ["v_permlane16_swap_b32 v%d, v%d" % (A, C)]
    for A, B, C, D in grp:
        L += ["v_mov_b32 v%d, v%d" % (B, A), "v_mov_b32 v%d, v%d" % (D, C)]
    for A, B, C, D in grp:
        L += ["v_permlane32_swap_b32 v%d, v%d" % (A, B), "v_permlane32_swap_b32 v%d, v%d" % (C, D)]
    prevP = SPARE
    sums = {}
    pend_mf = []
    for k in range(0, 12, 2):
        us = units[k:k + 2]
        L += slot()
        a = []
        for (hh, b) in us:
            S, P = Ka(hh, b), Va(hh, b)
            a += ["v_fma_f32 v%d, v%d, s%d, -v%d" % (S + r, S + r, sC0, P) for r in range(4)]
        L += interleave(pend_mf, a) if pend_mf else a
        for (hh, b) in us:
            S = Ka(hh, b)
            L += ["v_exp_f32 v%d, v%d" % (S + r, S + r) for r in range(4)]
        for (hh, b) in us:
            L += cvt2(Va(hh, b) + 2, Ka(hh, b))
        for (hh, b) in us:
            P, Q = Va(hh, b), Qa(hh, b)
            L += ["v_and_b32 v%d, v%d, v%d" % (Q, P + 2, AM + 2), "v_and_b32 v%d, v%d, v%d" % (Q + 1, P + 3, AM + 3),
                  "v_and_b32 v%d, v%d, v%d" % (Q + 2, P + 2, AM), "v_and_b32 v%d, v%d, v%d" % (Q + 3, P + 3, AM + 1)]
        pend_mf = []
        for (hh, b) in us:
            P = Va(hh, b)
            pend_mf += ["v_mfma_f32_16x16x16_bf16 %s, %s, %s, 0" % (v4(prevP), v2(ONES), v2(P + 2))]
            sums[(hh, b)] = prevP
            prevP = P
        for (hh, b) in us:
            pend_mf += ["v_mfma_f32_16x16x32_bf16 %s, %s, %s, 0" % (v4(Ka(hh, b)), v4(Vb(hh, b & 1, b >> 1)), v4(Qa(hh, b)))]
    rc = ["v_rcp_f32 v%d, v%d" % (sums[u], sums[u]) for u in units]
    L += interleave(pend_mf, rc[:4]) + rc[4:]
    for b in range(6):
        for hh in range(2):
            S = Ka(hh, b)
            sm = sums[(hh, b)]
            L += ["v_pk_mul_f32 %s, %s, %s op_sel_hi:[1,0]" % (v2(S + r), v2(S + r), v2(sm)) for r in (0, 2)]
        for hh in range(2):
            L += cvt2(Qa(0, b) + 2 * hh, Ka(hh, b))
        L += ["buffer_store_dwordx4 %s, v%d, %s, s%d offen sc1" % (v4(Qa(0, b)), vST, s4(sA), sST + b)]
        P1.vm.issue(('st', b))
    L += PF.stamp()
    L += P1.epi_slot(20, ndma=OPT['postdma'], nrd=16)
    L += phase2(P1, PF, "Q")
    return L


def main():
    K = NAME + "_kernel"
    L = [K + ":", "s_cmp_ge_u32 s2, 256", "s_cbranch_scc1 L_exit",
         "s_load_dwordx8 s[4:11], s[0:1], 0", "s_load_dwordx8 s[12:19], s[0:1], 32",
         "s_load_dwordx4 s[20:23], s[0:1], 64", "s_load_dwordx2 s[24:25], s[0:1], 80",
         "v_lshrrev_b32 v2, 6, v0", "v_and_b32 v%d, 63, v0" % vLANE, "v_readfirstlane_b32 s%d, v2" % sWV,
         "s_and_b32 s%d, s2, 7" % sXCD, "s_lshr_b32 s%d, s2, 3" % sIDX, "s_cmp_lt_u32 s%d, 11" % sIDX, "s_cbranch_scc1 L_Q"]
    pf = []
    if OPT['iprefetch']:
        i = L.index("v_lshrrev_b32 v2, 6, v0")
        L[i:i] = ["s_getpc_b64 s[26:27]", "v_and_b32 v63, 15, v0", "s_lshr_b32 s3, s2, 3", "s_lshl_b32 s3, s3, 11",
                  "v_lshl_add_u32 v63, v63, 7, s3", "global_load_dword v63, v63, s[26:27]"]
    rep = {}
    H = fix_hazards(["s_nop 3"] + pf + gen_H(), rep)
    sys.stderr.write("H: %d lines, nops %d\n" % (len(H), rep['nops']))
    Q = fix_hazards(["s_nop 3"] + pf + gen_Q(), rep)
    sys.stderr.write("Q: %d lines, nops %d\n" % (len(Q), rep['nops']))
    out = ["; generated by gen2.py: single persistent kernel, flag hand-off between GEMM1 and GEMM2",
           "; @launch grid=(256,1,1) block=(256,1,1) lds=163840",
           '.amdgcn_target "amdgcn-amd-amdhsa--gfx950"', ".text", ".globl " + K, ".p2align 8", ".type %s,@function" % K]
    out += fix_hazards(L) + H + ["L_exit:", "s_endpgm", ".p2align 6", "L_Q:"] + Q
    out += [".p2align 8", ".fill 6144, 4, 0xbf800000", "s_endpgm"]
    out += ['.section .rodata,"a"', ".p2align 6", """.amdhsa_kernel %s
  .amdhsa_next_free_vgpr 512
  .amdhsa_next_free_sgpr 102
  .amdhsa_accum_offset 256
  .amdhsa_group_segment_fixed_size 0
  .amdhsa_kernarg_size 88
  .amdhsa_user_sgpr_count 2
  .amdhsa_user_sgpr_kernarg_segment_ptr 1
  .amdhsa_system_sgpr_workgroup_id_x 1
.end_amdhsa_kernel""" % K]
    print("\n".join(out))


main()
```

```python
import sys
from asmlib import *

NAME = "gated_mix__sliding_local_dilated__glu_gated_glu__prompt"
A2_BYTES = 32 * 72 * 4096
G_OFF = A2_BYTES
F_OFF = A2_BYTES + 8192
MT_STRIDE = 72 * 4096
CLS = 72 * 2048
NLOG2E = 0xbfb8aa3b
SCL = 0x3eb8aa3b
BIG = 0x40000000

OPT = dict(masks=0x77777777, iprefetch=1, prof=0, maxd=8, maxd2=9, npro=20, edma=1, la=3, la0=3, rx=1, rm3=0,
           diag=-1, c0=-1, c1=-1, sel=0, warm=2, warmt=0, outsc=0, wt=7, rotb=1, rotq=2, pubH=8, pubQ=3, pollst=3,
           nwsH=5, stsc=1, rawt=6, rawper=3, nsw0=4, rot2=1, verbose=0, rdmain=1, rdlag=2, keep=0, wt2=-1, nrd=2, ipf2=-1, nost=0, pf0=9, pft=6, pfper=1, map2=0, snake=0, rhi=0, q3=1, perm=2, pfq=0, ldsp=2, rnt=0, tlb=1)
for a in sys.argv[1:]:
    if '=' in a:
        k, v = a.split('=')
        assert k in OPT, k
        OPT[k] = int(v, 0)

pX, pQKV, pWO, pWG, pWU, pWD, pGW, pOUT, pDBG, pWS = 4, 6, 8, 12, 14, 16, 18, 20, 22, 24
sX, sW, sA, sG, sWO, sWD, sO, sD = 28, 32, 36, 40, 44, 48, 52, 56
sWV, sRB0, sCG, sXCD, sIDX, sKX, sKW, sMX, sMW, sM7, sROT, sM2 = 60, 61, 62, 63, 64, 65, 66, 67, 68, 69, 70, 71
sMT, sNT, sW2o, sW2h, sW2e, sS2, sAo, sAh, sAe, sSA = 72, 73, 74, 75, 76, 77, 78, 79, 80, 81
sC0 = 82
sST = 86
sF = 20
sS3 = 27
sPAR = 99
sPID = 98
sK = 97
sT = 88
sU = 4
vLANE = 1
vXD, vWD, vRD = 2, 9, 13
ACC = 64


def v4(b): return "v[%d:%d]" % (b, b + 3)
def v2(b): return "v[%d:%d]" % (b, b + 1)
def a4(b): return "a[%d:%d]" % (b, b + 3)
def a2(b): return "a[%d:%d]" % (b, b + 1)
def s4(b): return "s[%d:%d]" % (b, b + 3)


class Prof:
    def __init__(self, vreg):
        self.n = 0
        self.v = vreg

    def stamp(self):
        self.n += 1
        if OPT['diag'] >= 0:
            L = []
            if OPT['diag'] == self.n - 1:
                L += ["s_memrealtime s[100:101]", "s_waitcnt lgkmcnt(0)", "s_mov_b32 s26, s100"]
            if OPT['c0'] == self.n - 1:
                L += ["s_memtime s[100:101]", "s_waitcnt lgkmcnt(0)", "s_mov_b32 s3, s100"]
            if OPT['c1'] == self.n - 1:
                L += ["s_memtime s[100:101]", "s_waitcnt lgkmcnt(0)", "s_sub_u32 s3, s100, s3"]
            return L
        if not OPT['prof']:
            return []
        if OPT['sel'] and not (OPT['sel'] >> (self.n - 1)) & 1:
            return []
        return ["%s s[100:101]" % ("s_memtime" if OPT['prof'] == 1 else "s_memrealtime"), "s_waitcnt lgkmcnt(0)", "v_writelane_b32 v%d, s100, %d" % (self.v, self.n - 1)]

    def xstamp(self, lane):
        if OPT['prof'] != 2:
            return []
        return ["s_memrealtime s[100:101]", "s_waitcnt lgkmcnt(0)", "v_writelane_b32 v%d, s100, %d" % (self.v, lane)]

    def dump(self):
        if OPT['diag'] >= 0:
            lab = "D%d" % id(self)
            L = ["s_waitcnt vmcnt(0)"] + self.stamp() + ["s_mov_b32 s4, 10000"]
            if OPT['c0'] >= 0:
                L += ["s_lshr_b32 s3, s3, 2", "s_add_u32 s4, s3, 5000"]
            L += ["s_mov_b32 s5, 0", lab + ":", "s_memrealtime s[100:101]", "s_waitcnt lgkmcnt(0)", "s_sub_u32 s6, s100, s26",
                  "s_add_u32 s5, s5, 1", "s_cmp_gt_u32 s5, 100000", "s_cbranch_scc1 %s_x" % lab,
                  "s_cmp_lt_u32 s6, s4", "s_cbranch_scc1 " + lab, lab + "_x:"]
            return L
        if not OPT['prof']:
            return []
        L = ["s_waitcnt vmcnt(0)"] + self.stamp()
        L += ["s_memrealtime s[100:101]", "s_waitcnt lgkmcnt(0)", "v_writelane_b32 v%d, s100, 63" % self.v]
        L += ["s_lshl_b32 s100, s2, 2", "s_add_u32 s100, s100, s%d" % sWV, "s_lshl_b32 s100, s100, 8",
              "s_add_u32 s100, s100, %d" % (16 << 20), "v_lshl_add_u32 v2, v%d, 2, s100" % vLANE,
              "global_store_dword v2, v%d, s[%d:%d]" % (self.v, pWS, pWS + 1)]
        return L


def srd(d, p, nbytes, bias=0, add=0):
    L = []
    if bias:
        L += ["s_sub_u32 s%d, s%d, %d" % (d, p, bias), "s_subb_u32 s%d, s%d, 0" % (d + 1, p + 1)]
    elif add:
        L += ["s_add_u32 s%d, s%d, %d" % (d, p, add), "s_addc_u32 s%d, s%d, 0" % (d + 1, p + 1)]
    else:
        L += ["s_mov_b32 s%d, s%d" % (d, p), "s_mov_b32 s%d, s%d" % (d + 1, p + 1)]
    L += ["s_mov_b32 s%d, 0x%x" % (d + 2, nbytes + bias), "s_mov_b32 s%d, 0x20000" % (d + 3)]
    return L


class LdsBases:
    def __init__(self, regs, chunk=0xC000):
        self.regs = list(regs)
        self.map = {}
        self.setup = []
        self.chunk = chunk

    def addr(self, patreg, off):
        ch = off // self.chunk
        if ch == 0:
            return patreg, off
        key = (patreg, ch)
        if key not in self.map:
            r = self.regs.pop(0)
            self.map[key] = r
            self.setup.append("v_add_u32 v%d, 0x%x, v%d" % (r, ch * self.chunk, patreg))
        return self.map[key], off - ch * self.chunk


class Dma:
    def __init__(self, stream, tag, m0, pre, text, avail, need):
        self.stream, self.tag, self.m0, self.pre, self.text, self.avail, self.need = stream, tag, m0, pre, text, avail, need


class Sched:
    def __init__(self, vm):
        self.vm = vm
        self.streams = {}
        self.m0 = None
        self.hook = None

    def add(self, d):
        self.streams.setdefault(d.stream, []).append(d)

    def take(self, slot, cap):
        picked = []
        while len(picked) < cap:
            best = None
            if self.hook:
                self.hook(slot)
            for s, q in self.streams.items():
                if q and q[0].avail is not None and q[0].avail <= slot:
                    if best is None or q[0].need < self.streams[best][0].need:
                        best = s
            if best is None:
                break
            picked.append(self.streams[best].pop(0))
        groups = [[]]
        for d in picked:
            setup = list(d.pre)
            if d.m0 is not None and d.m0 != self.m0:
                setup.append("s_add_u32 m0, s%d, %d" % d.m0)
                self.m0 = d.m0
            groups[-1] += setup
            groups.append([d.text])
            self.vm.issue(d.tag)
        return [g for g in groups if g], picked

    def pending(self):
        return sum(len(q) for q in self.streams.values())


def stage_pre(s, dst, mul):
    m = (OPT['masks'] >> (4 * s)) & 7
    if m == 0:
        return ["s_mov_b32 s%d, %d" % (dst, s * mul)]
    return ["s_and_b32 s%d, s%d, %d" % (sK, sROT, m), "s_xor_b32 s%d, s%d, %d" % (sK, sK, s), "s_mul_i32 s%d, s%d, %d" % (dst, sK, mul)]


def rot_fix(typ):
    L = []
    if typ == 'Q' and OPT['q3']:
        L += ["s_cmp_eq_u32 s%d, 3" % sXCD, "s_cselect_b32 s%d, 7, 3" % (sT + 6), "s_and_b32 s%d, s%d, s%d" % (sROT, sROT, sT + 6)]
    else:
        L += ["s_and_b32 s%d, s%d, 3" % (sROT, sROT)]
    if OPT['rhi']:
        L += ["s_lshl_b32 s%d, s%d, 2" % (sT + 6, sXCD), "s_and_b32 s%d, s%d, 4" % (sT + 6, sT + 6), "s_xor_b32 s%d, s%d, s%d" % (sROT, sROT, sT + 6)]
    return L


def x_setup(L, typ):
    L += ["v_lshrrev_b32 v32, 3, v%d" % vLANE, "v_lshrrev_b32 v33, 4, v%d" % vLANE, "v_and_b32 v34, 7, v%d" % vLANE,
          "v_xor_b32 v35, v34, v33", "v_lshlrev_b32 v35, 4, v35", "v_lshl_add_u32 v36, v32, 11, v35", "v_xor_b32 v37, 64, v36"]
    if typ == 'H':
        L += ["s_mul_i32 s%d, s%d, 6" % (sT, sWV), "s_and_b32 s%d, s%d, 1" % (sPAR, sRB0),
              "s_add_u32 s%d, s%d, s%d" % (sT + 4, sT, sPAR),
              "s_sub_u32 s%d, s%d, s%d" % (sT + 5, sT, sPAR), "s_sub_u32 s%d, s%d, 11" % (sT + 5, sT + 5),
              "s_cmp_lt_u32 s%d, 2" % sWV, "s_cselect_b32 s%d, s%d, s%d" % (sT, sT + 4, sT + 5)]
    else:
        L += ["s_mul_i32 s%d, s%d, 3" % (sT, sWV), "s_add_u32 s%d, s%d, s%d" % (sT, sT, sRB0)]
    for bb in range(3):
        if typ == 'H':
            L += ["s_add_u32 s%d, s%d, %d" % (sT + 1, sT, 2 * bb)]
            if bb == 2:
                L += ["s_min_u32 s%d, s%d, 10" % (sT + 1, sT + 1)]
            L += ["s_add_u32 s%d, s%d, s%d" % (sT + 1, sT + 1, sRB0)]
        else:
            L += ["s_add_u32 s%d, s%d, %d" % (sT + 1, sT, bb)]
        L += ["s_lshr_b32 s%d, s%d, 1" % (sT + 2, sT + 1), "s_lshl_b32 s%d, s%d, 15" % (sT + 2, sT + 2),
              "s_and_b32 s%d, s%d, 1" % (sT + 1, sT + 1), "s_lshl_b32 s%d, s%d, 10" % (sT + 1, sT + 1),
              "s_add_u32 s%d, s%d, s%d" % (sT + 2, sT + 2, sT + 1)]
        if typ == 'H' and bb == 2:
            L += ["s_cmp_eq_u32 s%d, 3" % sWV, "s_cselect_b32 s%d, 0x%x, s%d" % (sT + 2, BIG, sT + 2)]
        for dd in range(2):
            d = 2 * bb + dd
            add = 4096 - 1024 * (d & 3) + (16384 if dd else 0)
            L += ["s_add_u32 s%d, s%d, %d" % (sT + 3, sT + 2, add), "v_add_u32 v%d, s%d, v%d" % (vXD + d, sT + 3, 36 + dd)]


def tlb_warm():
    if not OPT['tlb']:
        return []
    d = 3
    L = ["s_lshl_b32 s%d, s%d, 20" % (sT, sWV),
         "s_load_dword s%d, s[%d:%d], s%d" % (d, pWS, pWS + 1, sT), "s_add_u32 s%d, s%d, 0x400000" % (sT, sT),
         "s_load_dword s%d, s[%d:%d], s%d" % (d, pWS, pWS + 1, sT), "s_add_u32 s%d, s%d, 0x400000" % (sT, sT),
         "s_load_dword s%d, s[%d:%d], s%d" % (d, pWS, pWS + 1, sT),
         "s_and_b32 s%d, s%d, 1" % (sT, sWV), "s_lshl_b32 s%d, s%d, 20" % (sT, sT),
         "s_load_dword s%d, s[%d:%d], s%d" % (d, pWD, pWD + 1, sT),
         "s_load_dword s%d, s[%d:%d], s%d" % (d, pOUT, pOUT + 1, sT),
         "s_load_dword s%d, s[%d:%d], 0" % (d, pWO, pWO + 1),
         "s_load_dword s%d, s[%d:%d], 0" % (d, pDBG, pDBG + 1)]
    return L


def late_scalar_setup():
    L = []
    L += srd(sA, pWS, 0 if OPT['nost'] else A2_BYTES)
    L += srd(sWO, pWO, 512 * 1024) + srd(sWD, pWD, 1792 * 1024) + srd(sO, pOUT, 2048 * 1024)
    L += srd(sD, pDBG, 256)
    L += srd(sF, pWS, 32768, add=F_OFF)
    if OPT['map2'] == 0:
        sP = sT + 5
        L += ["s_mov_b32 s%d, s%d" % (sP, sIDX)]
        if OPT['perm']:
            for a, b in ((11, 8), (19, 9), (27, 10)):
                L += ["s_cmp_eq_u32 s%d, %d" % (sIDX, a), "s_cselect_b32 s%d, %d, s%d" % (sP, b, sP),
                      "s_cmp_eq_u32 s%d, %d" % (sIDX, b), "s_cselect_b32 s%d, %d, s%d" % (sP, a, sP)]
            if OPT['perm'] == 2:
                L += ["s_cmp_eq_u32 s%d, 3" % sXCD, "s_cselect_b32 s%d, s%d, s%d" % (sP, sIDX, sP)]
        L += ["s_lshl_b32 s%d, s%d, 2" % (sMT, sXCD), "s_lshr_b32 s%d, s%d, 3" % (sT, sP), "s_add_u32 s%d, s%d, s%d" % (sMT, sMT, sT),
              "s_and_b32 s%d, s%d, 7" % (sNT, sP)]
    else:
        L += ["s_lshr_b32 s%d, s%d, 1" % (sMT, sXCD), "s_lshl_b32 s%d, s%d, 3" % (sMT, sMT), "s_lshr_b32 s%d, s%d, 2" % (sT, sIDX),
              "s_add_u32 s%d, s%d, s%d" % (sMT, sMT, sT),
              "s_and_b32 s%d, s%d, 1" % (sNT, sXCD), "s_lshl_b32 s%d, s%d, 2" % (sNT, sNT), "s_and_b32 s%d, s%d, 3" % (sT + 1, sIDX),
              "s_add_u32 s%d, s%d, s%d" % (sNT, sNT, sT + 1)]
    L += [
          "s_lshl_b32 s%d, s%d, 11" % (sM2, sWV),
          "s_lshl_b32 s%d, s%d, 17" % (sW2o, sWV),
          "s_mul_i32 s%d, s%d, %d" % (sW2h, sWV, 14 * 32768), "s_add_u32 s%d, s%d, %d" % (sW2e, sW2h, 14 * 32768),
          "s_mul_i32 s%d, s%d, %d" % (sT + 1, sMT, MT_STRIDE),
          "s_lshl_b32 s%d, s%d, 13" % (sAo, sWV), "s_add_u32 s%d, s%d, s%d" % (sAo, sAo, sT + 1),
          "s_mul_i32 s%d, s%d, %d" % (sAh, sWV, 14 * 2048), "s_add_u32 s%d, s%d, s%d" % (sAh, sAh, sT + 1),
          "s_add_u32 s%d, s%d, %d" % (sAh, sAh, 16 * 2048), "s_add_u32 s%d, s%d, %d" % (sAe, sAh, 14 * 2048)]
    L += ["s_mul_i32 s%d, s%d, %d" % (sT + 3, sT, OPT['rm3']), "s_cmp_eq_u32 s%d, 3" % sNT, "s_cselect_b32 s%d, s%d, 0" % (sT + 3, sT + 3),
          "s_cselect_b32 s%d, s%d, 0" % (sT + 4, sT),
          "s_mul_i32 s%d, s%d, %d" % (sT + 2, sXCD, OPT['rx']), "s_add_u32 s%d, s%d, s%d" % (sT + 4, sT + 4, sT + 2),
          "s_add_u32 s%d, s%d, s%d" % (sT + 2, sT + 2, sT + 3),
          "s_and_b32 s%d, s%d, %d" % (sT + 3, sNT, 1 if OPT['rnt'] else 0), "s_add_u32 s%d, s%d, s%d" % (sT + 4, sT + 4, sT + 3),
          "s_mul_i32 s%d, s%d, %d" % (sT + 3, sT + 3, OPT['rnt']), "s_add_u32 s%d, s%d, s%d" % (sT + 2, sT + 2, sT + 3),
          "s_lshr_b32 s%d, s%d, %d" % (sT + 4, sT + 4, 1 if OPT['map2'] else 0), "s_and_b32 s%d, s%d, 1" % (sT + 4, sT + 4),
          "s_lshl_b32 s%d, s%d, 16" % (sT + 3, sT + 4), "s_add_u32 s%d, s%d, s%d" % (sW2o, sW2o, sT + 3),
          "s_lshl_b32 s%d, s%d, 12" % (sT + 3, sT + 4), "s_add_u32 s%d, s%d, s%d" % (sAo, sAo, sT + 3)]
    for _ in range(2):
        L += ["s_cmp_ge_u32 s%d, 7" % (sT + 2), "s_cselect_b32 s%d, 7, 0" % (sT + 3), "s_sub_u32 s%d, s%d, s%d" % (sT + 2, sT + 2, sT + 3)]
    L += ["s_lshl_b32 s%d, s%d, 16" % (sT + 3, sT + 2), "s_add_u32 s%d, s%d, s%d" % (sS2, sW2h, sT + 3),
          "s_lshl_b32 s%d, s%d, 12" % (sT + 3, sT + 2), "s_add_u32 s%d, s%d, s%d" % (sSA, sAh, sT + 3),
          "s_add_u32 s%d, s%d, %d" % (sS3, sS2, min(OPT['pf0'], 6) * 65536), "s_sub_u32 s%d, s%d, %d" % (sT + 3, sS3, 7 * 65536),
          "s_cmp_ge_u32 s%d, s%d" % (sS3, sW2e), "s_cselect_b32 s%d, s%d, s%d" % (sS3, sT + 3, sS3)]
    return L


def warmups(va, vb, mode=None):
    L = []
    mode = OPT['warm'] if mode is None else mode
    if mode == 2:
        L += [["s_lshl_b32 s%d, s%d, 2" % (sU + 12, sIDX), "s_add_u32 s%d, s%d, s%d" % (sU + 12, sU + 12, sWV)],
              ["s_mul_i32 s%d, s%d, %d" % (sU + 13, sU + 12, 14 * 1024), "s_lshl_b32 s%d, s%d, 12" % (sU + 12, sU + 12)],
              "v_min_u32 v%d, 13, v%d" % (va, vLANE), "v_lshl_add_u32 v%d, v%d, 10, s%d" % (va, va, sU + 13),
              "v_and_b32 v%d, 3, v%d" % (vb, vLANE), "v_lshl_add_u32 v%d, v%d, 10, s%d" % (vb, vb, sU + 12),
              ["s_and_b32 s%d, s%d, %d" % (sU + 12, sXCD, 1 if OPT['map2'] else 0), "s_lshl_b32 s%d, s%d, 29" % (sU + 12, sU + 12)],
              "buffer_load_dword v%d, v%d, %s, s%d offen offset:384" % (va, va, s4(sWD), sU + 12),
              "buffer_load_dword v%d, v%d, %s, s%d offen offset:384" % (vb, vb, s4(sWO), sU + 12)]
    elif mode:
        L += [["s_lshl_b32 s%d, s2, 2" % (sU + 12), "s_add_u32 s%d, s%d, s%d" % (sU + 12, sU + 12, sWV)],
              ["s_mul_i32 s%d, s%d, %d" % (sU + 13, sU + 12, 14 * 128), "s_lshl_b32 s%d, s%d, 9" % (sU + 12, sU + 12)],
              "v_min_u32 v%d, 13, v%d" % (va, vLANE), "v_lshl_add_u32 v%d, v%d, 7, s%d" % (va, va, sU + 13),
              "v_and_b32 v%d, 3, v%d" % (vb, vLANE), "v_lshl_add_u32 v%d, v%d, 7, s%d" % (vb, vb, sU + 12),
              "buffer_load_dword v%d, v%d, %s, 0 offen" % (va, va, s4(sWD)),
              "buffer_load_dword v%d, v%d, %s, 0 offen" % (vb, vb, s4(sWO))]
    return L


def warmt(va, vb):
    L = []
    if OPT['warmt'] == 2:
        L += [["s_lshl_b32 s%d, s%d, 16" % (sU + 14, sMT), "s_lshl_b32 s%d, s%d, 7" % (sU + 15, sNT)], "s_add_u32 s%d, s%d, s%d" % (sU + 14, sU + 14, sU + 15),
              "v_lshl_add_u32 v%d, v%d, 10, s%d" % (vb, vLANE, sU + 14),
              "buffer_load_dword v%d, v%d, %s, 0 offen" % (vb, vb, s4(sO))]
    elif OPT['warmt']:
        L += ["v_and_b32 v%d, 7, v%d" % (va, vLANE), "v_lshlrev_b32 v%d, 21, v%d" % (va, va),
              "v_and_b32 v%d, 1, v%d" % (vb, vLANE), "v_lshlrev_b32 v%d, 20, v%d" % (vb, vb),
              "buffer_load_dword v%d, v%d, %s, 0 offen" % (va, va, s4(sA)),
              "buffer_load_dword v%d, v%d, %s, 0 offen" % (vb, vb, s4(sO))]
    return L


def l2_prefetch(va, vd):
    out = {}
    return out
    pre = [["s_lshl_b32 s%d, s%d, 11" % (sU + 12, sIDX), "v_and_b32 v%d, 15, v%d" % (va, vLANE)],
           "v_lshl_add_u32 v%d, v%d, 7, s%d" % (va, va, sU + 12)]
    k = 0
    for u in range(OPT['pf0'], 9):
        t = OPT['pft'] + k // OPT['pfper']
        k += 1
        g = list(pre)
        pre = []
        if u < 7:
            g += ["buffer_load_dword v%d, v%d, %s, s%d offen" % (vd, va, s4(sWD), sS3),
                  ["s_add_u32 s%d, s%d, 65536" % (sS3, sS3), "s_cmp_eq_u32 s%d, s%d" % (sS3, sW2e), "s_cselect_b32 s%d, s%d, s%d" % (sS3, sW2h, sS3)]]
        elif u == 7:
            g += ["buffer_load_dword v%d, v%d, %s, s%d offen" % (vd, va, s4(sWO), sW2o), "s_xor_b32 s%d, s%d, 0x10000" % (sS3, sW2o)]
        else:
            g += ["buffer_load_dword v%d, v%d, %s, s%d offen" % (vd, va, s4(sWO), sS3)]
        out.setdefault(400 + t, []).extend(g)
    return out


def iprefetch2(v, lab):
    return [["s_getpc_b64 s[%d:%d]" % (sU + 14, sU + 15), "%s_pc:" % lab],
            ["s_and_b32 s%d, s%d, 7" % (sU + 13, sIDX), "s_lshl_b32 s%d, s%d, 11" % (sU + 13, sU + 13)],
            "s_add_u32 s%d, s%d, %s_epi-%s_pc" % (sU + 13, sU + 13, lab, lab),
            "v_and_b32 v%d, 15, v%d" % (v, vLANE), "v_lshl_add_u32 v%d, v%d, 7, s%d" % (v, v, sU + 13),
            "global_load_dword v%d, v%d, s[%d:%d]" % (v, v, sU + 14, sU + 15)]


def store_offsets(specs):
    L = []
    for b, (base_sreg, add) in enumerate(specs):
        L += [["s_add_u32 s%d, s%d, %d" % (sU, base_sreg, add), "s_lshr_b32 s%d, s%d, 2" % (sU + 1, sU)],
              ["s_mul_i32 s%d, s%d, %d" % (sST + b, sU + 1, MT_STRIDE), "s_and_b32 s%d, s%d, 1" % (sU + 1, sU)],
              ["s_mul_i32 s%d, s%d, %d" % (sU + 1, sU + 1, CLS), "s_add_u32 s%d, s%d, s%d" % (sST + b, sST + b, sU + 1)],
              ["s_and_b32 s%d, s%d, 2" % (sU, sU), "s_lshl_b32 s%d, s%d, 9" % (sU, sU)],
              "s_add_u32 s%d, s%d, s%d" % (sST + b, sST + b, sU)]
    return L


vFO, vSH, vTG = 13, 14, 16


def flag_setup(vm):
    t = 18
    L = [["s_mul_i32 s%d, s%d, 43" % (sU, sMT), "s_lshr_b32 s%d, s%d, 7" % (sU, sU)],
         ["s_lshl_b32 s%d, s%d, 3" % (sU, sU), "s_mul_i32 s%d, s%d, %d" % (sU + 1, sMT, 4 * 187)],
         ["s_add_u32 s%d, s%d, %d" % (sU + 2, sU + 1, 3 * 187), "s_lshr_b32 s%d, s%d, 11" % (sU + 1, sU + 1)],
         ["s_lshr_b32 s%d, s%d, 11" % (sU + 2, sU + 2), "s_mul_i32 s%d, s%d, 14" % (sU + 1, sU + 1)],
         ["s_mul_i32 s%d, s%d, 14" % (sU + 2, sU + 2), "s_add_u32 s%d, s%d, 88" % (sU + 1, sU + 1)],
         "s_add_u32 s%d, s%d, 88" % (sU + 2, sU + 2),
         "v_and_b32 v%d, 15, v%d" % (t, vLANE), "v_min_u32 v%d, 13, v%d" % (t, t),
         "v_and_b32 v%d, 7, v%d" % (t + 1, vLANE), "v_add_u32 v%d, s%d, v%d" % (t + 1, sU, t + 1),
         "v_add_u32 v%d, s%d, v%d" % (t + 2, sU + 1, t), "v_add_u32 v%d, s%d, v%d" % (t + 3, sU + 2, t),
         "v_cmp_gt_u32 vcc, 16, v%d" % vLANE, "v_mov_b32 v%d, s%d" % (t, sPID),
         "v_cndmask_b32 v%d, v%d, v%d, vcc" % (t + 1, t + 2, t + 1),
         "v_cmp_gt_u32 vcc, 48, v%d" % vLANE,
         "v_cndmask_b32 v%d, v%d, v%d, vcc" % (t, t, t + 3),
         "v_cmp_gt_u32 vcc, 32, v%d" % vLANE,
         "v_cndmask_b32 v%d, v%d, v%d, vcc" % (t, t, t + 1),
         "v_lshlrev_b32 v%d, 7, v%d" % (vFO, t), "v_and_b32 v%d, 31, v%d" % (vSH, t),
         "v_lshrrev_b32 v%d, 5, v%d" % (t, t), "v_lshlrev_b32 v%d, 3, v%d" % (vFO + 2, t)]
    return L


def tag_load():
    return "buffer_load_dwordx2 %s, v%d, %s, 0 offen sc1" % (v2(vTG), vFO + 2, s4(sD))


class W2:
    AW2 = 128

    def __init__(self, sched, vm, vW2, trregs, region_free):
        self.sched, self.vm, self.vW2 = sched, vm, vW2
        self.pat = trregs[:4]
        self.lb = LdsBases(trregs[4:], chunk=0x10000)
        self.free = sorted((region_free[r], r) for r in range(20))
        self.region = {}
        self.items = {}
        sched.hook = self.assign
        for n in range(36):
            av = None
            kb, h = n >> 1, n & 1
            isO = kb < 4
            sr = sWO if isO else sWD
            sS = sW2o if isO else sS2
            its = []
            for i in range(2):
                pre = []
                if i == 0 and n not in (0, 8):
                    if n == 4:
                        pre = ["s_xor_b32 s%d, s%d, 0x1c000" % (sS, sS)]
                    else:
                        pre = ["s_add_u32 s%d, s%d, 16384" % (sS, sS)]
                        if n % 4 == 0 and not isO:
                            pre += ["s_cmp_eq_u32 s%d, s%d" % (sS2, sW2e), "s_cselect_b32 s%d, s%d, s%d" % (sS2, sW2h, sS2)]
                d = Dma('w2', ('w2', n), None, pre,
                        "buffer_load_dwordx4 v%d, %s, s%d offen offset:%d lds" % (vW2[i], s4(sr), sS, 1024 * i), av, 1000 + n)
                its.append(d)
                sched.add(d)
            self.items[n] = its
        self.nread = 0
        for t in range(4):
            for ch in (1, 2):
                self.lb.addr(self.pat[t], ch * 0x10000)

    def assign(self, slot):
        q = self.sched.streams['w2']
        if q and q[0].avail is None and self.free and self.free[0][0] <= slot:
            n = q[0].tag[1]
            av, r = self.free.pop(0)
            self.region[n] = r
            for d in self.items[n]:
                d.avail = av
                d.m0 = (sM2, 8192 * r)

    def setup_dma(self):
        a, b = self.vW2
        return ["v_lshrrev_b32 v%d, 4, v%d" % (a, vLANE), "v_lshlrev_b32 v%d, 1, v%d" % (a, a),
                "v_and_b32 v%d, 7, v%d" % (b, vLANE), "v_xor_b32 v%d, v%d, v%d" % (a, a, b), "v_lshlrev_b32 v%d, 4, v%d" % (a, a),
                "v_lshrrev_b32 v%d, 3, v%d" % (b, vLANE), "v_lshl_add_u32 v%d, v%d, 10, v%d" % (a, b, a),
                ["s_lshl_b32 s%d, s%d, 7" % (sU, sNT), "v_add_u32 v%d, s%d, v%d" % (a, sU, a)],
                "v_add_u32 v%d, 7168, v%d" % (b, a)]

    def setup_rd(self):
        p = self.pat
        L = ["v_lshrrev_b32 v%d, 2, v%d" % (p[1], vLANE), "v_lshrrev_b32 v%d, 3, v%d" % (p[2], vLANE),
             "v_and_b32 v%d, 3, v%d" % (p[2], p[2]), "v_lshlrev_b32 v%d, 5, v%d" % (p[2], p[2]),
             "v_lshl_add_u32 v%d, v%d, 7, v%d" % (p[1], p[1], p[2]), "v_and_b32 v%d, 3, v%d" % (p[2], vLANE),
             "v_lshl_add_u32 v%d, v%d, 3, v%d" % (p[1], p[2], p[1]), "v_add_u32 v%d, s%d, v%d" % (p[0], sM2, p[1])]
        L += ["v_xor_b32 v%d, %d, v%d" % (p[t], 32 * t, p[0]) for t in range(1, 4)]
        return L + self.lb.setup

    def reads(self, n, dstf):
        out = []
        for t in range(4):
            r, o = self.lb.addr(self.pat[t], 8192 * self.region[n])
            out.append("ds_read_b64_tr_b16 %s, v%d offset:%d" % (dstf(t), r, o))
        return out

    def take_reads(self, cnt, issued_upto, slot):
        out = []
        last = None
        while cnt > 0 and self.nread < 16 and self.nread < issued_upto:
            n = self.nread
            out += self.reads(n, lambda t: a2(self.AW2 + 16 * (n >> 1) + 4 * t + 2 * (n & 1)))
            self.free.append((slot + 1, self.region[n]))
            self.free.sort()
            last = n
            self.nread += 1
            cnt -= 1
        return out, last


def spread(mf, rd, dm, ef, tail=4):
    n = len(mf)
    gaps = [[] for _ in range(n)]
    load = [0] * n
    seq = [x for g in dm for x in g]
    vm_idx = [i for i, x in enumerate(seq) if x.startswith("buffer_")]
    k = len(vm_idx)
    lead = 2 if (vm_idx and vm_idx[0] > 0) else 0
    vpos = [lead + (j * (n - lead)) // k for j in range(k)] if k else []
    prev = -1
    pi = 0
    for j, vi in enumerate(vm_idx):
        sal = seq[pi:vi]
        room = list(range(prev + 1, vpos[j]))
        if not room:
            gaps[vpos[j]] += sal
        else:
            chunks = []
            for x in sal:
                if chunks and (len(chunks[-1]) < 2 or chunks[-1][-1].startswith("s_cmp")):
                    chunks[-1].append(x)
                else:
                    chunks.append([x])
            for c, ch in enumerate(chunks):
                g = room[min(c, len(room) - 1)]
                gaps[g] += ch
                load[g] += len(ch)
        gaps[vpos[j]].append(seq[vi])
        load[vpos[j]] += 2
        prev = vpos[j]
        pi = vi + 1
    assert pi == len(seq)

    def place(items, lo, hi):
        m = len(items)
        g = lo
        for i, it in enumerate(items):
            want = lo + (i * (hi - lo)) // m
            g = max(g, want)
            cap = 2
            gg = g
            while gg < hi and load[gg] + len(it) > max(cap, len(it)):
                gg += 1
            rem = m - i
            if gg >= hi or gg > want + 3:
                gg = min(range(g, min(g + 4, hi)), key=lambda z: load[z]) if g < hi else hi - 1
            gaps[gg] += it
            load[gg] += len(it)
            g = gg
    if rd:
        place([[r] for r in rd], 0, n - tail)
    if ef:
        place(ef, 0, n)
    out = []
    for i, m in enumerate(mf):
        out.append(m)
        out += gaps[i]
    return out


class Phase1:
    def __init__(self, typ, PF, xslot, wbase, wslot, nws, wpitch, nwd, gw_range, vW2, trregs):
        self.typ, self.PF = typ, PF
        self.xslot, self.wbase, self.wslot, self.nws = xslot, wbase, wslot, nws
        self.vm = VmTracker()
        self.sched = Sched(self.vm)
        nxd = 7 if typ == 'Q' else 6
        for s in range(8):
            slot = (s % 3) * xslot
            for d in range(nxd):
                m0 = (sMX, slot) if d < 4 else (sMX, slot + 4096) if d < 6 else (sM7, slot + 24576)
                imm = 1024 * (d & 3) if d < 6 else 0
                pre = stage_pre(s, sKX, 128) if d == 0 else []
                self.sched.add(Dma('x', ('x', s), m0, pre,
                                   "buffer_load_dwordx4 v%d, %s, s%d offen offset:%d lds" % (vXD + d, s4(sX), sKX, imm),
                                   -1 if s < 3 else 2 * (s - 3) + 1, 2 * s - 0.5))
        for t in range(16):
            slot = wbase + (t % nws) * wslot
            for e in range(nwd):
                pre = []
                if e == 0:
                    pre = stage_pre(t >> 1, sKW, 64 * wpitch) if t % 2 == 0 else ["s_add_u32 s%d, s%d, %d" % (sKW, sKW, 32 * wpitch)]
                self.sched.add(Dma('w', ('w', t), (sMW, slot), pre,
                                   "buffer_load_dwordx4 v%d, %s, s%d offen offset:%d lds" % (vWD + e, s4(sW), sKW, 1024 * e),
                                   -1 if t < nws else t - nws, t))
        busy = []
        for s in (5, 6, 7):
            busy.append(((s % 3) * xslot, (s % 3 + 1) * xslot, 2 * s + 1))
        for t in range(16 - nws, 16):
            busy.append((wbase + (t % nws) * wslot, wbase + (t % nws + 1) * wslot, t))
        if gw_range:
            busy.append((gw_range[0], gw_range[1], 15))
        first = 16 - nws
        rf = []
        for r in range(20):
            f = first
            for lo, hi, t in busy:
                if lo < 8192 * (r + 1) and hi > 8192 * r:
                    f = max(f, t)
            rf.append(f)
        self.w2 = W2(self.sched, self.vm, vW2, trregs, rf)
        self.w2_issued_at = {}

    def n_w2_issued(self):
        return (72 - len(self.sched.streams['w2'])) // 2

    def prologue(self):
        g, _ = self.sched.take(-1, 10)
        g2, _ = self.sched.take(-1, OPT['npro'] - 10)
        return sum(g, []) + self.PF.xstamp(51), sum(g2, []) + self.PF.xstamp(52)

    def main(self, xreads, wreads, mfmas, extra, extra_need={}):
        PF, vm = self.PF, self.vm

        def need(t):
            return lambda tag: (tag[0] == 'x' and tag[1] <= t // 2) or (tag[0] == 'w' and tag[1] <= t)

        def reads(t):
            return wreads(t, t & 1, self.wbase + (t % self.nws) * self.wslot) + xreads(t, t & 1, ((t // 2) % 3) * self.xslot)

        def check_issued(t):
            for q in ('x', 'w'):
                for d in self.sched.streams[q]:
                    assert not need(t)(d.tag), ("not issued in time", t, d.tag)
        body = PF.stamp()
        check_issued(0)
        body += ["s_waitcnt vmcnt(%d)" % vm.wait_for(need(0)), "s_barrier"] + reads(0) + ["s_waitcnt lgkmcnt(0)"]
        for t in range(16):
            body += PF.stamp()
            rd = []
            w2r, last = [], None
            if OPT['rdmain'] and t >= 13 and t - OPT['rdlag'] in self.w2_issued_at:
                w2r, last = self.w2.take_reads(4, self.w2_issued_at[t - OPT['rdlag']], t)
            nd = need(min(t + 1, 15))
            check_issued(min(t + 1, 15))
            n = vm.wait_for(lambda tag: nd(tag) or tag == extra_need.get(t) or (last is not None and tag[0] == 'w2' and tag[1] <= last))
            body += ["s_waitcnt vmcnt(%d)" % n, "s_barrier"]
            if t < 15:
                rd = reads(t + 1)
            rd += w2r
            if t == 12:
                assert not self.sched.streams['x'] and not self.sched.streams['w']
            dm, _ = self.sched.take(t, OPT['maxd'] if t < 11 else OPT['maxd2'])
            self.w2_issued_at[t] = self.n_w2_issued()
            if OPT['verbose']:
                sys.stderr.write('%s t=%d: %s\n' % (self.typ, t, ' '.join('%s%d' % d.tag for d in _)))
            mf = mfmas(t, t & 1)
            ef = [[g] if isinstance(g, str) else g for g in extra.get(t, []) + extra.get(t + 100, []) + extra.get(t + 200, []) + extra.get(t + 300, []) + extra.get(t + 400, [])]
            body += spread(mf, rd, dm, ef)
            if rd:
                body += ["s_waitcnt lgkmcnt(0)"]
        body += PF.stamp()
        return body

    def epi_slot(self, k, ndma=None, nrd=None):
        slot = 16 + k
        L = []
        if ndma is None:
            e = OPT['edma']
            ndma = e if e < 10 else (e // 10 if k % 2 == 0 else e % 10)
        if nrd is None:
            nrd = OPT['nrd']
        if getattr(self, 'epi_reads_pending', False):
            L += ["s_waitcnt lgkmcnt(0)"]
            self.epi_reads_pending = False
        upto = 0
        if k >= 1:
            upto = self.w2_issued_at[max(s for s in self.w2_issued_at if s <= max(slot - 3, 14))]
        r, last = self.w2.take_reads(nrd, upto, slot)
        if r:
            L += ["s_waitcnt vmcnt(%d)" % self.vm.wait_for(lambda tag: tag[0] == 'w2' and tag[1] <= last)] + r
            self.epi_reads_pending = True
        dm, _ = self.sched.take(slot, ndma)
        L += sum(dm, [])
        self.w2_issued_at[slot] = self.n_w2_issued()
        if OPT['verbose']:
            sys.stderr.write('%s epi %d: reads upto %d, %s\n' % (self.typ, k, self.w2.nread, ' '.join('%s%d' % d.tag for d in _)))
        return L

    def flush_w2(self, slot, keep):
        L = []
        while self.w2.nread < 16 or self.sched.pending() > keep or getattr(self, 'epi_reads_pending', False):
            L += self.epi_slot(slot - 16, ndma=max(self.sched.pending() - keep, 0), nrd=16)
            slot += 1
        return L


def flag_store(val_reg, lab):
    return ["s_cmp_lg_u32 s%d, 0" % sWV, "s_cbranch_scc1 %s" % lab,
            "s_mov_b32 exec_lo, 0", "s_brev_b32 exec_hi, 1",
            "buffer_store_dword v%d, v%d, %s, 0 offen sc1" % (val_reg, vFO, s4(sF)),
            "s_mov_b64 exec, -1", "%s:" % lab]


def publishA(P1, PF, lab):
    L = ["s_waitcnt vmcnt(%d)" % P1.vm.wait_for(lambda tag: tag[0] in ('stA', 'tag'))]
    L += ["s_mov_b32 s%d, 0" % sU,
          "%s_tag:" % lab,
          "v_cmp_eq_u32 vcc, 0, v%d" % (vTG + 1),
          "s_cmp_eq_u64 vcc, 0", "s_cbranch_scc1 %s_tagok" % lab,
          tag_load(), "s_add_u32 s%d, s%d, 1" % (sU, sU), "s_waitcnt vmcnt(0)",
          "s_cmp_lt_u32 s%d, 0x8000" % sU, "s_cbranch_scc1 %s_tag" % lab,
          "%s_tagok:" % lab,
          "v_lshrrev_b32 v%d, v%d, v%d" % (vTG, vSH, vTG), "v_and_b32 v%d, 1, v%d" % (vTG, vTG),
          "s_barrier",
          "v_or_b32 v%d, 2, v%d" % (vTG + 1, vTG)]
    L += flag_store(vTG, lab + "_fa")
    L += PF.stamp()
    return L


def poll_check(vP, mask, want, lab):
    return ["s_mov_b32 s%d, 0" % sU,
            "%s:" % lab,
            "v_and_b32 v%d, %d, v%d" % (vP, mask, vP),
            "v_cmp_ne_u32 vcc, v%d, v%d" % (want, vP),
            "s_cmp_eq_u64 vcc, 0", "s_cbranch_scc1 %s_ok" % lab,
            "buffer_load_dword v%d, v%d, %s, 0 offen sc1" % (vP, vFO, s4(sF)),
            "s_add_u32 s%d, s%d, 1" % (sU, sU),
            "s_waitcnt vmcnt(0)",
            "s_cmp_lt_u32 s%d, 0x8000" % sU, "s_cbranch_scc1 %s" % lab,
            "%s_ok:" % lab]


def pick_regions(cands):
    c = sorted(cands)
    for i in range(len(c) - 3):
        if c[i + 3] - c[i] <= 7:
            return c[i:i + 4]
    raise AssertionError(cands)


def phase2(P1, PF, lab):
    vm, w2 = P1.vm, P1.w2
    L = []
    vAD, vG, vXW, vXR, vOUT, vP, vT = 32, 36, 44, 52, 54, 55, 56
    AC = {(0, 'o'): 64, (0, 'h'): 96, (1, 'o'): 128, (1, 'h'): 160}
    VWF, VRD = 192, 224 - 128
    sSA0 = sST
    L += P1.flush_w2(40, OPT['keep'])
    L += ["buffer_load_dword v%d, v%d, %s, 0 offen sc1" % (vP, vFO, s4(sF))]
    vm.issue(('pa', 0))
    L += P1.flush_w2(60, 0)
    R1 = pick_regions([w2.region[n] for n in range(16, 24)])
    R2 = pick_regions([r for r in range(20) if r not in R1])
    m, g = vT, vT + 1
    L += ["v_lshlrev_b32 v%d, 4, v%d" % (vAD, vLANE), "v_and_b32 v%d, 15, v%d" % (m, vLANE), "v_lshrrev_b32 v%d, 4, v%d" % (g, vLANE),
          "s_lshl_b32 s%d, s%d, 8" % (sU, sMT), "v_lshl_add_u32 v%d, v%d, 2, s%d" % (vG + 4, m, sU),
          "s_mov_b32 s%d, s%d" % (sSA0, sSA), "s_mov_b32 s%d, s%d" % (sSA, sAo), "v_add_u32 v%d, %d, v%d" % (vAD + 28, CLS, vAD)]
    L += srd(sG, pWS, 8192, add=G_OFF)
    L += ['s_mov_b32 s%d, %d' % (sA + 2, A2_BYTES)]
    L += ["v_and_b32 v%d, 2, v%d" % (vT + 2, g), "v_xor_b32 v%d, v%d, v%d" % (vT + 2, vT + 2, m),
          "v_lshl_add_u32 v%d, v%d, 4, v%d" % (vT + 2, g, vT + 2), "v_lshl_add_u32 v%d, v%d, 4, s%d" % (vT + 2, vT + 2, sM2)]
    for t in range(4):
        L += ["v_xor_b32 v%d, %d, v%d" % (vT + 3, 64 * t, vT + 2)]
        for e, R in enumerate((R1, R2)):
            L += ["v_add_u32 v%d, %d, v%d" % (vXW + 4 * e + t, 8192 * R[t >> 1] + 1024 * (t & 1), vT + 3)]
    c, mm = vT, vT + 1
    L += ["v_and_b32 v%d, 7, v%d" % (c, vLANE), "v_lshrrev_b32 v%d, 3, v%d" % (mm, vLANE),
          "s_and_b32 s%d, s%d, 1" % (sU, sWV), "s_lshl_b32 s%d, s%d, 3" % (sU, sU), "v_add_u32 v%d, s%d, v%d" % (mm, sU, mm),
          "s_lshl_b32 s%d, s%d, 1" % (sU + 1, sMT), "s_lshr_b32 s%d, s%d, 1" % (sU + 2, sWV), "s_add_u32 s%d, s%d, s%d" % (sU + 1, sU + 1, sU + 2),
          "s_lshl_b32 s%d, s%d, 15" % (sU + 1, sU + 1), "s_lshl_b32 s%d, s%d, 7" % (sU + 3, sNT), "s_add_u32 s%d, s%d, s%d" % (sU + 1, sU + 1, sU + 3),
          "v_lshl_add_u32 v%d, v%d, 4, s%d" % (vOUT, c, sU + 1), "v_lshl_add_u32 v%d, v%d, 11, v%d" % (vOUT, mm, vOUT),
          "v_lshlrev_b32 v%d, 1, v%d" % (vT + 2, c), "v_xor_b32 v%d, v%d, v%d" % (mm, mm, vT + 2), "v_lshlrev_b32 v%d, 4, v%d" % (mm, mm),
          "v_and_b32 v%d, 3, v%d" % (vT + 2, c), "v_lshl_add_u32 v%d, v%d, 9, v%d" % (mm, vT + 2, mm),
          "v_lshrrev_b32 v%d, 2, v%d" % (c, c)]
    for e, R in enumerate((R1, R2)):
        L += ["s_cmp_eq_u32 s%d, 0" % (sU + 2),
              "s_mov_b32 s%d, %d" % (sU + 4, 8192 * R[2]), "s_cselect_b32 s%d, %d, s%d" % (sU + 4, 8192 * R[0], sU + 4),
              "s_mov_b32 s%d, %d" % (sU + 5, 8192 * (R[3] - R[2])), "s_cselect_b32 s%d, %d, s%d" % (sU + 5, 8192 * (R[1] - R[0]), sU + 5),
              "v_mad_u32_u24 v%d, v%d, s%d, v%d" % (vXR + e, c, sU + 5, mm), "v_add_u32 v%d, s%d, v%d" % (vXR + e, sU + 4, vXR + e)]
    L += ["s_waitcnt vmcnt(%d)" % vm.wait_for(lambda tg: tg[0] == 'pa')]
    L += PF.stamp()
    L += ["s_barrier"] + flag_store(vTG + 1, lab + "_fb")
    L += poll_check(vP, 1, vTG, lab + "_pa")
    L += PF.stamp()
    LA, NAB = OPT['la'], 7
    assert LA < NAB

    def issue(st):
        p, u = divmod(st, 9)
        out = []
        for i in range(4):
            gq = ["buffer_load_dwordx4 %s, v%d, %s, s%d offen offset:%d sc1" % (a4(16 * (st % NAB) + 4 * i), vAD + 4 * 7 * p, s4(sA), sSA, 1024 * i)]
            vm.issue(('a', st))
            if i == 3 and st < 17:
                if u == 8:
                    gq += ["s_mov_b32 s%d, s%d" % (sSA, sAo)]
                elif u == 0:
                    gq += ["s_xor_b32 s%d, s%d, 0x1000" % (sSA, sAo)]
                elif u == 1:
                    gq += ["s_mov_b32 s%d, s%d" % (sSA, sSA0)]
                else:
                    gq += ["s_add_u32 s%d, s%d, 4096" % (sSA, sSA),
                           "s_cmp_eq_u32 s%d, s%d" % (sSA, sAe), "s_cselect_b32 s%d, s%d, s%d" % (sSA, sAh, sSA)]
            out.append(gq)
        return out
    nxt = 0
    for st in range(OPT['la0']):
        L += sum(issue(st), [])
        nxt += 1

    def wfrag(kb, t):
        return a4(W2.AW2 + 16 * kb + 4 * t) if kb < 8 else v4(VWF + 16 * (kb & 3) + 4 * t)

    def xw(e, q, t, src):
        R = (R1, R2)[e]
        return "ds_write_b128 v%d, %s offset:%d" % (vXW + 4 * e + t, v4(src), 8192 * (R[2 + (t >> 1)] - R[t >> 1]) * q)

    def xr(e, dst):
        return ["ds_read_b128 %s, v%d offset:%d" % (v4(dst + 8 * w + 4 * h), vXR + e, 2048 * w + 256 * h) for w in range(4) for h in range(2)]

    def fin(p, dst):
        return ["v_cvt_pk_bf16_f32 v%d, v%d, v%d" % (dst + i, dst + 2 * i, dst + 2 * i + 1) for i in range(4)] + \
               ["buffer_store_dwordx4 %s, v%d, %s, 0 offen offset:%d%s" % (v4(dst), vOUT, s4(sO), 1024 * p, ["", " sc1", " nt", " sc0 sc1"][OPT['outsc']])]
    pollst = OPT['pollst']
    chk = 9 - LA
    assert pollst < chk
    O0, H0, O1, H1 = AC[(0, 'o')], AC[(0, 'h')], AC[(1, 'o')], AC[(1, 'h')]
    ex = {}
    mul0 = ["v_mul_f32 v%d, v%d, v%d" % (O0 + i, O0 + i, vG + 2 * (i >> 4)) for i in range(32)]
    fma0 = ["v_fma_f32 v%d, v%d, v%d, v%d" % (H0 + i, H0 + i, vG + 4 + 2 * (i >> 4), O0 + i) for i in range(32)]
    mul1 = ["v_mul_f32 v%d, v%d, v%d" % (O1 + i, O1 + i, vG + 1 + 2 * (i >> 4)) for i in range(32)]
    ex[8] = ["v_sub_f32 v%d, 1.0, v%d" % (vG + 4 + r, vG + r) for r in range(4)] + mul0[:20]
    ex[9] = mul0[20:] + fma0[:8]
    ex[10] = fma0[8:]
    ex[11] = mul1[:20]
    ex[12] = mul1[20:]
    ex[14] = [xw(0, q, t, H0 + 16 * q + 4 * t) for q in range(2) for t in range(4)]
    ex[15] = xr(0, O0)
    add0 = ["v_add_f32 v%d, v%d, v%d" % (O0 + i, O0 + i, O0 + 8 + i) for i in range(8)] + \
           ["v_add_f32 v%d, v%d, v%d" % (O0 + 16 + i, O0 + 16 + i, O0 + 24 + i) for i in range(8)] + \
           ["v_add_f32 v%d, v%d, v%d" % (O0 + i, O0 + i, O0 + 16 + i) for i in range(8)]
    ex[16] = add0[:12]
    ex[17] = add0[12:] + fin(0, O0)
    lg = VmTracker()

    def lgwait(pred):
        if not any(pred(t_) for t_ in lg.tags):
            return None
        return min(lg.wait_for(pred), 15)
    for st in range(18):
        p, u = divmod(st, 9)
        n = vm.wait_for(lambda g_: (g_[0] == 'a' and g_[1] <= st) or (st == chk and g_[0] == 'pb') or (st == 8 and g_[0] == 'g'))
        lw = lgwait(lambda t_: t_ == ('f', st, 0) or (st == 15 and t_[0] == 'xw') or (st == 16 and t_[0] == 'xr'))
        L += ["s_waitcnt vmcnt(%d)%s" % (n, "" if lw is None else " lgkmcnt(%d)" % lw)]
        if st == 15:
            L += ["s_barrier"]
        if st == chk:
            L += poll_check(vP, 3, vTG + 1, lab + "_pb")
        if st in (0, 4, 9, 13):
            L += PF.stamp()
        rd = []
        if 4 <= u + 1 < 9:
            for k, kb in enumerate((2 * u + 2, 2 * u + 3)):
                for h in range(2):
                    rd += [(x, ('f', st + 1, k)) for x in w2.reads(2 * kb + h, lambda t: v2(VWF + 16 * (kb & 3) + 4 * t + 2 * h))]
        dm = []
        for _ in range(2):
            if nxt < 18 and nxt <= st + LA:
                dm += issue(nxt)
                nxt += 1
        if st == 1:
            for r in range(4):
                dm += [["buffer_load_dword v%d, v%d, %s, 0 offen offset:%d sc1" % (vG + r, vG + 4, s4(sG), 64 * r)]]
                vm.issue(('g', 0))
        if st == pollst:
            dm += [["buffer_load_dword v%d, v%d, %s, 0 offen sc1" % (vP, vFO, s4(sF))]]
            vm.issue(('pb', 0))
        acc = AC[(p, 'o' if u < 2 else 'h')]
        mf = []
        order = [(q, t, k) for k in range(2) for q in range(2) for t in range(4)] if u >= 4 else \
                [(q, t, k) for q in range(2) for t in range(4) for k in range(2)]
        for q, t, k in order:
            d = v4(acc + 16 * q + 4 * t)
            mf.append("v_mfma_f32_16x16x32_bf16 %s, %s, %s, %s" % (d, wfrag(2 * u + k, t), a4(16 * (st % NAB) + 8 * k + 4 * q),
                                                                "0" if (u in (0, 2) and k == 0) else d))
        gaps = [[] for _ in mf]
        for i, r in enumerate(rd):
            gaps[i].append(r)
        sp = OPT['ldsp']
        for i, g in enumerate(dm):
            gaps[min(i * sp, 15)] += [(x, None) for x in g]
        e = ex.get(st, [])
        for i, x in enumerate(e):
            tg = ('xw',) if x.startswith("ds_write") else ('xr',) if x.startswith("ds_read") else None
            gaps[i if tg else (i * 16) // len(e)].append((x, tg))
        for i, (m_, g) in enumerate(zip(mf, gaps)):
            if i == 8 and u >= 4:
                L += ["s_waitcnt lgkmcnt(%d)" % lgwait(lambda t_: t_ == ('f', st, 1))]
            L += [m_]
            for x, tg in g:
                L += [x]
                if tg:
                    lg.issue(tg)
        if any(x.startswith("buffer_store") for x in e):
            vm.issue(('o', 0))
    L += PF.stamp()
    for q in range(2):
        for i in range(0, 16, 2):
            L += ["v_pk_fma_f32 %s, %s, %s, %s op_sel:[0,1,0] op_sel_hi:[1,1,1]" % (v2(H1 + 16 * q + i), v2(H1 + 16 * q + i), v2(vG + 4 + 2 * q), v2(O1 + 16 * q + i))]
            if i % 4 == 2:
                L += [xw(1, q, i >> 2, H1 + 16 * q + (i & ~3))]
    L += ["s_waitcnt lgkmcnt(0)", "s_barrier"] + xr(1, O1)
    L += ["s_waitcnt lgkmcnt(4)"]
    L += ["v_pk_add_f32 %s, %s, %s" % (v2(O1 + i), v2(O1 + i), v2(O1 + 8 + i)) for i in range(0, 8, 2)]
    L += ["s_waitcnt lgkmcnt(0)"]
    L += ["v_pk_add_f32 %s, %s, %s" % (v2(O1 + 16 + i), v2(O1 + 16 + i), v2(O1 + 24 + i)) for i in range(0, 8, 2)]
    L += ["v_pk_add_f32 %s, %s, %s" % (v2(O1 + i), v2(O1 + i), v2(O1 + 16 + i)) for i in range(0, 8, 2)]
    L += fin(1, O1)
    L += PF.stamp() + PF.dump() + ["s_endpgm"]
    return L


def gen_H():
    PF = Prof(31)
    L = PF.stamp()
    L += ["s_mul_i32 s%d, s%d, 21" % (sT, sXCD), "s_add_u32 s%d, s%d, s%d" % (sT, sT, sIDX), "s_sub_u32 s%d, s%d, 11" % (sT, sT),
          "s_mul_i32 s%d, s%d, 171" % (sCG, sT), "s_lshr_b32 s%d, s%d, 11" % (sCG, sCG),
          "s_mul_i32 s%d, s%d, 12" % (sT + 1, sCG), "s_sub_u32 s%d, s%d, s%d" % (sT, sT, sT + 1),
          "s_mul_i32 s%d, s%d, 11" % (sRB0, sT),
          "s_mul_i32 s%d, s%d, 14" % (sPID, sT), "s_add_u32 s%d, s%d, s%d" % (sPID, sPID, sCG), "s_add_u32 s%d, s%d, 88" % (sPID, sPID),
          "s_mul_i32 s%d, s%d, %d" % (sROT, sCG, OPT['rotb']), "s_add_u32 s%d, s%d, s%d" % (sROT, sT, sROT)]
    L += rot_fix('H')
    x_setup(L, 'H')
    L += ["v_and_b32 v38, 1, v33", "v_lshlrev_b32 v38, 1, v38", "v_xor_b32 v38, v34, v38", "v_lshlrev_b32 v38, 4, v38",
          "s_movk_i32 s%d, 3584" % sT, "v_mad_u32_u24 v38, v32, s%d, v38" % sT, "v_xor_b32 v39, 64, v38",
          "s_and_b32 s%d, s%d, 1" % (sT, sWV), "s_lshl_b32 s%d, s%d, 7" % (sT, sT),
          "s_lshl_b32 s%d, s%d, 8" % (sT + 1, sCG), "s_add_u32 s%d, s%d, s%d" % (sT, sT, sT + 1)]
    for e in range(4):
        L += ["s_add_u32 s%d, s%d, %d" % (sT + 1, sT, e * (8 * 3584 - 1024)), "v_add_u32 v%d, s%d, v%d" % (vWD + e, sT + 1, 38 + (e & 1))]
    L += ["s_mul_i32 s%d, s%d, 6144" % (sMX, sWV), "s_lshl_b32 s%d, s%d, 12" % (sMW, sWV)]
    L += ["s_waitcnt lgkmcnt(0)"] + PF.xstamp(50)
    L += srd(sX, pX, 2048 * 1024, bias=4096)
    L += ["s_cmp_lt_u32 s%d, 2" % sWV, "s_cselect_b32 s%d, s%d, s%d" % (sW, pWG, pWU), "s_cselect_b32 s%d, s%d, s%d" % (sW + 1, pWG + 1, pWU + 1),
          "s_mov_b32 s%d, %d" % (sW + 2, 512 * 3584), "s_mov_b32 s%d, 0x20000" % (sW + 3)]
    XS, WB, WS = 24576, 73728, 16384
    P1 = Phase1('H', PF, XS, WB, WS, OPT['nwsH'], 3584, 4, None, (61, 62), [2, 3, 4, 5, 6, 7, 8, 9, 10, 28, 29, 30])
    lb = LdsBases(range(vRD + 4, 28))
    vx0, vx1, vw0, vw1 = vRD, vRD + 1, vRD + 2, vRD + 3
    S2 = ["v_and_b32 v40, 15, v%d" % vLANE, "v_lshrrev_b32 v41, 1, v40", "v_xor_b32 v41, v41, v33",
          "v_lshlrev_b32 v41, 4, v41", "v_lshl_add_u32 v%d, v40, 7, v41" % vx0, "v_xor_b32 v%d, 64, v%d" % (vx1, vx0)]
    S2 += ["v_lshrrev_b32 v42, 2, v40", "v_lshl_add_u32 v43, v33, 3, v42",
           "v_lshrrev_b32 v44, 1, v42", "v_and_b32 v45, 1, v33", "v_lshl_add_u32 v44, v45, 1, v44",
           "s_and_b32 s%d, s%d, 1" % (sT, sWV), "s_lshl_b32 s%d, s%d, 1" % (sT, sT), "v_xor_b32 v44, s%d, v44" % sT,
           "v_lshlrev_b32 v44, 5, v44", "v_lshl_add_u32 v43, v43, 7, v44",
           "v_and_b32 v45, 3, v%d" % vLANE, "v_lshl_add_u32 v43, v45, 3, v43",
           "s_lshr_b32 s%d, s%d, 1" % (sT, sWV), "s_lshl_b32 s%d, s%d, 12" % (sT, sT),
           "v_add_u32 v%d, s%d, v43" % (vw0, sT), "v_xor_b32 v%d, 32, v%d" % (vw1, vw0)]
    AW, AX = 0, 32

    def xreads(t, buf, xo):
        out = []
        for b in range(11):
            r, o = lb.addr(vx1 if (t & 1) else vx0, xo + 2048 * b)
            out.append("ds_read_b128 %s, v%d offset:%d" % (a4(AX + 44 * buf + 4 * b), r, o))
        return out

    def wreads(t, buf, wo):
        out = []
        for q in range(4):
            for h in range(2):
                r, o = lb.addr(vw1 if (q & 1) else vw0, wo + (8192 if q >= 2 else 0) + 512 * h)
                out.append("ds_read_b64_tr_b16 %s, v%d offset:%d" % (a2(AW + 16 * buf + 4 * q + 2 * h), r, o))
        return out

    def mfmas(t, buf):
        out = []
        for b in range(11):
            for q in (range(3, -1, -1) if (OPT['snake'] and b % 2) else range(4)):
                d = v4(ACC + 16 * b + 4 * q)
                out.append("v_mfma_f32_16x16x32_bf16 %s, %s, %s, %s" % (d, a4(AW + 16 * buf + 4 * q), a4(AX + 44 * buf + 4 * b), d if t else "0"))
        return out
    vST = 60
    ES = ["s_mov_b32 s%d, 0x%x" % (sC0, NLOG2E), "s_mov_b32 s%d, 0x%x" % (sC0 + 1, NLOG2E),
          "s_mov_b32 s%d, 1.0" % (sC0 + 2), "s_mov_b32 s%d, 1.0" % (sC0 + 3),
          ["s_lshl_b32 s%d, s%d, 2" % (sU, sCG), "s_add_u32 s%d, s%d, s%d" % (sU, sU, sWV)],
          ["s_add_u32 s%d, s%d, 16" % (sU, sU), "s_lshl_b32 s%d, s%d, 11" % (sU, sU)],
          "v_lshlrev_b32 v%d, 4, v%d" % (vST, vLANE), "v_add_u32 v%d, s%d, v%d" % (vST, sU, vST)]
    ES += [["s_add_u32 s%d, s%d, s%d" % (sU + 2, sRB0, sPAR), "s_sub_u32 s%d, s%d, s%d" % (sU + 3, sRB0, sPAR)]]
    so = store_offsets([(sU + 2, 2 * b) for b in range(5)] + [(sRB0, 10)] + [(sU + 3, 1 + 2 * b) for b in range(5)])
    pro = P1.prologue()
    body = P1.main(xreads, wreads, mfmas, {OPT['wt'] + 100: warmups(46, 47), OPT['wt2'] + 200: warmups(48, 49, 1), OPT['ipf2'] + 300: iprefetch2(50, 'H'), **l2_prefetch(51, 52), 0: P1.w2.setup_dma(), 5: ES, 12: P1.w2.setup_rd(), 6: so[:15], 7: so[15:30], 8: so[30:45], 10: so[45:], 15: flag_setup(P1.vm)})
    L += (tlb_warm() + pro[0] if OPT['tlb'] == 2 else pro[0] + tlb_warm()) + S2 + lb.setup + late_scalar_setup() + pro[1] + body + ['H_epi:']
    L += [tag_load()]
    P1.vm.issue(('tag', 0))
    for b in range(11):
        base = ACC + 16 * b
        G = [base + i for i in range(8)]
        U = [base + 8 + i for i in range(8)]
        L += ["v_pk_mul_f32 %s, %s, s[%d:%d]" % (v2(G[i]), v2(G[i]), sC0, sC0 + 1) for i in range(0, 8, 2)]
        L += ["v_exp_f32 v%d, v%d" % (g, g) for g in G]
        L += P1.epi_slot(b)
        L += ["v_pk_add_f32 %s, %s, s[%d:%d]" % (v2(G[i]), v2(G[i]), sC0 + 2, sC0 + 3) for i in range(0, 8, 2)]
        L += ["v_rcp_f32 v%d, v%d" % (g, g) for g in G]
        L += ["v_pk_mul_f32 %s, %s, %s" % (v2(U[i]), v2(U[i]), v2(G[i])) for i in range(0, 8, 2)]
        L += ["v_cvt_pk_bf16_f32 v%d, v%d, v%d" % (G[i], U[2 * i], U[2 * i + 1]) for i in range(4)]
        L += ["buffer_store_dwordx4 %s, v%d, %s, s%d offen%s" % (v4(base), vST, s4(sA), sST + b, ["", " sc1", " nt", " sc1 nt"][OPT['stsc']])]
        P1.vm.issue(('stA' if b < 6 else 'stB', b))
        if b == OPT['pubH']:
            L += publishA(P1, PF, "H")
    L += PF.stamp()
    L += phase2(P1, PF, "H")
    return L


def gen_Q():
    PF = Prof(10 if False else 31)
    L = PF.stamp()
    L += ["s_mov_b32 s%d, s%d" % (sCG, sXCD), "s_mul_i32 s%d, s%d, 12" % (sRB0, sIDX),
          "s_lshl_b32 s%d, s%d, 3" % (sPID, sIDX), "s_add_u32 s%d, s%d, s%d" % (sPID, sPID, sXCD),
          "s_add_u32 s%d, s%d, s%d" % (sROT, sIDX, sXCD), "s_add_u32 s%d, s%d, %d" % (sROT, sROT, OPT['rotq'])]
    L += rot_fix('Q')
    x_setup(L, 'Q')
    L += ["s_lshl_b32 s%d, s%d, 4" % (sT, sRB0), "s_add_u32 s%d, s%d, s%d" % (sT, sT, sWV),
          "s_sub_u32 s%d, s%d, 16" % (sT, sT), "s_lshl_b32 s%d, s%d, 10" % (sT, sT), "s_add_u32 s%d, s%d, 4096" % (sT, sT),
          "s_cmp_eq_u32 s%d, 0" % sRB0, "s_cselect_b32 s%d, 0x%x, s%d" % (sT, BIG, sT),
          "s_cmp_ge_u32 s%d, 2" % sWV, "s_cselect_b32 s%d, 0x%x, s%d" % (sT, BIG, sT),
          "s_and_b32 s%d, s%d, 1" % (sT + 1, sWV), "s_lshl_b32 s%d, s%d, 6" % (sT + 1, sT + 1),
          "v_xor_b32 v38, s%d, v36" % (sT + 1), "v_add_u32 v%d, s%d, v38" % (vXD + 6, sT)]
    L += ["v_and_b32 v38, 1, v33", "v_lshlrev_b32 v38, 1, v38", "v_xor_b32 v38, v34, v38", "v_lshlrev_b32 v38, 4, v38",
          "s_movk_i32 s%d, 3072" % sT, "v_mad_u32_u24 v38, v32, s%d, v38" % sT,
          "s_mul_i32 s%d, s%d, 3" % (sT, sWV), "s_lshl_b32 s%d, s%d, 7" % (sT + 4, sCG)]
    for e in range(3):
        L += ["s_add_u32 s%d, s%d, %d" % (sT + 1, sT, e),
              "s_and_b32 s%d, s%d, 3" % (sT + 2, sT + 1), "s_mul_i32 s%d, s%d, %d" % (sT + 2, sT + 2, 8 * 3072),
              "s_lshr_b32 s%d, s%d, 2" % (sT + 3, sT + 1), "s_lshl_b32 s%d, s%d, 10" % (sT + 3, sT + 3),
              "s_add_u32 s%d, s%d, s%d" % (sT + 2, sT + 2, sT + 3), "s_add_u32 s%d, s%d, s%d" % (sT + 2, sT + 2, sT + 4),
              "s_sub_u32 s%d, s%d, %d" % (sT + 2, sT + 2, 1024 * e),
              "s_and_b32 s%d, s%d, 1" % (sT + 1, sT + 1), "s_lshl_b32 s%d, s%d, 6" % (sT + 1, sT + 1),
              "v_xor_b32 v39, s%d, v38" % (sT + 1), "v_add_u32 v%d, s%d, v39" % (vWD + e, sT + 2)]
    L += ["s_mul_i32 s%d, s%d, 6144" % (sMX, sWV), "s_mul_i32 s%d, s%d, 3072" % (sMW, sWV), "s_lshl_b32 s%d, s%d, 10" % (sM7, sWV)]
    L += ["v_lshlrev_b32 v39, 2, v32", "s_mov_b32 s%d, 0x%x" % (sT, OPT['masks'] & 0x77777777),
          "v_lshrrev_b32 v39, v39, s%d" % sT, "s_and_b32 s%d, s%d, 7" % (sT + 1, sROT), "v_and_b32 v39, s%d, v39" % (sT + 1),
          "v_xor_b32 v39, v39, v32", "v_lshl_add_u32 v39, v39, 3, v34", "v_lshlrev_b32 v39, 4, v39"]
    L += ["s_waitcnt lgkmcnt(0)"] + PF.xstamp(50)
    L += srd(sX, pX, 2048 * 1024, bias=4096) + srd(sW, pQKV, 512 * 3072) + srd(sG, pGW, 1024)
    XS, WB, WS, NWS = 28672, 86016, 12288, 6
    GW = WB + NWS * WS
    L += ["s_mov_b32 m0, %d" % GW, "s_nop 0", "buffer_load_dwordx4 v39, %s, 0 offen lds" % s4(sG)]
    P1 = Phase1('Q', PF, XS, WB, WS, NWS, 3072, 3, (GW, GW + 1024), (12, 0), [2, 3, 4, 5, 6, 7, 8, 9, 10, 28, 29, 30])
    lb = LdsBases(range(vRD + 9, 28))
    lb2 = LdsBases(range(46, 54))
    vx0, vx1, vw0, vw1, vh0, vh1, vt0, vt1, vg = [vRD + i for i in range(9)]
    S2 = ["v_and_b32 v40, 15, v%d" % vLANE, "v_lshrrev_b32 v41, 1, v40", "v_xor_b32 v41, v41, v33",
          "v_lshlrev_b32 v41, 4, v41", "v_lshl_add_u32 v42, v40, 7, v41",
          "s_lshr_b32 s%d, s%d, 1" % (sT, sWV), "s_mul_i32 s%d, s%d, %d" % (sT + 1, sT, 6 * 2048),
          "v_add_u32 v%d, s%d, v42" % (vx0, sT + 1), "v_xor_b32 v%d, 64, v%d" % (vx1, vx0)]
    S2 += ["s_lshl_b32 s%d, s%d, 2" % (sT + 1, sCG), "s_add_u32 s%d, s%d, s%d" % (sT + 1, sT + 1, sWV),
           "s_min_u32 s%d, s%d, 11" % (sT + 1, sT + 1), "s_lshl_b32 s%d, s%d, 11" % (sT + 1, sT + 1),
           "v_add_u32 v%d, s%d, v42" % (vt0, sT + 1), "v_xor_b32 v%d, 64, v%d" % (vt1, vt0)]
    S2 += ["v_or_b32 v43, 8, v40", "v_lshrrev_b32 v44, 1, v43", "v_xor_b32 v44, v44, v33", "v_lshlrev_b32 v44, 4, v44",
           "v_lshl_add_u32 v44, v43, 7, v44",
           "v_lshrrev_b32 v45, 3, v40", "v_lshl_add_u32 v44, v45, 11, v44", "v_add_u32 v44, %d, v44" % (4 * 2048),
           "v_add_u32 v45, %d, v42" % (12 * 2048),
           "s_cmp_eq_u32 s%d, 0" % sT, "s_cselect_b64 vcc, -1, 0",
           "v_cndmask_b32 v%d, v44, v45, vcc" % vh0, "v_xor_b32 v%d, 64, v%d" % (vh1, vh0)]
    S2 += ["v_lshrrev_b32 v42, 2, v40", "v_lshl_add_u32 v43, v33, 3, v42",
           "v_lshrrev_b32 v44, 1, v42", "v_and_b32 v45, 1, v33", "v_lshl_add_u32 v44, v45, 1, v44",
           "s_and_b32 s%d, s%d, 1" % (sT, sWV), "s_lshl_b32 s%d, s%d, 1" % (sT, sT), "v_xor_b32 v44, s%d, v44" % sT,
           "v_lshlrev_b32 v44, 5, v44", "v_lshl_add_u32 v43, v43, 7, v44",
           "v_and_b32 v45, 3, v%d" % vLANE, "v_lshl_add_u32 v%d, v45, 3, v43" % vw0,
           "v_xor_b32 v%d, 32, v%d" % (vw1, vw0),
           "v_lshlrev_b32 v45, 4, v33", "v_add_u32 v%d, %d, v45" % (vg, GW)]
    AW, AX = 0, 48

    def Qa(hh, b): return ACC + 4 * (hh * 20 + b)
    def Ka(hh, b): return ACC + 4 * (hh * 20 + 6 + b)
    def Va(hh, b): return ACC + 4 * (hh * 20 + 13 + b)
    TA = ACC + 160

    def xreads(t, buf, xo):
        out = []
        for b in range(6):
            r, o = lb.addr(vx1 if (t & 1) else vx0, xo + 2048 * b)
            out.append("ds_read_b128 %s, v%d offset:%d" % (a4(AX + 36 * buf + 4 * b), r, o))
        r, o = lb.addr(vh1 if (t & 1) else vh0, xo)
        out.append("ds_read_b128 %s, v%d offset:%d" % (a4(AX + 36 * buf + 24), r, o))
        r, o = lb.addr(vt1 if (t & 1) else vt0, xo)
        out.append("ds_read_b128 %s, v%d offset:%d" % (a4(AX + 36 * buf + 28), r, o))
        out.append("ds_read_b128 %s, v%d offset:%d" % (a4(AX + 36 * buf + 32), vg, 64 * t))
        return out

    def wreads(t, buf, wo):
        out = []
        for seg in range(3):
            for hh in range(2):
                for h in range(2):
                    r, o = lb2.addr(vw1 if hh else vw0, wo + 4096 * seg + 512 * h)
                    out.append("ds_read_b64_tr_b16 %s, v%d offset:%d" % (a2(AW + 24 * buf + 4 * (seg * 2 + hh) + 2 * h), r, o))
        return out

    def mfmas(t, buf):
        out = []
        W = lambda seg, hh: a4(AW + 24 * buf + 4 * (seg * 2 + hh))
        for b in range(7):
            X = a4(AX + 36 * buf + 4 * b)
            for hh in range(2):
                if b < 6:
                    d = v4(Qa(hh, b)); out.append("v_mfma_f32_16x16x32_bf16 %s, %s, %s, %s" % (d, W(0, hh), X, d if t else "0"))
                d = v4(Ka(hh, b)); out.append("v_mfma_f32_16x16x32_bf16 %s, %s, %s, %s" % (d, W(1, hh), X, d if t else "0"))
                d = v4(Va(hh, b)); out.append("v_mfma_f32_16x16x32_bf16 %s, %s, %s, %s" % (d, X, W(2, hh), d if t else "0"))
        d = v4(TA)
        out.append("v_mfma_f32_16x16x32_bf16 %s, %s, %s, %s" % (d, a4(AX + 36 * buf + 32), a4(AX + 36 * buf + 28), d if t else "0"))
        return out
    MC, MP, MH0, MH1, AM, ONES, SPARE = 228, 232, 236, 240, 244, 248, 252
    vST, vGO = 250, 251
    ES = [srd(sG, pWS, 8192, add=G_OFF),
          "s_mov_b32 s%d, 0x%x" % (sC0, SCL), "s_mov_b32 s%d, 0x%x" % (sC0 + 1, NLOG2E),
          ["s_lshl_b32 s%d, s%d, 1" % (sU, sCG), "s_and_b32 s%d, s%d, 1" % (sU + 1, sWV)],
          ["s_add_u32 s%d, s%d, s%d" % (sU, sU, sU + 1), "s_lshl_b32 s%d, s%d, 11" % (sU, sU)],
          "v_lshlrev_b32 v%d, 4, v%d" % (vST, vLANE), "v_add_u32 v%d, s%d, v%d" % (vST, sU, vST),
          ["s_lshl_b32 s%d, s%d, 2" % (sU, sCG), "s_add_u32 s%d, s%d, s%d" % (sU, sU, sWV)],
          ["s_add_u32 s%d, s%d, s%d" % (sU + 1, sU, sRB0), "s_lshl_b32 s%d, s%d, 6" % (sU + 1, sU + 1)],
          ["s_cmp_lt_u32 s%d, 12" % sU, "s_cselect_b32 s%d, s%d, 0x%x" % (sU + 1, sU + 1, BIG)],
          "v_lshl_add_u32 v%d, v%d, 2, s%d" % (vGO, vLANE, sU + 1),
          "v_mov_b32 v%d, 0x%x" % (SPARE, BIG),
          "v_cmp_gt_u32 vcc, 16, v%d" % vLANE,
          "v_mov_b32 v%d, 0x3f803f80" % ONES, "v_mov_b32 v%d, 0x3f803f80" % (ONES + 1),
          "v_cndmask_b32 v%d, v%d, v%d, vcc" % (vGO, SPARE, vGO),
          ["s_lshr_b32 s%d, s%d, 1" % (sU + 2, sWV), "s_mul_i32 s%d, s%d, 6" % (sU + 2, sU + 2)],
          "s_add_u32 s%d, s%d, s%d" % (sU + 2, sU + 2, sRB0)]
    so = store_offsets([(sU + 2, b) for b in range(6)])
    HV, HV2 = sU + 4, sU + 6
    ES2 = ["v_and_b32 v%d, 15, v%d" % (SPARE, vLANE), "v_lshrrev_b32 v%d, 4, v%d" % (SPARE + 1, vLANE),
           "v_lshlrev_b32 v%d, 2, v%d" % (SPARE + 1, SPARE + 1), "v_sub_u32 v%d, v%d, v%d" % (SPARE, SPARE, SPARE + 1),
           "v_mov_b32 v%d, 0xff800000" % (SPARE + 2),
           ["s_lshr_b32 s%d, s%d, 1" % (sU, sWV), "s_or_b32 s%d, s%d, s%d" % (sU, sU, sRB0)],
           ["s_cmp_lg_u32 s%d, 0" % sU, "s_cselect_b64 s[%d:%d], -1, 0" % (HV, HV + 1)],
           ["s_mov_b32 s%d, s%d" % (HV2, HV), "s_mov_b32 s%d, 0" % (HV2 + 1)],
           "v_mov_b32 v%d, 0" % AM, "v_mov_b32 v%d, 0" % (AM + 1)]
    ES3 = []
    for r in range(4):
        ES3 += ["v_subrev_u32 v%d, %d, v%d" % (SPARE + 3, r, SPARE), "v_cmp_gt_u32 vcc, 8, v%d" % (SPARE + 3),
                "v_mov_b32 v%d, 0x%x" % (SPARE + 1, 0xffff0000 if (r & 1) else 0xffff),
                "v_add_u32 v%d, %d, v%d" % (SPARE + 3, 16 - r, SPARE),
                "v_cndmask_b32 v%d, v%d, 0, vcc" % (MC + r, SPARE + 2),
                "v_cndmask_b32 v%d, 0, v%d, vcc" % (SPARE + 1, SPARE + 1),
                "v_cmp_gt_u32 vcc, 8, v%d" % (SPARE + 3),
                "v_or_b32 v%d, v%d, v%d" % (AM + (r >> 1), AM + (r >> 1), SPARE + 1),
                "v_add_u32 v%d, %d, v%d" % (SPARE + 3, 8 - r, SPARE),
                "v_cndmask_b32 v%d, v%d, 0, vcc" % (MP + r, SPARE + 2),
                "s_and_b64 vcc, vcc, s[%d:%d]" % (HV, HV + 1),
                "v_cndmask_b32 v%d, v%d, 0, vcc" % (MH1 + r, SPARE + 2),
                "v_cmp_gt_u32 vcc, 8, v%d" % (SPARE + 3),
                "s_and_b64 vcc, vcc, s[%d:%d]" % (HV2, HV2 + 1),
                "v_cndmask_b32 v%d, v%d, 0, vcc" % (MH0 + r, SPARE + 2)]
    ES3 += ["v_not_b32 v%d, v%d" % (AM + 2, AM), "v_not_b32 v%d, v%d" % (AM + 3, AM + 1)]
    TL = ["s_lshl_b32 s%d, s%d, 12" % (sT, sXCD), "s_lshl_b32 s%d, s%d, 3" % (sT + 1, sXCD),
          "s_lshl_b32 s%d, s%d, 4" % (sT + 2, sWV), "s_add_u32 s%d, s%d, s%d" % (sT + 2, sT + 2, sIDX),
          "s_cmp_eq_u32 s%d, 10" % (sT + 2), "s_cselect_b32 s%d, s%d, 0x%x" % (sT, sT, BIG), "s_cselect_b32 s%d, s%d, 0x%x" % (sT + 1, sT + 1, BIG),
          "v_and_b32 v60, 31, v%d" % vLANE, "v_lshl_add_u32 v60, v60, 7, s%d" % sT,
          "v_lshl_add_u32 v62, v%d, 24, s%d" % (vLANE, sT + 1),
          "buffer_load_dword v60, v60, %s, 0 offen sc1" % s4(sF)]
    TP = ["v_and_b32 v60, 1, v60", "v_cmp_eq_u32 vcc, 0, v60", "v_mov_b32 v61, 1", "v_mov_b32 v60, vcc_lo",
          "buffer_store_dwordx2 v[60:61], v62, %s, 0 offen sc1" % s4(sD)]
    pro = P1.prologue()
    P1.vm.issue(('tp', 0))
    body = P1.main(xreads, wreads, mfmas, {3: ES + so[:10], 4: so[10:], 0: P1.w2.setup_dma(), 5: ES2, 6: ES3[:21], 7: ES3[21:42], 8: ES3[42:], 12: P1.w2.setup_rd(), 2: TP, OPT['wt'] + 100: warmups(56, 57), OPT['wt2'] + 200: warmups(58, 59, 1), OPT['ipf2'] + 300: iprefetch2(63, 'Q'), **l2_prefetch(54, 55), 15: flag_setup(P1.vm)}, {2: ('tp', 0)})
    L += (tlb_warm() + pro[0] if OPT['tlb'] == 2 else pro[0] + tlb_warm()) + S2 + lb.setup + lb2.setup + late_scalar_setup() + pro[1] + TL + body + ['Q_epi:']
    L += [tag_load()]
    P1.vm.issue(('tag', 0))
    VB = 32
    def Vb(hh, par, k): return VB + 16 * hh + 8 * par + 2 * k
    def cvt2(dst, src): return ["v_cvt_pk_bf16_f32 v%d, v%d, v%d" % (dst, src, src + 1), "v_cvt_pk_bf16_f32 v%d, v%d, v%d" % (dst + 1, src + 2, src + 3)]
    seg = [0]

    def slot():
        seg[0] += 1
        return P1.epi_slot(seg[0] - 1)
    npub = [0]

    def pub_point():
        npub[0] += 1
        return publishA(P1, PF, "Q") if npub[0] == OPT['pubQ'] else []

    def attention(par):
        L = []
        blocks = [par, par + 2, par + 4]
        units = [(hh, b) for b in blocks for hh in range(2)]
        pp = pub_point if par else (lambda: [])
        for b in blocks:
            for hh in range(2):
                L += cvt2(Qa(hh, b), Qa(hh, b)) + cvt2(Qa(hh, b) + 2, Ka(hh, b))
        if par == 0:
            for hh in range(2):
                L += cvt2(Ka(hh, 6), Ka(hh, 6))
            L += ["v_mul_f32 v%d, s%d, v%d" % (TA, sC0 + 1, TA), "v_exp_f32 v%d, v%d" % (TA, TA)]
        vc = []
        for b in blocks:
            for hh in range(2):
                vc += cvt2(Vb(hh, par, 1 + (b >> 1)), Va(hh, b))
        mf1, mf2 = [], []
        for (hh, b) in units:
            mf1 += ["v_mfma_f32_16x16x16_bf16 %s, %s, %s, %s" % (v4(Ka(hh, b)), v2(Qa(hh, b) + 2), v2(Qa(hh, b)), v4(MC))]
            kp = Ka(hh, 6) if b < 2 else Qa(hh, b - 2) + 2
            mk = MH0 if b == 0 else MH1 if b == 1 else MP
            mf2 += ["v_mfma_f32_16x16x16_bf16 %s, %s, %s, %s" % (v4(Va(hh, b)), v2(kp), v2(Qa(hh, b)), v4(mk))]
        L += interleave(mf1, vc)
        vh = []
        for hh in range(2):
            vh += cvt2(Vb(hh, par, 0), Va(hh, 6))
        if par == 0:
            vh += ["v_add_f32 v%d, 1.0, v%d" % (TA, TA), "v_rcp_f32 v%d, v%d" % (TA, TA)]
        L += interleave(mf2, vh + slot())
        if par == 0:
            L += ["buffer_store_dword v%d, v%d, %s, 0 offen sc1" % (TA, vGO, s4(sG))]
            P1.vm.issue(('stA', 100))
        for (hh, b) in units:
            S, P = Ka(hh, b), Va(hh, b)
            L += ["v_max_f32 v%d, v%d, v%d" % (S + r, S + r, P + r) for r in range(4)]
            L += ["v_max3_f32 v%d, v%d, v%d, v%d" % (P, S, S + 1, S + 2), "v_max_f32 v%d, v%d, v%d" % (P, P, S + 3)]
        L += pp() + slot()
        A, B, C, D, E, F = [Va(*u) for u in units]
        L += ["v_permlane32_swap_b32 v%d, v%d" % (A, B), "v_permlane32_swap_b32 v%d, v%d" % (C, D), "v_permlane32_swap_b32 v%d, v%d" % (E, F),
              "v_max_f32 v%d, v%d, v%d" % (A, A, B), "v_max_f32 v%d, v%d, v%d" % (C, C, D),
              "v_max_f32 v%d, v%d, v%d" % (E + 1, E, F), "v_max_f32 v%d, v%d, v%d" % (E, E, F),
              "v_permlane16_swap_b32 v%d, v%d" % (A, C), "v_permlane16_swap_b32 v%d, v%d" % (E, E + 1),
              "v_max_f32 v%d, v%d, v%d" % (A, A, C), "v_max_f32 v%d, v%d, v%d" % (E, E, E + 1),
              "v_mul_f32 v%d, s%d, v%d" % (C, sC0, A), "v_mul_f32 v%d, s%d, v%d" % (A, sC0, A),
              "v_mul_f32 v%d, s%d, v%d" % (F, sC0, E), "v_mul_f32 v%d, s%d, v%d" % (E, sC0, E),
              "v_permlane16_swap_b32 v%d, v%d" % (A, C), "v_permlane32_swap_b32 v%d, v%d" % (E, F),
              "v_mov_b32 v%d, v%d" % (B, A), "v_mov_b32 v%d, v%d" % (D, C),
              "v_permlane32_swap_b32 v%d, v%d" % (A, B), "v_permlane32_swap_b32 v%d, v%d" % (C, D)]
        prevP = SPARE
        sums = {}
        pend_mf = []
        for k in (4, 0, 2):
            us = units[k:k + 2]
            a = []
            for (hh, b) in us:
                S, P = Ka(hh, b), Va(hh, b)
                a += ["v_fma_f32 v%d, v%d, s%d, -v%d" % (S + r, S + r, sC0, P) for r in range(4)]
            L += interleave(pend_mf, a) if pend_mf else a
            for (hh, b) in us:
                S = Ka(hh, b)
                L += ["v_exp_f32 v%d, v%d" % (S + r, S + r) for r in range(4)]
            L += pp() + slot()
            for (hh, b) in us:
                L += cvt2(Va(hh, b) + 2, Ka(hh, b))
            for (hh, b) in us:
                P, Q = Va(hh, b), Qa(hh, b)
                L += ["v_and_b32 v%d, v%d, v%d" % (Q, P + 2, AM + 2), "v_and_b32 v%d, v%d, v%d" % (Q + 1, P + 3, AM + 3),
                      "v_and_b32 v%d, v%d, v%d" % (Q + 2, P + 2, AM), "v_and_b32 v%d, v%d, v%d" % (Q + 3, P + 3, AM + 1)]
            pend_mf = []
            for (hh, b) in us:
                P = Va(hh, b)
                pend_mf += ["v_mfma_f32_16x16x16_bf16 %s, %s, %s, 0" % (v4(prevP), v2(ONES), v2(P + 2))]
                sums[(hh, b)] = prevP
                prevP = P
            for (hh, b) in us:
                pend_mf += ["v_mfma_f32_16x16x32_bf16 %s, %s, %s, 0" % (v4(Ka(hh, b)), v4(Vb(hh, par, b >> 1)), v4(Qa(hh, b)))]
        order = [units[4], units[5]] + units[:4]
        rc = ["v_rcp_f32 v%d, v%d" % (sums[u], sums[u]) for u in order]
        L += interleave(pend_mf, rc[:4])
        for i, b in enumerate((blocks[2], blocks[0], blocks[1])):
            if i == 2:
                L += rc[4:]
            for hh in range(2):
                S = Ka(hh, b)
                sm = sums[(hh, b)]
                L += ["v_pk_mul_f32 %s, %s, %s op_sel_hi:[1,0]" % (v2(S + r), v2(S + r), v2(sm)) for r in (0, 2)]
            for hh in range(2):
                L += cvt2(Qa(0, b) + 2 * hh, Ka(hh, b))
            L += ["buffer_store_dwordx4 %s, v%d, %s, s%d offen%s" % (v4(Qa(0, b)), vST, s4(sA), sST + b, ["", " sc1", " nt", " sc1 nt"][OPT['stsc']])]
            P1.vm.issue(('stB' if par else 'stA', b))
        L += pp()
        return L
    L += attention(0) + attention(1)
    L += PF.stamp()
    L += phase2(P1, PF, "Q")
    return L


def main():
    K = NAME + "_kernel"
    L = [K + ":", "s_cmp_ge_u32 s2, 256", "s_cbranch_scc1 L_exit",
         "s_load_dwordx8 s[4:11], s[0:1], 0", "s_load_dwordx8 s[12:19], s[0:1], 32",
         "s_load_dwordx4 s[20:23], s[0:1], 64", "s_load_dwordx2 s[24:25], s[0:1], 80",
         "v_lshrrev_b32 v2, 6, v0", "v_and_b32 v%d, 63, v0" % vLANE, "v_readfirstlane_b32 s%d, v2" % sWV,
         "s_and_b32 s%d, s2, 7" % sXCD, "s_lshr_b32 s%d, s2, 3" % sIDX, "s_cmp_lt_u32 s%d, 11" % sIDX, "s_cbranch_scc1 L_Q"]
    pf = []
    if OPT['iprefetch']:
        i = L.index("v_lshrrev_b32 v2, 6, v0")
        L[i:i] = ["s_getpc_b64 s[26:27]", "v_and_b32 v63, 15, v0", "s_lshr_b32 s3, s2, 3", "s_lshl_b32 s3, s3, 11",
                  "v_lshl_add_u32 v63, v63, 7, s3", "global_load_dword v63, v63, s[26:27]"]
    rep = {}
    H = fix_hazards(["s_nop 3"] + pf + gen_H(), rep)
    sys.stderr.write("H: %d lines, nops %d\n" % (len(H), rep['nops']))
    Q = fix_hazards(["s_nop 3"] + pf + gen_Q(), rep)
    sys.stderr.write("Q: %d lines, nops %d\n" % (len(Q), rep['nops']))
    out = ["; generated by gen2.py: single persistent kernel, flag hand-off between GEMM1 and GEMM2",
           "; @launch grid=(256,1,1) block=(256,1,1) lds=163840",
           '.amdgcn_target "amdgcn-amd-amdhsa--gfx950"', ".text", ".globl " + K, ".p2align 8", ".type %s,@function" % K]
    out += fix_hazards(L) + H + ["L_exit:", "s_endpgm", ".p2align 6", "L_Q:"] + Q
    out += [".p2align 8", ".fill 6144, 4, 0xbf800000", "s_endpgm"]
    out += ['.section .rodata,"a"', ".p2align 6", """.amdhsa_kernel %s
  .amdhsa_next_free_vgpr 512
  .amdhsa_next_free_sgpr 102
  .amdhsa_accum_offset 256
  .amdhsa_group_segment_fixed_size 0
  .amdhsa_kernarg_size 88
  .amdhsa_user_sgpr_count 2
  .amdhsa_user_sgpr_kernarg_segment_ptr 1
  .amdhsa_system_sgpr_workgroup_id_x 1
.end_amdhsa_kernel""" % K]
    print("\n".join(out))


main()
```

```python
import sys
from asmlib import *

NAME = "gated_mix__sliding_local_dilated__glu_gated_glu__prompt"
A2_BYTES = 32 * 72 * 4096
G_OFF = A2_BYTES
F_OFF = A2_BYTES + 8192
MT_STRIDE = 72 * 4096
CLS = 72 * 2048
NLOG2E = 0xbfb8aa3b
SCL = 0x3eb8aa3b
BIG = 0x40000000

OPT = dict(masks=0x77777777, iprefetch=1, prof=0, maxd=8, maxd2=9, npro=20, edma=1, la=3, la0=3, rx=1, rm3=0,
           diag=-1, c0=-1, c1=-1, sel=0, warm=2, warmt=0, outsc=1, wt=7, rotb=1, rotq=2, pubH=8, pubQ=3, pollst=3,
           nwsH=5, stsc=1, rawt=6, rawper=3, nsw0=4, rot2=1, verbose=0, rdmain=1, rdlag=2, keep=0, wt2=-1, nrd=2, ipf2=-1, nost=0, pf0=9, pft=6, pfper=1, map2=0, snake=0, rhi=1, q3=1, perm=2, pfq=0, ldsp=2, rnt=0, tlb=1, lm=1, lq=5)
for a in sys.argv[1:]:
    if '=' in a:
        k, v = a.split('=')
        assert k in OPT, k
        OPT[k] = int(v, 0)

pX, pQKV, pWO, pWG, pWU, pWD, pGW, pOUT, pDBG, pWS = 4, 6, 8, 12, 14, 16, 18, 20, 22, 24
sX, sW, sA, sG, sWO, sWD, sO, sD = 28, 32, 36, 40, 44, 48, 52, 56
sWV, sRB0, sCG, sXCD, sIDX, sKX, sKW, sMX, sMW, sM7, sROT, sM2 = 60, 61, 62, 63, 64, 65, 66, 67, 68, 69, 70, 71
sMT, sNT, sW2o, sW2h, sW2e, sS2, sAo, sAh, sAe, sSA = 72, 73, 74, 75, 76, 77, 78, 79, 80, 81
sC0 = 82
sST = 86
sF = 20
sS3 = 27
sPAR = 99
sPID = 98
sK = 97
sT = 88
sU = 4
vLANE = 1
vXD, vWD, vRD = 2, 9, 13
ACC = 64


def v4(b): return "v[%d:%d]" % (b, b + 3)
def v2(b): return "v[%d:%d]" % (b, b + 1)
def a4(b): return "a[%d:%d]" % (b, b + 3)
def a2(b): return "a[%d:%d]" % (b, b + 1)
def s4(b): return "s[%d:%d]" % (b, b + 3)


class Prof:
    def __init__(self, vreg):
        self.n = 0
        self.v = vreg

    def stamp(self):
        self.n += 1
        if OPT['diag'] >= 0:
            L = []
            if OPT['diag'] == self.n - 1:
                L += ["s_memrealtime s[100:101]", "s_waitcnt lgkmcnt(0)", "s_mov_b32 s26, s100"]
            if OPT['c0'] == self.n - 1:
                L += ["s_memtime s[100:101]", "s_waitcnt lgkmcnt(0)", "s_mov_b32 s3, s100"]
            if OPT['c1'] == self.n - 1:
                L += ["s_memtime s[100:101]", "s_waitcnt lgkmcnt(0)", "s_sub_u32 s3, s100, s3"]
            return L
        if not OPT['prof']:
            return []
        if OPT['sel'] and not (OPT['sel'] >> (self.n - 1)) & 1:
            return []
        return ["%s s[100:101]" % ("s_memtime" if OPT['prof'] == 1 else "s_memrealtime"), "s_waitcnt lgkmcnt(0)", "v_writelane_b32 v%d, s100, %d" % (self.v, self.n - 1)]

    def xstamp(self, lane):
        if OPT['prof'] != 2:
            return []
        return ["s_memrealtime s[100:101]", "s_waitcnt lgkmcnt(0)", "v_writelane_b32 v%d, s100, %d" % (self.v, lane)]

    def dump(self):
        if OPT['diag'] >= 0:
            lab = "D%d" % id(self)
            L = ["s_waitcnt vmcnt(0)"] + self.stamp() + ["s_mov_b32 s4, 10000"]
            if OPT['c0'] >= 0:
                L += ["s_lshr_b32 s3, s3, 2", "s_add_u32 s4, s3, 5000"]
            L += ["s_mov_b32 s5, 0", lab + ":", "s_memrealtime s[100:101]", "s_waitcnt lgkmcnt(0)", "s_sub_u32 s6, s100, s26",
                  "s_add_u32 s5, s5, 1", "s_cmp_gt_u32 s5, 100000", "s_cbranch_scc1 %s_x" % lab,
                  "s_cmp_lt_u32 s6, s4", "s_cbranch_scc1 " + lab, lab + "_x:"]
            return L
        if not OPT['prof']:
            return []
        L = ["s_waitcnt vmcnt(0)"] + self.stamp()
        L += ["s_memrealtime s[100:101]", "s_waitcnt lgkmcnt(0)", "v_writelane_b32 v%d, s100, 63" % self.v]
        L += ["s_lshl_b32 s100, s2, 2", "s_add_u32 s100, s100, s%d" % sWV, "s_lshl_b32 s100, s100, 8",
              "s_add_u32 s100, s100, %d" % (16 << 20), "v_lshl_add_u32 v2, v%d, 2, s100" % vLANE,
              "global_store_dword v2, v%d, s[%d:%d]" % (self.v, pWS, pWS + 1)]
        return L


def srd(d, p, nbytes, bias=0, add=0):
    L = []
    if bias:
        L += ["s_sub_u32 s%d, s%d, %d" % (d, p, bias), "s_subb_u32 s%d, s%d, 0" % (d + 1, p + 1)]
    elif add:
        L += ["s_add_u32 s%d, s%d, %d" % (d, p, add), "s_addc_u32 s%d, s%d, 0" % (d + 1, p + 1)]
    else:
        L += ["s_mov_b32 s%d, s%d" % (d, p), "s_mov_b32 s%d, s%d" % (d + 1, p + 1)]
    L += ["s_mov_b32 s%d, 0x%x" % (d + 2, nbytes + bias), "s_mov_b32 s%d, 0x20000" % (d + 3)]
    return L


class LdsBases:
    def __init__(self, regs, chunk=0xC000):
        self.regs = list(regs)
        self.map = {}
        self.setup = []
        self.chunk = chunk

    def addr(self, patreg, off):
        ch = off // self.chunk
        if ch == 0:
            return patreg, off
        key = (patreg, ch)
        if key not in self.map:
            r = self.regs.pop(0)
            self.map[key] = r
            self.setup.append("v_add_u32 v%d, 0x%x, v%d" % (r, ch * self.chunk, patreg))
        return self.map[key], off - ch * self.chunk


class Dma:
    def __init__(self, stream, tag, m0, pre, text, avail, need):
        self.stream, self.tag, self.m0, self.pre, self.text, self.avail, self.need = stream, tag, m0, pre, text, avail, need


class Sched:
    def __init__(self, vm):
        self.vm = vm
        self.streams = {}
        self.m0 = None
        self.hook = None

    def add(self, d):
        self.streams.setdefault(d.stream, []).append(d)

    def take(self, slot, cap):
        picked = []
        while len(picked) < cap:
            best = None
            if self.hook:
                self.hook(slot)
            for s, q in self.streams.items():
                if q and q[0].avail is not None and q[0].avail <= slot:
                    if best is None or q[0].need < self.streams[best][0].need:
                        best = s
            if best is None:
                break
            picked.append(self.streams[best].pop(0))
        groups = [[]]
        for d in picked:
            setup = list(d.pre)
            if d.m0 is not None and d.m0 != self.m0:
                setup.append("s_add_u32 m0, s%d, %d" % d.m0)
                self.m0 = d.m0
            groups[-1] += setup
            groups.append([d.text])
            self.vm.issue(d.tag)
        return [g for g in groups if g], picked

    def pending(self):
        return sum(len(q) for q in self.streams.values())


def stage_pre(s, dst, mul):
    m = (OPT['masks'] >> (4 * s)) & 7
    if m == 0:
        return ["s_mov_b32 s%d, %d" % (dst, s * mul)]
    return ["s_and_b32 s%d, s%d, %d" % (sK, sROT, m), "s_xor_b32 s%d, s%d, %d" % (sK, sK, s), "s_mul_i32 s%d, s%d, %d" % (dst, sK, mul)]


def rot_fix(typ):
    L = []
    if typ == 'Q' and OPT['q3']:
        L += ["s_cmp_eq_u32 s%d, 3" % sXCD, "s_cselect_b32 s%d, %d, %d" % (sT + 6, OPT['lq'], OPT['lm']), "s_and_b32 s%d, s%d, s%d" % (sROT, sROT, sT + 6)]
    else:
        L += ["s_and_b32 s%d, s%d, %d" % (sROT, sROT, OPT['lm'])]
    if OPT['rhi']:
        L += ["s_lshl_b32 s%d, s%d, 2" % (sT + 6, sXCD), "s_and_b32 s%d, s%d, 4" % (sT + 6, sT + 6), "s_xor_b32 s%d, s%d, s%d" % (sROT, sROT, sT + 6)]
    return L


def x_setup(L, typ):
    L += ["v_lshrrev_b32 v32, 3, v%d" % vLANE, "v_lshrrev_b32 v33, 4, v%d" % vLANE, "v_and_b32 v34, 7, v%d" % vLANE,
          "v_xor_b32 v35, v34, v33", "v_lshlrev_b32 v35, 4, v35", "v_lshl_add_u32 v36, v32, 11, v35", "v_xor_b32 v37, 64, v36"]
    if typ == 'H':
        L += ["s_mul_i32 s%d, s%d, 6" % (sT, sWV), "s_and_b32 s%d, s%d, 1" % (sPAR, sRB0),
              "s_add_u32 s%d, s%d, s%d" % (sT + 4, sT, sPAR),
              "s_sub_u32 s%d, s%d, s%d" % (sT + 5, sT, sPAR), "s_sub_u32 s%d, s%d, 11" % (sT + 5, sT + 5),
              "s_cmp_lt_u32 s%d, 2" % sWV, "s_cselect_b32 s%d, s%d, s%d" % (sT, sT + 4, sT + 5)]
    else:
        L += ["s_mul_i32 s%d, s%d, 3" % (sT, sWV), "s_add_u32 s%d, s%d, s%d" % (sT, sT, sRB0)]
    for bb in range(3):
        if typ == 'H':
            L += ["s_add_u32 s%d, s%d, %d" % (sT + 1, sT, 2 * bb)]
            if bb == 2:
                L += ["s_min_u32 s%d, s%d, 10" % (sT + 1, sT + 1)]
            L += ["s_add_u32 s%d, s%d, s%d" % (sT + 1, sT + 1, sRB0)]
        else:
            L += ["s_add_u32 s%d, s%d, %d" % (sT + 1, sT, bb)]
        L += ["s_lshr_b32 s%d, s%d, 1" % (sT + 2, sT + 1), "s_lshl_b32 s%d, s%d, 15" % (sT + 2, sT + 2),
              "s_and_b32 s%d, s%d, 1" % (sT + 1, sT + 1), "s_lshl_b32 s%d, s%d, 10" % (sT + 1, sT + 1),
              "s_add_u32 s%d, s%d, s%d" % (sT + 2, sT + 2, sT + 1)]
        if typ == 'H' and bb == 2:
            L += ["s_cmp_eq_u32 s%d, 3" % sWV, "s_cselect_b32 s%d, 0x%x, s%d" % (sT + 2, BIG, sT + 2)]
        for dd in range(2):
            d = 2 * bb + dd
            add = 4096 - 1024 * (d & 3) + (16384 if dd else 0)
            L += ["s_add_u32 s%d, s%d, %d" % (sT + 3, sT + 2, add), "v_add_u32 v%d, s%d, v%d" % (vXD + d, sT + 3, 36 + dd)]


def tlb_warm():
    if not OPT['tlb']:
        return []
    d = 3
    L = ["s_lshl_b32 s%d, s%d, 20" % (sT, sWV),
         "s_load_dword s%d, s[%d:%d], s%d" % (d, pWS, pWS + 1, sT), "s_add_u32 s%d, s%d, 0x400000" % (sT, sT),
         "s_load_dword s%d, s[%d:%d], s%d" % (d, pWS, pWS + 1, sT), "s_add_u32 s%d, s%d, 0x400000" % (sT, sT),
         "s_load_dword s%d, s[%d:%d], s%d" % (d, pWS, pWS + 1, sT),
         "s_and_b32 s%d, s%d, 1" % (sT, sWV), "s_lshl_b32 s%d, s%d, 20" % (sT, sT),
         "s_load_dword s%d, s[%d:%d], s%d" % (d, pWD, pWD + 1, sT),
         "s_load_dword s%d, s[%d:%d], s%d" % (d, pOUT, pOUT + 1, sT),
         "s_load_dword s%d, s[%d:%d], 0" % (d, pWO, pWO + 1),
         "s_load_dword s%d, s[%d:%d], 0" % (d, pDBG, pDBG + 1)]
    return L


def late_scalar_setup():
    L = []
    L += srd(sA, pWS, 0 if OPT['nost'] else A2_BYTES)
    L += srd(sWO, pWO, 512 * 1024) + srd(sWD, pWD, 1792 * 1024) + srd(sO, pOUT, 2048 * 1024)
    L += srd(sD, pDBG, 256)
    L += srd(sF, pWS, 32768, add=F_OFF)
    if OPT['map2'] == 0:
        sP = sT + 5
        L += ["s_mov_b32 s%d, s%d" % (sP, sIDX)]
        if OPT['perm']:
            for a, b in ((11, 8), (19, 9), (27, 10)):
                L += ["s_cmp_eq_u32 s%d, %d" % (sIDX, a), "s_cselect_b32 s%d, %d, s%d" % (sP, b, sP),
                      "s_cmp_eq_u32 s%d, %d" % (sIDX, b), "s_cselect_b32 s%d, %d, s%d" % (sP, a, sP)]
            if OPT['perm'] == 2:
                L += ["s_cmp_eq_u32 s%d, 3" % sXCD, "s_cselect_b32 s%d, s%d, s%d" % (sP, sIDX, sP)]
        L += ["s_lshl_b32 s%d, s%d, 2" % (sMT, sXCD), "s_lshr_b32 s%d, s%d, 3" % (sT, sP), "s_add_u32 s%d, s%d, s%d" % (sMT, sMT, sT),
              "s_and_b32 s%d, s%d, 7" % (sNT, sP)]
    else:
        L += ["s_lshr_b32 s%d, s%d, 1" % (sMT, sXCD), "s_lshl_b32 s%d, s%d, 3" % (sMT, sMT), "s_lshr_b32 s%d, s%d, 2" % (sT, sIDX),
              "s_add_u32 s%d, s%d, s%d" % (sMT, sMT, sT),
              "s_and_b32 s%d, s%d, 1" % (sNT, sXCD), "s_lshl_b32 s%d, s%d, 2" % (sNT, sNT), "s_and_b32 s%d, s%d, 3" % (sT + 1, sIDX),
              "s_add_u32 s%d, s%d, s%d" % (sNT, sNT, sT + 1)]
    L += [
          "s_lshl_b32 s%d, s%d, 11" % (sM2, sWV),
          "s_lshl_b32 s%d, s%d, 17" % (sW2o, sWV),
          "s_mul_i32 s%d, s%d, %d" % (sW2h, sWV, 14 * 32768), "s_add_u32 s%d, s%d, %d" % (sW2e, sW2h, 14 * 32768),
          "s_mul_i32 s%d, s%d, %d" % (sT + 1, sMT, MT_STRIDE),
          "s_lshl_b32 s%d, s%d, 13" % (sAo, sWV), "s_add_u32 s%d, s%d, s%d" % (sAo, sAo, sT + 1),
          "s_mul_i32 s%d, s%d, %d" % (sAh, sWV, 14 * 2048), "s_add_u32 s%d, s%d, s%d" % (sAh, sAh, sT + 1),
          "s_add_u32 s%d, s%d, %d" % (sAh, sAh, 16 * 2048), "s_add_u32 s%d, s%d, %d" % (sAe, sAh, 14 * 2048)]
    L += ["s_mul_i32 s%d, s%d, %d" % (sT + 3, sT, OPT['rm3']), "s_cmp_eq_u32 s%d, 3" % sNT, "s_cselect_b32 s%d, s%d, 0" % (sT + 3, sT + 3),
          "s_cselect_b32 s%d, s%d, 0" % (sT + 4, sT),
          "s_mul_i32 s%d, s%d, %d" % (sT + 2, sXCD, OPT['rx']), "s_add_u32 s%d, s%d, s%d" % (sT + 4, sT + 4, sT + 2),
          "s_add_u32 s%d, s%d, s%d" % (sT + 2, sT + 2, sT + 3),
          "s_and_b32 s%d, s%d, %d" % (sT + 3, sNT, 1 if OPT['rnt'] else 0), "s_add_u32 s%d, s%d, s%d" % (sT + 4, sT + 4, sT + 3),
          "s_mul_i32 s%d, s%d, %d" % (sT + 3, sT + 3, OPT['rnt']), "s_add_u32 s%d, s%d, s%d" % (sT + 2, sT + 2, sT + 3),
          "s_lshr_b32 s%d, s%d, %d" % (sT + 4, sT + 4, 1 if OPT['map2'] else 0), "s_and_b32 s%d, s%d, 1" % (sT + 4, sT + 4),
          "s_lshl_b32 s%d, s%d, 16" % (sT + 3, sT + 4), "s_add_u32 s%d, s%d, s%d" % (sW2o, sW2o, sT + 3),
          "s_lshl_b32 s%d, s%d, 12" % (sT + 3, sT + 4), "s_add_u32 s%d, s%d, s%d" % (sAo, sAo, sT + 3)]
    for _ in range(2):
        L += ["s_cmp_ge_u32 s%d, 7" % (sT + 2), "s_cselect_b32 s%d, 7, 0" % (sT + 3), "s_sub_u32 s%d, s%d, s%d" % (sT + 2, sT + 2, sT + 3)]
    L += ["s_lshl_b32 s%d, s%d, 16" % (sT + 3, sT + 2), "s_add_u32 s%d, s%d, s%d" % (sS2, sW2h, sT + 3),
          "s_lshl_b32 s%d, s%d, 12" % (sT + 3, sT + 2), "s_add_u32 s%d, s%d, s%d" % (sSA, sAh, sT + 3),
          "s_add_u32 s%d, s%d, %d" % (sS3, sS2, min(OPT['pf0'], 6) * 65536), "s_sub_u32 s%d, s%d, %d" % (sT + 3, sS3, 7 * 65536),
          "s_cmp_ge_u32 s%d, s%d" % (sS3, sW2e), "s_cselect_b32 s%d, s%d, s%d" % (sS3, sT + 3, sS3)]
    return L


def warmups(va, vb, mode=None):
    L = []
    mode = OPT['warm'] if mode is None else mode
    if mode == 2:
        L += [["s_lshl_b32 s%d, s%d, 2" % (sU + 12, sIDX), "s_add_u32 s%d, s%d, s%d" % (sU + 12, sU + 12, sWV)],
              ["s_mul_i32 s%d, s%d, %d" % (sU + 13, sU + 12, 14 * 1024), "s_lshl_b32 s%d, s%d, 12" % (sU + 12, sU + 12)],
              "v_min_u32 v%d, 13, v%d" % (va, vLANE), "v_lshl_add_u32 v%d, v%d, 10, s%d" % (va, va, sU + 13),
              "v_and_b32 v%d, 3, v%d" % (vb, vLANE), "v_lshl_add_u32 v%d, v%d, 10, s%d" % (vb, vb, sU + 12),
              ["s_and_b32 s%d, s%d, %d" % (sU + 12, sXCD, 1 if OPT['map2'] else 0), "s_lshl_b32 s%d, s%d, 29" % (sU + 12, sU + 12)],
              "buffer_load_dword v%d, v%d, %s, s%d offen offset:384" % (va, va, s4(sWD), sU + 12),
              "buffer_load_dword v%d, v%d, %s, s%d offen offset:384" % (vb, vb, s4(sWO), sU + 12)]
    elif mode:
        L += [["s_lshl_b32 s%d, s2, 2" % (sU + 12), "s_add_u32 s%d, s%d, s%d" % (sU + 12, sU + 12, sWV)],
              ["s_mul_i32 s%d, s%d, %d" % (sU + 13, sU + 12, 14 * 128), "s_lshl_b32 s%d, s%d, 9" % (sU + 12, sU + 12)],
              "v_min_u32 v%d, 13, v%d" % (va, vLANE), "v_lshl_add_u32 v%d, v%d, 7, s%d" % (va, va, sU + 13),
              "v_and_b32 v%d, 3, v%d" % (vb, vLANE), "v_lshl_add_u32 v%d, v%d, 7, s%d" % (vb, vb, sU + 12),
              "buffer_load_dword v%d, v%d, %s, 0 offen" % (va, va, s4(sWD)),
              "buffer_load_dword v%d, v%d, %s, 0 offen" % (vb, vb, s4(sWO))]
    return L


def warmt(va, vb):
    L = []
    if OPT['warmt'] == 2:
        L += [["s_lshl_b32 s%d, s%d, 16" % (sU + 14, sMT), "s_lshl_b32 s%d, s%d, 7" % (sU + 15, sNT)], "s_add_u32 s%d, s%d, s%d" % (sU + 14, sU + 14, sU + 15),
              "v_lshl_add_u32 v%d, v%d, 10, s%d" % (vb, vLANE, sU + 14),
              "buffer_load_dword v%d, v%d, %s, 0 offen" % (vb, vb, s4(sO))]
    elif OPT['warmt']:
        L += ["v_and_b32 v%d, 7, v%d" % (va, vLANE), "v_lshlrev_b32 v%d, 21, v%d" % (va, va),
              "v_and_b32 v%d, 1, v%d" % (vb, vLANE), "v_lshlrev_b32 v%d, 20, v%d" % (vb, vb),
              "buffer_load_dword v%d, v%d, %s, 0 offen" % (va, va, s4(sA)),
              "buffer_load_dword v%d, v%d, %s, 0 offen" % (vb, vb, s4(sO))]
    return L


def l2_prefetch(va, vd):
    out = {}
    return out
    pre = [["s_lshl_b32 s%d, s%d, 11" % (sU + 12, sIDX), "v_and_b32 v%d, 15, v%d" % (va, vLANE)],
           "v_lshl_add_u32 v%d, v%d, 7, s%d" % (va, va, sU + 12)]
    k = 0
    for u in range(OPT['pf0'], 9):
        t = OPT['pft'] + k // OPT['pfper']
        k += 1
        g = list(pre)
        pre = []
        if u < 7:
            g += ["buffer_load_dword v%d, v%d, %s, s%d offen" % (vd, va, s4(sWD), sS3),
                  ["s_add_u32 s%d, s%d, 65536" % (sS3, sS3), "s_cmp_eq_u32 s%d, s%d" % (sS3, sW2e), "s_cselect_b32 s%d, s%d, s%d" % (sS3, sW2h, sS3)]]
        elif u == 7:
            g += ["buffer_load_dword v%d, v%d, %s, s%d offen" % (vd, va, s4(sWO), sW2o), "s_xor_b32 s%d, s%d, 0x10000" % (sS3, sW2o)]
        else:
            g += ["buffer_load_dword v%d, v%d, %s, s%d offen" % (vd, va, s4(sWO), sS3)]
        out.setdefault(400 + t, []).extend(g)
    return out


def iprefetch2(v, lab):
    return [["s_getpc_b64 s[%d:%d]" % (sU + 14, sU + 15), "%s_pc:" % lab],
            ["s_and_b32 s%d, s%d, 7" % (sU + 13, sIDX), "s_lshl_b32 s%d, s%d, 11" % (sU + 13, sU + 13)],
            "s_add_u32 s%d, s%d, %s_epi-%s_pc" % (sU + 13, sU + 13, lab, lab),
            "v_and_b32 v%d, 15, v%d" % (v, vLANE), "v_lshl_add_u32 v%d, v%d, 7, s%d" % (v, v, sU + 13),
            "global_load_dword v%d, v%d, s[%d:%d]" % (v, v, sU + 14, sU + 15)]


def store_offsets(specs):
    L = []
    for b, (base_sreg, add) in enumerate(specs):
        L += [["s_add_u32 s%d, s%d, %d" % (sU, base_sreg, add), "s_lshr_b32 s%d, s%d, 2" % (sU + 1, sU)],
              ["s_mul_i32 s%d, s%d, %d" % (sST + b, sU + 1, MT_STRIDE), "s_and_b32 s%d, s%d, 1" % (sU + 1, sU)],
              ["s_mul_i32 s%d, s%d, %d" % (sU + 1, sU + 1, CLS), "s_add_u32 s%d, s%d, s%d" % (sST + b, sST + b, sU + 1)],
              ["s_and_b32 s%d, s%d, 2" % (sU, sU), "s_lshl_b32 s%d, s%d, 9" % (sU, sU)],
              "s_add_u32 s%d, s%d, s%d" % (sST + b, sST + b, sU)]
    return L


vFO, vSH, vTG = 13, 14, 16


def flag_setup(vm):
    t = 18
    L = [["s_mul_i32 s%d, s%d, 43" % (sU, sMT), "s_lshr_b32 s%d, s%d, 7" % (sU, sU)],
         ["s_lshl_b32 s%d, s%d, 3" % (sU, sU), "s_mul_i32 s%d, s%d, %d" % (sU + 1, sMT, 4 * 187)],
         ["s_add_u32 s%d, s%d, %d" % (sU + 2, sU + 1, 3 * 187), "s_lshr_b32 s%d, s%d, 11" % (sU + 1, sU + 1)],
         ["s_lshr_b32 s%d, s%d, 11" % (sU + 2, sU + 2), "s_mul_i32 s%d, s%d, 14" % (sU + 1, sU + 1)],
         ["s_mul_i32 s%d, s%d, 14" % (sU + 2, sU + 2), "s_add_u32 s%d, s%d, 88" % (sU + 1, sU + 1)],
         "s_add_u32 s%d, s%d, 88" % (sU + 2, sU + 2),
         "v_and_b32 v%d, 15, v%d" % (t, vLANE), "v_min_u32 v%d, 13, v%d" % (t, t),
         "v_and_b32 v%d, 7, v%d" % (t + 1, vLANE), "v_add_u32 v%d, s%d, v%d" % (t + 1, sU, t + 1),
         "v_add_u32 v%d, s%d, v%d" % (t + 2, sU + 1, t), "v_add_u32 v%d, s%d, v%d" % (t + 3, sU + 2, t),
         "v_cmp_gt_u32 vcc, 16, v%d" % vLANE, "v_mov_b32 v%d, s%d" % (t, sPID),
         "v_cndmask_b32 v%d, v%d, v%d, vcc" % (t + 1, t + 2, t + 1),
         "v_cmp_gt_u32 vcc, 48, v%d" % vLANE,
         "v_cndmask_b32 v%d, v%d, v%d, vcc" % (t, t, t + 3),
         "v_cmp_gt_u32 vcc, 32, v%d" % vLANE,
         "v_cndmask_b32 v%d, v%d, v%d, vcc" % (t, t, t + 1),
         "v_lshlrev_b32 v%d, 7, v%d" % (vFO, t), "v_and_b32 v%d, 31, v%d" % (vSH, t),
         "v_lshrrev_b32 v%d, 5, v%d" % (t, t), "v_lshlrev_b32 v%d, 3, v%d" % (vFO + 2, t)]
    return L


def tag_load():
    return "buffer_load_dwordx2 %s, v%d, %s, 0 offen sc1" % (v2(vTG), vFO + 2, s4(sD))


class W2:
    AW2 = 128

    def __init__(self, sched, vm, vW2, trregs, region_free):
        self.sched, self.vm, self.vW2 = sched, vm, vW2
        self.pat = trregs[:4]
        self.lb = LdsBases(trregs[4:], chunk=0x10000)
        self.free = sorted((region_free[r], r) for r in range(20))
        self.region = {}
        self.items = {}
        sched.hook = self.assign
        for n in range(36):
            av = None
            kb, h = n >> 1, n & 1
            isO = kb < 4
            sr = sWO if isO else sWD
            sS = sW2o if isO else sS2
            its = []
            for i in range(2):
                pre = []
                if i == 0 and n not in (0, 8):
                    if n == 4:
                        pre = ["s_xor_b32 s%d, s%d, 0x1c000" % (sS, sS)]
                    else:
                        pre = ["s_add_u32 s%d, s%d, 16384" % (sS, sS)]
                        if n % 4 == 0 and not isO:
                            pre += ["s_cmp_eq_u32 s%d, s%d" % (sS2, sW2e), "s_cselect_b32 s%d, s%d, s%d" % (sS2, sW2h, sS2)]
                d = Dma('w2', ('w2', n), None, pre,
                        "buffer_load_dwordx4 v%d, %s, s%d offen offset:%d lds" % (vW2[i], s4(sr), sS, 1024 * i), av, 1000 + n)
                its.append(d)
                sched.add(d)
            self.items[n] = its
        self.nread = 0
        for t in range(4):
            for ch in (1, 2):
                self.lb.addr(self.pat[t], ch * 0x10000)

    def assign(self, slot):
        q = self.sched.streams['w2']
        if q and q[0].avail is None and self.free and self.free[0][0] <= slot:
            n = q[0].tag[1]
            av, r = self.free.pop(0)
            self.region[n] = r
            for d in self.items[n]:
                d.avail = av
                d.m0 = (sM2, 8192 * r)

    def setup_dma(self):
        a, b = self.vW2
        return ["v_lshrrev_b32 v%d, 4, v%d" % (a, vLANE), "v_lshlrev_b32 v%d, 1, v%d" % (a, a),
                "v_and_b32 v%d, 7, v%d" % (b, vLANE), "v_xor_b32 v%d, v%d, v%d" % (a, a, b), "v_lshlrev_b32 v%d, 4, v%d" % (a, a),
                "v_lshrrev_b32 v%d, 3, v%d" % (b, vLANE), "v_lshl_add_u32 v%d, v%d, 10, v%d" % (a, b, a),
                ["s_lshl_b32 s%d, s%d, 7" % (sU, sNT), "v_add_u32 v%d, s%d, v%d" % (a, sU, a)],
                "v_add_u32 v%d, 7168, v%d" % (b, a)]

    def setup_rd(self):
        p = self.pat
        L = ["v_lshrrev_b32 v%d, 2, v%d" % (p[1], vLANE), "v_lshrrev_b32 v%d, 3, v%d" % (p[2], vLANE),
             "v_and_b32 v%d, 3, v%d" % (p[2], p[2]), "v_lshlrev_b32 v%d, 5, v%d" % (p[2], p[2]),
             "v_lshl_add_u32 v%d, v%d, 7, v%d" % (p[1], p[1], p[2]), "v_and_b32 v%d, 3, v%d" % (p[2], vLANE),
             "v_lshl_add_u32 v%d, v%d, 3, v%d" % (p[1], p[2], p[1]), "v_add_u32 v%d, s%d, v%d" % (p[0], sM2, p[1])]
        L += ["v_xor_b32 v%d, %d, v%d" % (p[t], 32 * t, p[0]) for t in range(1, 4)]
        return L + self.lb.setup

    def reads(self, n, dstf):
        out = []
        for t in range(4):
            r, o = self.lb.addr(self.pat[t], 8192 * self.region[n])
            out.append("ds_read_b64_tr_b16 %s, v%d offset:%d" % (dstf(t), r, o))
        return out

    def take_reads(self, cnt, issued_upto, slot):
        out = []
        last = None
        while cnt > 0 and self.nread < 16 and self.nread < issued_upto:
            n = self.nread
            out += self.reads(n, lambda t: a2(self.AW2 + 16 * (n >> 1) + 4 * t + 2 * (n & 1)))
            self.free.append((slot + 1, self.region[n]))
            self.free.sort()
            last = n
            self.nread += 1
            cnt -= 1
        return out, last


def spread(mf, rd, dm, ef, tail=4):
    n = len(mf)
    gaps = [[] for _ in range(n)]
    load = [0] * n
    seq = [x for g in dm for x in g]
    vm_idx = [i for i, x in enumerate(seq) if x.startswith("buffer_")]
    k = len(vm_idx)
    lead = 2 if (vm_idx and vm_idx[0] > 0) else 0
    vpos = [lead + (j * (n - lead)) // k for j in range(k)] if k else []
    prev = -1
    pi = 0
    for j, vi in enumerate(vm_idx):
        sal = seq[pi:vi]
        room = list(range(prev + 1, vpos[j]))
        if not room:
            gaps[vpos[j]] += sal
        else:
            chunks = []
            for x in sal:
                if chunks and (len(chunks[-1]) < 2 or chunks[-1][-1].startswith("s_cmp")):
                    chunks[-1].append(x)
                else:
                    chunks.append([x])
            for c, ch in enumerate(chunks):
                g = room[min(c, len(room) - 1)]
                gaps[g] += ch
                load[g] += len(ch)
        gaps[vpos[j]].append(seq[vi])
        load[vpos[j]] += 2
        prev = vpos[j]
        pi = vi + 1
    assert pi == len(seq)

    def place(items, lo, hi):
        m = len(items)
        g = lo
        for i, it in enumerate(items):
            want = lo + (i * (hi - lo)) // m
            g = max(g, want)
            cap = 2
            gg = g
            while gg < hi and load[gg] + len(it) > max(cap, len(it)):
                gg += 1
            rem = m - i
            if gg >= hi or gg > want + 3:
                gg = min(range(g, min(g + 4, hi)), key=lambda z: load[z]) if g < hi else hi - 1
            gaps[gg] += it
            load[gg] += len(it)
            g = gg
    if rd:
        place([[r] for r in rd], 0, n - tail)
    if ef:
        place(ef, 0, n)
    out = []
    for i, m in enumerate(mf):
        out.append(m)
        out += gaps[i]
    return out


class Phase1:
    def __init__(self, typ, PF, xslot, wbase, wslot, nws, wpitch, nwd, gw_range, vW2, trregs):
        self.typ, self.PF = typ, PF
        self.xslot, self.wbase, self.wslot, self.nws = xslot, wbase, wslot, nws
        self.vm = VmTracker()
        self.sched = Sched(self.vm)
        nxd = 7 if typ == 'Q' else 6
        for s in range(8):
            slot = (s % 3) * xslot
            for d in range(nxd):
                m0 = (sMX, slot) if d < 4 else (sMX, slot + 4096) if d < 6 else (sM7, slot + 24576)
                imm = 1024 * (d & 3) if d < 6 else 0
                pre = stage_pre(s, sKX, 128) if d == 0 else []
                self.sched.add(Dma('x', ('x', s), m0, pre,
                                   "buffer_load_dwordx4 v%d, %s, s%d offen offset:%d lds" % (vXD + d, s4(sX), sKX, imm),
                                   -1 if s < 3 else 2 * (s - 3) + 1, 2 * s - 0.5))
        for t in range(16):
            slot = wbase + (t % nws) * wslot
            for e in range(nwd):
                pre = []
                if e == 0:
                    pre = stage_pre(t >> 1, sKW, 64 * wpitch) if t % 2 == 0 else ["s_add_u32 s%d, s%d, %d" % (sKW, sKW, 32 * wpitch)]
                self.sched.add(Dma('w', ('w', t), (sMW, slot), pre,
                                   "buffer_load_dwordx4 v%d, %s, s%d offen offset:%d lds" % (vWD + e, s4(sW), sKW, 1024 * e),
                                   -1 if t < nws else t - nws, t))
        busy = []
        for s in (5, 6, 7):
            busy.append(((s % 3) * xslot, (s % 3 + 1) * xslot, 2 * s + 1))
        for t in range(16 - nws, 16):
            busy.append((wbase + (t % nws) * wslot, wbase + (t % nws + 1) * wslot, t))
        if gw_range:
            busy.append((gw_range[0], gw_range[1], 15))
        first = 16 - nws
        rf = []
        for r in range(20):
            f = first
            for lo, hi, t in busy:
                if lo < 8192 * (r + 1) and hi > 8192 * r:
                    f = max(f, t)
            rf.append(f)
        self.w2 = W2(self.sched, self.vm, vW2, trregs, rf)
        self.w2_issued_at = {}

    def n_w2_issued(self):
        return (72 - len(self.sched.streams['w2'])) // 2

    def prologue(self):
        g, _ = self.sched.take(-1, 10)
        g2, _ = self.sched.take(-1, OPT['npro'] - 10)
        return sum(g, []) + self.PF.xstamp(51), sum(g2, []) + self.PF.xstamp(52)

    def main(self, xreads, wreads, mfmas, extra, extra_need={}):
        PF, vm = self.PF, self.vm

        def need(t):
            return lambda tag: (tag[0] == 'x' and tag[1] <= t // 2) or (tag[0] == 'w' and tag[1] <= t)

        def reads(t):
            return wreads(t, t & 1, self.wbase + (t % self.nws) * self.wslot) + xreads(t, t & 1, ((t // 2) % 3) * self.xslot)

        def check_issued(t):
            for q in ('x', 'w'):
                for d in self.sched.streams[q]:
                    assert not need(t)(d.tag), ("not issued in time", t, d.tag)
        body = PF.stamp()
        check_issued(0)
        body += ["s_waitcnt vmcnt(%d)" % vm.wait_for(need(0)), "s_barrier"] + reads(0) + ["s_waitcnt lgkmcnt(0)"]
        for t in range(16):
            body += PF.stamp()
            rd = []
            w2r, last = [], None
            if OPT['rdmain'] and t >= 13 and t - OPT['rdlag'] in self.w2_issued_at:
                w2r, last = self.w2.take_reads(4, self.w2_issued_at[t - OPT['rdlag']], t)
            nd = need(min(t + 1, 15))
            check_issued(min(t + 1, 15))
            n = vm.wait_for(lambda tag: nd(tag) or tag == extra_need.get(t) or (last is not None and tag[0] == 'w2' and tag[1] <= last))
            body += ["s_waitcnt vmcnt(%d)" % n, "s_barrier"]
            if t < 15:
                rd = reads(t + 1)
            rd += w2r
            if t == 12:
                assert not self.sched.streams['x'] and not self.sched.streams['w']
            dm, _ = self.sched.take(t, OPT['maxd'] if t < 11 else OPT['maxd2'])
            self.w2_issued_at[t] = self.n_w2_issued()
            if OPT['verbose']:
                sys.stderr.write('%s t=%d: %s\n' % (self.typ, t, ' '.join('%s%d' % d.tag for d in _)))
            mf = mfmas(t, t & 1)
            ef = [[g] if isinstance(g, str) else g for g in extra.get(t, []) + extra.get(t + 100, []) + extra.get(t + 200, []) + extra.get(t + 300, []) + extra.get(t + 400, [])]
            body += spread(mf, rd, dm, ef)
            if rd:
                body += ["s_waitcnt lgkmcnt(0)"]
        body += PF.stamp()
        return body

    def epi_slot(self, k, ndma=None, nrd=None):
        slot = 16 + k
        L = []
        if ndma is None:
            e = OPT['edma']
            ndma = e if e < 10 else (e // 10 if k % 2 == 0 else e % 10)
        if nrd is None:
            nrd = OPT['nrd']
        if getattr(self, 'epi_reads_pending', False):
            L += ["s_waitcnt lgkmcnt(0)"]
            self.epi_reads_pending = False
        upto = 0
        if k >= 1:
            upto = self.w2_issued_at[max(s for s in self.w2_issued_at if s <= max(slot - 3, 14))]
        r, last = self.w2.take_reads(nrd, upto, slot)
        if r:
            L += ["s_waitcnt vmcnt(%d)" % self.vm.wait_for(lambda tag: tag[0] == 'w2' and tag[1] <= last)] + r
            self.epi_reads_pending = True
        dm, _ = self.sched.take(slot, ndma)
        L += sum(dm, [])
        self.w2_issued_at[slot] = self.n_w2_issued()
        if OPT['verbose']:
            sys.stderr.write('%s epi %d: reads upto %d, %s\n' % (self.typ, k, self.w2.nread, ' '.join('%s%d' % d.tag for d in _)))
        return L

    def flush_w2(self, slot, keep):
        L = []
        while self.w2.nread < 16 or self.sched.pending() > keep or getattr(self, 'epi_reads_pending', False):
            L += self.epi_slot(slot - 16, ndma=max(self.sched.pending() - keep, 0), nrd=16)
            slot += 1
        return L


def flag_store(val_reg, lab):
    return ["s_cmp_lg_u32 s%d, 0" % sWV, "s_cbranch_scc1 %s" % lab,
            "s_mov_b32 exec_lo, 0", "s_brev_b32 exec_hi, 1",
            "buffer_store_dword v%d, v%d, %s, 0 offen sc1" % (val_reg, vFO, s4(sF)),
            "s_mov_b64 exec, -1", "%s:" % lab]


def publishA(P1, PF, lab):
    L = ["s_waitcnt vmcnt(%d)" % P1.vm.wait_for(lambda tag: tag[0] in ('stA', 'tag'))]
    L += ["s_mov_b32 s%d, 0" % sU,
          "%s_tag:" % lab,
          "v_cmp_eq_u32 vcc, 0, v%d" % (vTG + 1),
          "s_cmp_eq_u64 vcc, 0", "s_cbranch_scc1 %s_tagok" % lab,
          tag_load(), "s_add_u32 s%d, s%d, 1" % (sU, sU), "s_waitcnt vmcnt(0)",
          "s_cmp_lt_u32 s%d, 0x8000" % sU, "s_cbranch_scc1 %s_tag" % lab,
          "%s_tagok:" % lab,
          "v_lshrrev_b32 v%d, v%d, v%d" % (vTG, vSH, vTG), "v_and_b32 v%d, 1, v%d" % (vTG, vTG),
          "s_barrier",
          "v_or_b32 v%d, 2, v%d" % (vTG + 1, vTG)]
    L += flag_store(vTG, lab + "_fa")
    L += PF.stamp()
    return L


def poll_check(vP, mask, want, lab):
    return ["s_mov_b32 s%d, 0" % sU,
            "%s:" % lab,
            "v_and_b32 v%d, %d, v%d" % (vP, mask, vP),
            "v_cmp_ne_u32 vcc, v%d, v%d" % (want, vP),
            "s_cmp_eq_u64 vcc, 0", "s_cbranch_scc1 %s_ok" % lab,
            "buffer_load_dword v%d, v%d, %s, 0 offen sc1" % (vP, vFO, s4(sF)),
            "s_add_u32 s%d, s%d, 1" % (sU, sU),
            "s_waitcnt vmcnt(0)",
            "s_cmp_lt_u32 s%d, 0x8000" % sU, "s_cbranch_scc1 %s" % lab,
            "%s_ok:" % lab]


def pick_regions(cands):
    c = sorted(cands)
    for i in range(len(c) - 3):
        if c[i + 3] - c[i] <= 7:
            return c[i:i + 4]
    raise AssertionError(cands)


def phase2(P1, PF, lab):
    vm, w2 = P1.vm, P1.w2
    L = []
    vAD, vG, vXW, vXR, vOUT, vP, vT = 32, 36, 44, 52, 54, 55, 56
    AC = {(0, 'o'): 64, (0, 'h'): 96, (1, 'o'): 128, (1, 'h'): 160}
    VWF, VRD = 192, 224 - 128
    sSA0 = sST
    L += P1.flush_w2(40, OPT['keep'])
    L += ["buffer_load_dword v%d, v%d, %s, 0 offen sc1" % (vP, vFO, s4(sF))]
    vm.issue(('pa', 0))
    L += P1.flush_w2(60, 0)
    R1 = pick_regions([w2.region[n] for n in range(16, 24)])
    R2 = pick_regions([r for r in range(20) if r not in R1])
    m, g = vT, vT + 1
    L += ["v_lshlrev_b32 v%d, 4, v%d" % (vAD, vLANE), "v_and_b32 v%d, 15, v%d" % (m, vLANE), "v_lshrrev_b32 v%d, 4, v%d" % (g, vLANE),
          "s_lshl_b32 s%d, s%d, 8" % (sU, sMT), "v_lshl_add_u32 v%d, v%d, 2, s%d" % (vG + 4, m, sU),
          "s_mov_b32 s%d, s%d" % (sSA0, sSA), "s_mov_b32 s%d, s%d" % (sSA, sAo), "v_add_u32 v%d, %d, v%d" % (vAD + 28, CLS, vAD)]
    L += srd(sG, pWS, 8192, add=G_OFF)
    L += ['s_mov_b32 s%d, %d' % (sA + 2, A2_BYTES)]
    L += ["v_and_b32 v%d, 2, v%d" % (vT + 2, g), "v_xor_b32 v%d, v%d, v%d" % (vT + 2, vT + 2, m),
          "v_lshl_add_u32 v%d, v%d, 4, v%d" % (vT + 2, g, vT + 2), "v_lshl_add_u32 v%d, v%d, 4, s%d" % (vT + 2, vT + 2, sM2)]
    for t in range(4):
        L += ["v_xor_b32 v%d, %d, v%d" % (vT + 3, 64 * t, vT + 2)]
        for e, R in enumerate((R1, R2)):
            L += ["v_add_u32 v%d, %d, v%d" % (vXW + 4 * e + t, 8192 * R[t >> 1] + 1024 * (t & 1), vT + 3)]
    c, mm = vT, vT + 1
    L += ["v_and_b32 v%d, 7, v%d" % (c, vLANE), "v_lshrrev_b32 v%d, 3, v%d" % (mm, vLANE),
          "s_and_b32 s%d, s%d, 1" % (sU, sWV), "s_lshl_b32 s%d, s%d, 3" % (sU, sU), "v_add_u32 v%d, s%d, v%d" % (mm, sU, mm),
          "s_lshl_b32 s%d, s%d, 1" % (sU + 1, sMT), "s_lshr_b32 s%d, s%d, 1" % (sU + 2, sWV), "s_add_u32 s%d, s%d, s%d" % (sU + 1, sU + 1, sU + 2),
          "s_lshl_b32 s%d, s%d, 15" % (sU + 1, sU + 1), "s_lshl_b32 s%d, s%d, 7" % (sU + 3, sNT), "s_add_u32 s%d, s%d, s%d" % (sU + 1, sU + 1, sU + 3),
          "v_lshl_add_u32 v%d, v%d, 4, s%d" % (vOUT, c, sU + 1), "v_lshl_add_u32 v%d, v%d, 11, v%d" % (vOUT, mm, vOUT),
          "v_lshlrev_b32 v%d, 1, v%d" % (vT + 2, c), "v_xor_b32 v%d, v%d, v%d" % (mm, mm, vT + 2), "v_lshlrev_b32 v%d, 4, v%d" % (mm, mm),
          "v_and_b32 v%d, 3, v%d" % (vT + 2, c), "v_lshl_add_u32 v%d, v%d, 9, v%d" % (mm, vT + 2, mm),
          "v_lshrrev_b32 v%d, 2, v%d" % (c, c)]
    for e, R in enumerate((R1, R2)):
        L += ["s_cmp_eq_u32 s%d, 0" % (sU + 2),
              "s_mov_b32 s%d, %d" % (sU + 4, 8192 * R[2]), "s_cselect_b32 s%d, %d, s%d" % (sU + 4, 8192 * R[0], sU + 4),
              "s_mov_b32 s%d, %d" % (sU + 5, 8192 * (R[3] - R[2])), "s_cselect_b32 s%d, %d, s%d" % (sU + 5, 8192 * (R[1] - R[0]), sU + 5),
              "v_mad_u32_u24 v%d, v%d, s%d, v%d" % (vXR + e, c, sU + 5, mm), "v_add_u32 v%d, s%d, v%d" % (vXR + e, sU + 4, vXR + e)]
    L += ["s_waitcnt vmcnt(%d)" % vm.wait_for(lambda tg: tg[0] == 'pa')]
    L += PF.stamp()
    L += ["s_barrier"] + flag_store(vTG + 1, lab + "_fb")
    L += poll_check(vP, 1, vTG, lab + "_pa")
    L += PF.stamp()
    LA, NAB = OPT['la'], 7
    assert LA < NAB

    def issue(st):
        p, u = divmod(st, 9)
        out = []
        for i in range(4):
            gq = ["buffer_load_dwordx4 %s, v%d, %s, s%d offen offset:%d sc1" % (a4(16 * (st % NAB) + 4 * i), vAD + 4 * 7 * p, s4(sA), sSA, 1024 * i)]
            vm.issue(('a', st))
            if i == 3 and st < 17:
                if u == 8:
                    gq += ["s_mov_b32 s%d, s%d" % (sSA, sAo)]
                elif u == 0:
                    gq += ["s_xor_b32 s%d, s%d, 0x1000" % (sSA, sAo)]
                elif u == 1:
                    gq += ["s_mov_b32 s%d, s%d" % (sSA, sSA0)]
                else:
                    gq += ["s_add_u32 s%d, s%d, 4096" % (sSA, sSA),
                           "s_cmp_eq_u32 s%d, s%d" % (sSA, sAe), "s_cselect_b32 s%d, s%d, s%d" % (sSA, sAh, sSA)]
            out.append(gq)
        return out
    nxt = 0
    for st in range(OPT['la0']):
        L += sum(issue(st), [])
        nxt += 1

    def wfrag(kb, t):
        return a4(W2.AW2 + 16 * kb + 4 * t) if kb < 8 else v4(VWF + 16 * (kb & 3) + 4 * t)

    def xw(e, q, t, src):
        R = (R1, R2)[e]
        return "ds_write_b128 v%d, %s offset:%d" % (vXW + 4 * e + t, v4(src), 8192 * (R[2 + (t >> 1)] - R[t >> 1]) * q)

    def xr(e, dst):
        return ["ds_read_b128 %s, v%d offset:%d" % (v4(dst + 8 * w + 4 * h), vXR + e, 2048 * w + 256 * h) for w in range(4) for h in range(2)]

    def fin(p, dst):
        return ["v_cvt_pk_bf16_f32 v%d, v%d, v%d" % (dst + i, dst + 2 * i, dst + 2 * i + 1) for i in range(4)] + \
               ["buffer_store_dwordx4 %s, v%d, %s, 0 offen offset:%d%s" % (v4(dst), vOUT, s4(sO), 1024 * p, ["", " sc1", " nt", " sc0 sc1"][OPT['outsc']])]
    pollst = OPT['pollst']
    chk = 9 - LA
    assert pollst < chk
    O0, H0, O1, H1 = AC[(0, 'o')], AC[(0, 'h')], AC[(1, 'o')], AC[(1, 'h')]
    ex = {}
    mul0 = ["v_mul_f32 v%d, v%d, v%d" % (O0 + i, O0 + i, vG + 2 * (i >> 4)) for i in range(32)]
    fma0 = ["v_fma_f32 v%d, v%d, v%d, v%d" % (H0 + i, H0 + i, vG + 4 + 2 * (i >> 4), O0 + i) for i in range(32)]
    mul1 = ["v_mul_f32 v%d, v%d, v%d" % (O1 + i, O1 + i, vG + 1 + 2 * (i >> 4)) for i in range(32)]
    ex[8] = ["v_sub_f32 v%d, 1.0, v%d" % (vG + 4 + r, vG + r) for r in range(4)] + mul0[:20]
    ex[9] = mul0[20:] + fma0[:8]
    ex[10] = fma0[8:]
    ex[11] = mul1[:20]
    ex[12] = mul1[20:]
    ex[14] = [xw(0, q, t, H0 + 16 * q + 4 * t) for q in range(2) for t in range(4)]
    ex[15] = xr(0, O0)
    add0 = ["v_add_f32 v%d, v%d, v%d" % (O0 + i, O0 + i, O0 + 8 + i) for i in range(8)] + \
           ["v_add_f32 v%d, v%d, v%d" % (O0 + 16 + i, O0 + 16 + i, O0 + 24 + i) for i in range(8)] + \
           ["v_add_f32 v%d, v%d, v%d" % (O0 + i, O0 + i, O0 + 16 + i) for i in range(8)]
    ex[16] = add0[:12]
    ex[17] = add0[12:] + fin(0, O0)
    lg = VmTracker()

    def lgwait(pred):
        if not any(pred(t_) for t_ in lg.tags):
            return None
        return min(lg.wait_for(pred), 15)
    for st in range(18):
        p, u = divmod(st, 9)
        n = vm.wait_for(lambda g_: (g_[0] == 'a' and g_[1] <= st) or (st == chk and g_[0] == 'pb') or (st == 8 and g_[0] == 'g'))
        lw = lgwait(lambda t_: t_ == ('f', st, 0) or (st == 15 and t_[0] == 'xw') or (st == 16 and t_[0] == 'xr'))
        L += ["s_waitcnt vmcnt(%d)%s" % (n, "" if lw is None else " lgkmcnt(%d)" % lw)]
        if st == 15:
            L += ["s_barrier"]
        if st == chk:
            L += poll_check(vP, 3, vTG + 1, lab + "_pb")
        if st in (0, 4, 9, 13):
            L += PF.stamp()
        rd = []
        if 4 <= u + 1 < 9:
            for k, kb in enumerate((2 * u + 2, 2 * u + 3)):
                for h in range(2):
                    rd += [(x, ('f', st + 1, k)) for x in w2.reads(2 * kb + h, lambda t: v2(VWF + 16 * (kb & 3) + 4 * t + 2 * h))]
        dm = []
        for _ in range(2):
            if nxt < 18 and nxt <= st + LA:
                dm += issue(nxt)
                nxt += 1
        if st == 1:
            for r in range(4):
                dm += [["buffer_load_dword v%d, v%d, %s, 0 offen offset:%d sc1" % (vG + r, vG + 4, s4(sG), 64 * r)]]
                vm.issue(('g', 0))
        if st == pollst:
            dm += [["buffer_load_dword v%d, v%d, %s, 0 offen sc1" % (vP, vFO, s4(sF))]]
            vm.issue(('pb', 0))
        acc = AC[(p, 'o' if u < 2 else 'h')]
        mf = []
        order = [(q, t, k) for k in range(2) for q in range(2) for t in range(4)] if u >= 4 else \
                [(q, t, k) for q in range(2) for t in range(4) for k in range(2)]
        for q, t, k in order:
            d = v4(acc + 16 * q + 4 * t)
            mf.append("v_mfma_f32_16x16x32_bf16 %s, %s, %s, %s" % (d, wfrag(2 * u + k, t), a4(16 * (st % NAB) + 8 * k + 4 * q),
                                                                "0" if (u in (0, 2) and k == 0) else d))
        gaps = [[] for _ in mf]
        for i, r in enumerate(rd):
            gaps[i].append(r)
        sp = OPT['ldsp']
        for i, g in enumerate(dm):
            gaps[min(i * sp, 15)] += [(x, None) for x in g]
        e = ex.get(st, [])
        for i, x in enumerate(e):
            tg = ('xw',) if x.startswith("ds_write") else ('xr',) if x.startswith("ds_read") else None
            gaps[i if tg else (i * 16) // len(e)].append((x, tg))
        for i, (m_, g) in enumerate(zip(mf, gaps)):
            if i == 8 and u >= 4:
                L += ["s_waitcnt lgkmcnt(%d)" % lgwait(lambda t_: t_ == ('f', st, 1))]
            L += [m_]
            for x, tg in g:
                L += [x]
                if tg:
                    lg.issue(tg)
        if any(x.startswith("buffer_store") for x in e):
            vm.issue(('o', 0))
    L += PF.stamp()
    for q in range(2):
        for i in range(0, 16, 2):
            L += ["v_pk_fma_f32 %s, %s, %s, %s op_sel:[0,1,0] op_sel_hi:[1,1,1]" % (v2(H1 + 16 * q + i), v2(H1 + 16 * q + i), v2(vG + 4 + 2 * q), v2(O1 + 16 * q + i))]
            if i % 4 == 2:
                L += [xw(1, q, i >> 2, H1 + 16 * q + (i & ~3))]
    L += ["s_waitcnt lgkmcnt(0)", "s_barrier"] + xr(1, O1)
    L += ["s_waitcnt lgkmcnt(4)"]
    L += ["v_pk_add_f32 %s, %s, %s" % (v2(O1 + i), v2(O1 + i), v2(O1 + 8 + i)) for i in range(0, 8, 2)]
    L += ["s_waitcnt lgkmcnt(0)"]
    L += ["v_pk_add_f32 %s, %s, %s" % (v2(O1 + 16 + i), v2(O1 + 16 + i), v2(O1 + 24 + i)) for i in range(0, 8, 2)]
    L += ["v_pk_add_f32 %s, %s, %s" % (v2(O1 + i), v2(O1 + i), v2(O1 + 16 + i)) for i in range(0, 8, 2)]
    L += fin(1, O1)
    L += PF.stamp() + PF.dump() + ["s_endpgm"]
    return L


def gen_H():
    PF = Prof(31)
    L = PF.stamp()
    L += ["s_mul_i32 s%d, s%d, 21" % (sT, sXCD), "s_add_u32 s%d, s%d, s%d" % (sT, sT, sIDX), "s_sub_u32 s%d, s%d, 11" % (sT, sT),
          "s_mul_i32 s%d, s%d, 171" % (sCG, sT), "s_lshr_b32 s%d, s%d, 11" % (sCG, sCG),
          "s_mul_i32 s%d, s%d, 12" % (sT + 1, sCG), "s_sub_u32 s%d, s%d, s%d" % (sT, sT, sT + 1),
          "s_mul_i32 s%d, s%d, 11" % (sRB0, sT),
          "s_mul_i32 s%d, s%d, 14" % (sPID, sT), "s_add_u32 s%d, s%d, s%d" % (sPID, sPID, sCG), "s_add_u32 s%d, s%d, 88" % (sPID, sPID),
          "s_mul_i32 s%d, s%d, %d" % (sROT, sCG, OPT['rotb']), "s_add_u32 s%d, s%d, s%d" % (sROT, sT, sROT)]
    L += rot_fix('H')
    x_setup(L, 'H')
    L += ["v_and_b32 v38, 1, v33", "v_lshlrev_b32 v38, 1, v38", "v_xor_b32 v38, v34, v38", "v_lshlrev_b32 v38, 4, v38",
          "s_movk_i32 s%d, 3584" % sT, "v_mad_u32_u24 v38, v32, s%d, v38" % sT, "v_xor_b32 v39, 64, v38",
          "s_and_b32 s%d, s%d, 1" % (sT, sWV), "s_lshl_b32 s%d, s%d, 7" % (sT, sT),
          "s_lshl_b32 s%d, s%d, 8" % (sT + 1, sCG), "s_add_u32 s%d, s%d, s%d" % (sT, sT, sT + 1)]
    for e in range(4):
        L += ["s_add_u32 s%d, s%d, %d" % (sT + 1, sT, e * (8 * 3584 - 1024)), "v_add_u32 v%d, s%d, v%d" % (vWD + e, sT + 1, 38 + (e & 1))]
    L += ["s_mul_i32 s%d, s%d, 6144" % (sMX, sWV), "s_lshl_b32 s%d, s%d, 12" % (sMW, sWV)]
    L += ["s_waitcnt lgkmcnt(0)"] + PF.xstamp(50)
    L += srd(sX, pX, 2048 * 1024, bias=4096)
    L += ["s_cmp_lt_u32 s%d, 2" % sWV, "s_cselect_b32 s%d, s%d, s%d" % (sW, pWG, pWU), "s_cselect_b32 s%d, s%d, s%d" % (sW + 1, pWG + 1, pWU + 1),
          "s_mov_b32 s%d, %d" % (sW + 2, 512 * 3584), "s_mov_b32 s%d, 0x20000" % (sW + 3)]
    XS, WB, WS = 24576, 73728, 16384
    P1 = Phase1('H', PF, XS, WB, WS, OPT['nwsH'], 3584, 4, None, (61, 62), [2, 3, 4, 5, 6, 7, 8, 9, 10, 28, 29, 30])
    lb = LdsBases(range(vRD + 4, 28))
    vx0, vx1, vw0, vw1 = vRD, vRD + 1, vRD + 2, vRD + 3
    S2 = ["v_and_b32 v40, 15, v%d" % vLANE, "v_lshrrev_b32 v41, 1, v40", "v_xor_b32 v41, v41, v33",
          "v_lshlrev_b32 v41, 4, v41", "v_lshl_add_u32 v%d, v40, 7, v41" % vx0, "v_xor_b32 v%d, 64, v%d" % (vx1, vx0)]
    S2 += ["v_lshrrev_b32 v42, 2, v40", "v_lshl_add_u32 v43, v33, 3, v42",
           "v_lshrrev_b32 v44, 1, v42", "v_and_b32 v45, 1, v33", "v_lshl_add_u32 v44, v45, 1, v44",
           "s_and_b32 s%d, s%d, 1" % (sT, sWV), "s_lshl_b32 s%d, s%d, 1" % (sT, sT), "v_xor_b32 v44, s%d, v44" % sT,
           "v_lshlrev_b32 v44, 5, v44", "v_lshl_add_u32 v43, v43, 7, v44",
           "v_and_b32 v45, 3, v%d" % vLANE, "v_lshl_add_u32 v43, v45, 3, v43",
           "s_lshr_b32 s%d, s%d, 1" % (sT, sWV), "s_lshl_b32 s%d, s%d, 12" % (sT, sT),
           "v_add_u32 v%d, s%d, v43" % (vw0, sT), "v_xor_b32 v%d, 32, v%d" % (vw1, vw0)]
    AW, AX = 0, 32

    def xreads(t, buf, xo):
        out = []
        for b in range(11):
            r, o = lb.addr(vx1 if (t & 1) else vx0, xo + 2048 * b)
            out.append("ds_read_b128 %s, v%d offset:%d" % (a4(AX + 44 * buf + 4 * b), r, o))
        return out

    def wreads(t, buf, wo):
        out = []
        for q in range(4):
            for h in range(2):
                r, o = lb.addr(vw1 if (q & 1) else vw0, wo + (8192 if q >= 2 else 0) + 512 * h)
                out.append("ds_read_b64_tr_b16 %s, v%d offset:%d" % (a2(AW + 16 * buf + 4 * q + 2 * h), r, o))
        return out

    def mfmas(t, buf):
        out = []
        for b in range(11):
            for q in (range(3, -1, -1) if (OPT['snake'] and b % 2) else range(4)):
                d = v4(ACC + 16 * b + 4 * q)
                out.append("v_mfma_f32_16x16x32_bf16 %s, %s, %s, %s" % (d, a4(AW + 16 * buf + 4 * q), a4(AX + 44 * buf + 4 * b), d if t else "0"))
        return out
    vST = 60
    ES = ["s_mov_b32 s%d, 0x%x" % (sC0, NLOG2E), "s_mov_b32 s%d, 0x%x" % (sC0 + 1, NLOG2E),
          "s_mov_b32 s%d, 1.0" % (sC0 + 2), "s_mov_b32 s%d, 1.0" % (sC0 + 3),
          ["s_lshl_b32 s%d, s%d, 2" % (sU, sCG), "s_add_u32 s%d, s%d, s%d" % (sU, sU, sWV)],
          ["s_add_u32 s%d, s%d, 16" % (sU, sU), "s_lshl_b32 s%d, s%d, 11" % (sU, sU)],
          "v_lshlrev_b32 v%d, 4, v%d" % (vST, vLANE), "v_add_u32 v%d, s%d, v%d" % (vST, sU, vST)]
    ES += [["s_add_u32 s%d, s%d, s%d" % (sU + 2, sRB0, sPAR), "s_sub_u32 s%d, s%d, s%d" % (sU + 3, sRB0, sPAR)]]
    so = store_offsets([(sU + 2, 2 * b) for b in range(5)] + [(sRB0, 10)] + [(sU + 3, 1 + 2 * b) for b in range(5)])
    pro = P1.prologue()
    body = P1.main(xreads, wreads, mfmas, {OPT['wt'] + 100: warmups(46, 47), OPT['wt2'] + 200: warmups(48, 49, 1), OPT['ipf2'] + 300: iprefetch2(50, 'H'), **l2_prefetch(51, 52), 0: P1.w2.setup_dma(), 5: ES, 12: P1.w2.setup_rd(), 6: so[:15], 7: so[15:30], 8: so[30:45], 10: so[45:], 15: flag_setup(P1.vm)})
    L += (tlb_warm() + pro[0] if OPT['tlb'] == 2 else pro[0] + tlb_warm()) + S2 + lb.setup + late_scalar_setup() + pro[1] + body + ['H_epi:']
    L += [tag_load()]
    P1.vm.issue(('tag', 0))
    for b in range(11):
        base = ACC + 16 * b
        G = [base + i for i in range(8)]
        U = [base + 8 + i for i in range(8)]
        L += ["v_pk_mul_f32 %s, %s, s[%d:%d]" % (v2(G[i]), v2(G[i]), sC0, sC0 + 1) for i in range(0, 8, 2)]
        L += ["v_exp_f32 v%d, v%d" % (g, g) for g in G]
        L += P1.epi_slot(b)
        L += ["v_pk_add_f32 %s, %s, s[%d:%d]" % (v2(G[i]), v2(G[i]), sC0 + 2, sC0 + 3) for i in range(0, 8, 2)]
        L += ["v_rcp_f32 v%d, v%d" % (g, g) for g in G]
        L += ["v_pk_mul_f32 %s, %s, %s" % (v2(U[i]), v2(U[i]), v2(G[i])) for i in range(0, 8, 2)]
        L += ["v_cvt_pk_bf16_f32 v%d, v%d, v%d" % (G[i], U[2 * i], U[2 * i + 1]) for i in range(4)]
        L += ["buffer_store_dwordx4 %s, v%d, %s, s%d offen%s" % (v4(base), vST, s4(sA), sST + b, ["", " sc1", " nt", " sc1 nt"][OPT['stsc']])]
        P1.vm.issue(('stA' if b < 6 else 'stB', b))
        if b == OPT['pubH']:
            L += publishA(P1, PF, "H")
    L += PF.stamp()
    L += phase2(P1, PF, "H")
    return L


def gen_Q():
    PF = Prof(10 if False else 31)
    L = PF.stamp()
    L += ["s_mov_b32 s%d, s%d" % (sCG, sXCD), "s_mul_i32 s%d, s%d, 12" % (sRB0, sIDX),
          "s_lshl_b32 s%d, s%d, 3" % (sPID, sIDX), "s_add_u32 s%d, s%d, s%d" % (sPID, sPID, sXCD),
          "s_add_u32 s%d, s%d, s%d" % (sROT, sIDX, sXCD), "s_add_u32 s%d, s%d, %d" % (sROT, sROT, OPT['rotq'])]
    L += rot_fix('Q')
    x_setup(L, 'Q')
    L += ["s_lshl_b32 s%d, s%d, 4" % (sT, sRB0), "s_add_u32 s%d, s%d, s%d" % (sT, sT, sWV),
          "s_sub_u32 s%d, s%d, 16" % (sT, sT), "s_lshl_b32 s%d, s%d, 10" % (sT, sT), "s_add_u32 s%d, s%d, 4096" % (sT, sT),
          "s_cmp_eq_u32 s%d, 0" % sRB0, "s_cselect_b32 s%d, 0x%x, s%d" % (sT, BIG, sT),
          "s_cmp_ge_u32 s%d, 2" % sWV, "s_cselect_b32 s%d, 0x%x, s%d" % (sT, BIG, sT),
          "s_and_b32 s%d, s%d, 1" % (sT + 1, sWV), "s_lshl_b32 s%d, s%d, 6" % (sT + 1, sT + 1),
          "v_xor_b32 v38, s%d, v36" % (sT + 1), "v_add_u32 v%d, s%d, v38" % (vXD + 6, sT)]
    L += ["v_and_b32 v38, 1, v33", "v_lshlrev_b32 v38, 1, v38", "v_xor_b32 v38, v34, v38", "v_lshlrev_b32 v38, 4, v38",
          "s_movk_i32 s%d, 3072" % sT, "v_mad_u32_u24 v38, v32, s%d, v38" % sT,
          "s_mul_i32 s%d, s%d, 3" % (sT, sWV), "s_lshl_b32 s%d, s%d, 7" % (sT + 4, sCG)]
    for e in range(3):
        L += ["s_add_u32 s%d, s%d, %d" % (sT + 1, sT, e),
              "s_and_b32 s%d, s%d, 3" % (sT + 2, sT + 1), "s_mul_i32 s%d, s%d, %d" % (sT + 2, sT + 2, 8 * 3072),
              "s_lshr_b32 s%d, s%d, 2" % (sT + 3, sT + 1), "s_lshl_b32 s%d, s%d, 10" % (sT + 3, sT + 3),
              "s_add_u32 s%d, s%d, s%d" % (sT + 2, sT + 2, sT + 3), "s_add_u32 s%d, s%d, s%d" % (sT + 2, sT + 2, sT + 4),
              "s_sub_u32 s%d, s%d, %d" % (sT + 2, sT + 2, 1024 * e),
              "s_and_b32 s%d, s%d, 1" % (sT + 1, sT + 1), "s_lshl_b32 s%d, s%d, 6" % (sT + 1, sT + 1),
              "v_xor_b32 v39, s%d, v38" % (sT + 1), "v_add_u32 v%d, s%d, v39" % (vWD + e, sT + 2)]
    L += ["s_mul_i32 s%d, s%d, 6144" % (sMX, sWV), "s_mul_i32 s%d, s%d, 3072" % (sMW, sWV), "s_lshl_b32 s%d, s%d, 10" % (sM7, sWV)]
    L += ["v_lshlrev_b32 v39, 2, v32", "s_mov_b32 s%d, 0x%x" % (sT, OPT['masks'] & 0x77777777),
          "v_lshrrev_b32 v39, v39, s%d" % sT, "s_and_b32 s%d, s%d, 7" % (sT + 1, sROT), "v_and_b32 v39, s%d, v39" % (sT + 1),
          "v_xor_b32 v39, v39, v32", "v_lshl_add_u32 v39, v39, 3, v34", "v_lshlrev_b32 v39, 4, v39"]
    L += ["s_waitcnt lgkmcnt(0)"] + PF.xstamp(50)
    L += srd(sX, pX, 2048 * 1024, bias=4096) + srd(sW, pQKV, 512 * 3072) + srd(sG, pGW, 1024)
    XS, WB, WS, NWS = 28672, 86016, 12288, 6
    GW = WB + NWS * WS
    L += ["s_mov_b32 m0, %d" % GW, "s_nop 0", "buffer_load_dwordx4 v39, %s, 0 offen lds" % s4(sG)]
    P1 = Phase1('Q', PF, XS, WB, WS, NWS, 3072, 3, (GW, GW + 1024), (12, 0), [2, 3, 4, 5, 6, 7, 8, 9, 10, 28, 29, 30])
    lb = LdsBases(range(vRD + 9, 28))
    lb2 = LdsBases(range(46, 54))
    vx0, vx1, vw0, vw1, vh0, vh1, vt0, vt1, vg = [vRD + i for i in range(9)]
    S2 = ["v_and_b32 v40, 15, v%d" % vLANE, "v_lshrrev_b32 v41, 1, v40", "v_xor_b32 v41, v41, v33",
          "v_lshlrev_b32 v41, 4, v41", "v_lshl_add_u32 v42, v40, 7, v41",
          "s_lshr_b32 s%d, s%d, 1" % (sT, sWV), "s_mul_i32 s%d, s%d, %d" % (sT + 1, sT, 6 * 2048),
          "v_add_u32 v%d, s%d, v42" % (vx0, sT + 1), "v_xor_b32 v%d, 64, v%d" % (vx1, vx0)]
    S2 += ["s_lshl_b32 s%d, s%d, 2" % (sT + 1, sCG), "s_add_u32 s%d, s%d, s%d" % (sT + 1, sT + 1, sWV),
           "s_min_u32 s%d, s%d, 11" % (sT + 1, sT + 1), "s_lshl_b32 s%d, s%d, 11" % (sT + 1, sT + 1),
           "v_add_u32 v%d, s%d, v42" % (vt0, sT + 1), "v_xor_b32 v%d, 64, v%d" % (vt1, vt0)]
    S2 += ["v_or_b32 v43, 8, v40", "v_lshrrev_b32 v44, 1, v43", "v_xor_b32 v44, v44, v33", "v_lshlrev_b32 v44, 4, v44",
           "v_lshl_add_u32 v44, v43, 7, v44",
           "v_lshrrev_b32 v45, 3, v40", "v_lshl_add_u32 v44, v45, 11, v44", "v_add_u32 v44, %d, v44" % (4 * 2048),
           "v_add_u32 v45, %d, v42" % (12 * 2048),
           "s_cmp_eq_u32 s%d, 0" % sT, "s_cselect_b64 vcc, -1, 0",
           "v_cndmask_b32 v%d, v44, v45, vcc" % vh0, "v_xor_b32 v%d, 64, v%d" % (vh1, vh0)]
    S2 += ["v_lshrrev_b32 v42, 2, v40", "v_lshl_add_u32 v43, v33, 3, v42",
           "v_lshrrev_b32 v44, 1, v42", "v_and_b32 v45, 1, v33", "v_lshl_add_u32 v44, v45, 1, v44",
           "s_and_b32 s%d, s%d, 1" % (sT, sWV), "s_lshl_b32 s%d, s%d, 1" % (sT, sT), "v_xor_b32 v44, s%d, v44" % sT,
           "v_lshlrev_b32 v44, 5, v44", "v_lshl_add_u32 v43, v43, 7, v44",
           "v_and_b32 v45, 3, v%d" % vLANE, "v_lshl_add_u32 v%d, v45, 3, v43" % vw0,
           "v_xor_b32 v%d, 32, v%d" % (vw1, vw0),
           "v_lshlrev_b32 v45, 4, v33", "v_add_u32 v%d, %d, v45" % (vg, GW)]
    AW, AX = 0, 48

    def Qa(hh, b): return ACC + 4 * (hh * 20 + b)
    def Ka(hh, b): return ACC + 4 * (hh * 20 + 6 + b)
    def Va(hh, b): return ACC + 4 * (hh * 20 + 13 + b)
    TA = ACC + 160

    def xreads(t, buf, xo):
        out = []
        for b in range(6):
            r, o = lb.addr(vx1 if (t & 1) else vx0, xo + 2048 * b)
            out.append("ds_read_b128 %s, v%d offset:%d" % (a4(AX + 36 * buf + 4 * b), r, o))
        r, o = lb.addr(vh1 if (t & 1) else vh0, xo)
        out.append("ds_read_b128 %s, v%d offset:%d" % (a4(AX + 36 * buf + 24), r, o))
        r, o = lb.addr(vt1 if (t & 1) else vt0, xo)
        out.append("ds_read_b128 %s, v%d offset:%d" % (a4(AX + 36 * buf + 28), r, o))
        out.append("ds_read_b128 %s, v%d offset:%d" % (a4(AX + 36 * buf + 32), vg, 64 * t))
        return out

    def wreads(t, buf, wo):
        out = []
        for seg in range(3):
            for hh in range(2):
                for h in range(2):
                    r, o = lb2.addr(vw1 if hh else vw0, wo + 4096 * seg + 512 * h)
                    out.append("ds_read_b64_tr_b16 %s, v%d offset:%d" % (a2(AW + 24 * buf + 4 * (seg * 2 + hh) + 2 * h), r, o))
        return out

    def mfmas(t, buf):
        out = []
        W = lambda seg, hh: a4(AW + 24 * buf + 4 * (seg * 2 + hh))
        for b in range(7):
            X = a4(AX + 36 * buf + 4 * b)
            for hh in range(2):
                if b < 6:
                    d = v4(Qa(hh, b)); out.append("v_mfma_f32_16x16x32_bf16 %s, %s, %s, %s" % (d, W(0, hh), X, d if t else "0"))
                d = v4(Ka(hh, b)); out.append("v_mfma_f32_16x16x32_bf16 %s, %s, %s, %s" % (d, W(1, hh), X, d if t else "0"))
                d = v4(Va(hh, b)); out.append("v_mfma_f32_16x16x32_bf16 %s, %s, %s, %s" % (d, X, W(2, hh), d if t else "0"))
        d = v4(TA)
        out.append("v_mfma_f32_16x16x32_bf16 %s, %s, %s, %s" % (d, a4(AX + 36 * buf + 32), a4(AX + 36 * buf + 28), d if t else "0"))
        return out
    MC, MP, MH0, MH1, AM, ONES, SPARE = 228, 232, 236, 240, 244, 248, 252
    vST, vGO = 250, 251
    ES = [srd(sG, pWS, 8192, add=G_OFF),
          "s_mov_b32 s%d, 0x%x" % (sC0, SCL), "s_mov_b32 s%d, 0x%x" % (sC0 + 1, NLOG2E),
          ["s_lshl_b32 s%d, s%d, 1" % (sU, sCG), "s_and_b32 s%d, s%d, 1" % (sU + 1, sWV)],
          ["s_add_u32 s%d, s%d, s%d" % (sU, sU, sU + 1), "s_lshl_b32 s%d, s%d, 11" % (sU, sU)],
          "v_lshlrev_b32 v%d, 4, v%d" % (vST, vLANE), "v_add_u32 v%d, s%d, v%d" % (vST, sU, vST),
          ["s_lshl_b32 s%d, s%d, 2" % (sU, sCG), "s_add_u32 s%d, s%d, s%d" % (sU, sU, sWV)],
          ["s_add_u32 s%d, s%d, s%d" % (sU + 1, sU, sRB0), "s_lshl_b32 s%d, s%d, 6" % (sU + 1, sU + 1)],
          ["s_cmp_lt_u32 s%d, 12" % sU, "s_cselect_b32 s%d, s%d, 0x%x" % (sU + 1, sU + 1, BIG)],
          "v_lshl_add_u32 v%d, v%d, 2, s%d" % (vGO, vLANE, sU + 1),
          "v_mov_b32 v%d, 0x%x" % (SPARE, BIG),
          "v_cmp_gt_u32 vcc, 16, v%d" % vLANE,
          "v_mov_b32 v%d, 0x3f803f80" % ONES, "v_mov_b32 v%d, 0x3f803f80" % (ONES + 1),
          "v_cndmask_b32 v%d, v%d, v%d, vcc" % (vGO, SPARE, vGO),
          ["s_lshr_b32 s%d, s%d, 1" % (sU + 2, sWV), "s_mul_i32 s%d, s%d, 6" % (sU + 2, sU + 2)],
          "s_add_u32 s%d, s%d, s%d" % (sU + 2, sU + 2, sRB0)]
    so = store_offsets([(sU + 2, b) for b in range(6)])
    HV, HV2 = sU + 4, sU + 6
    ES2 = ["v_and_b32 v%d, 15, v%d" % (SPARE, vLANE), "v_lshrrev_b32 v%d, 4, v%d" % (SPARE + 1, vLANE),
           "v_lshlrev_b32 v%d, 2, v%d" % (SPARE + 1, SPARE + 1), "v_sub_u32 v%d, v%d, v%d" % (SPARE, SPARE, SPARE + 1),
           "v_mov_b32 v%d, 0xff800000" % (SPARE + 2),
           ["s_lshr_b32 s%d, s%d, 1" % (sU, sWV), "s_or_b32 s%d, s%d, s%d" % (sU, sU, sRB0)],
           ["s_cmp_lg_u32 s%d, 0" % sU, "s_cselect_b64 s[%d:%d], -1, 0" % (HV, HV + 1)],
           ["s_mov_b32 s%d, s%d" % (HV2, HV), "s_mov_b32 s%d, 0" % (HV2 + 1)],
           "v_mov_b32 v%d, 0" % AM, "v_mov_b32 v%d, 0" % (AM + 1)]
    ES3 = []
    for r in range(4):
        ES3 += ["v_subrev_u32 v%d, %d, v%d" % (SPARE + 3, r, SPARE), "v_cmp_gt_u32 vcc, 8, v%d" % (SPARE + 3),
                "v_mov_b32 v%d, 0x%x" % (SPARE + 1, 0xffff0000 if (r & 1) else 0xffff),
                "v_add_u32 v%d, %d, v%d" % (SPARE + 3, 16 - r, SPARE),
                "v_cndmask_b32 v%d, v%d, 0, vcc" % (MC + r, SPARE + 2),
                "v_cndmask_b32 v%d, 0, v%d, vcc" % (SPARE + 1, SPARE + 1),
                "v_cmp_gt_u32 vcc, 8, v%d" % (SPARE + 3),
                "v_or_b32 v%d, v%d, v%d" % (AM + (r >> 1), AM + (r >> 1), SPARE + 1),
                "v_add_u32 v%d, %d, v%d" % (SPARE + 3, 8 - r, SPARE),
                "v_cndmask_b32 v%d, v%d, 0, vcc" % (MP + r, SPARE + 2),
                "s_and_b64 vcc, vcc, s[%d:%d]" % (HV, HV + 1),
                "v_cndmask_b32 v%d, v%d, 0, vcc" % (MH1 + r, SPARE + 2),
                "v_cmp_gt_u32 vcc, 8, v%d" % (SPARE + 3),
                "s_and_b64 vcc, vcc, s[%d:%d]" % (HV2, HV2 + 1),
                "v_cndmask_b32 v%d, v%d, 0, vcc" % (MH0 + r, SPARE + 2)]
    ES3 += ["v_not_b32 v%d, v%d" % (AM + 2, AM), "v_not_b32 v%d, v%d" % (AM + 3, AM + 1)]
    TL = ["s_lshl_b32 s%d, s%d, 12" % (sT, sXCD), "s_lshl_b32 s%d, s%d, 3" % (sT + 1, sXCD),
          "s_lshl_b32 s%d, s%d, 4" % (sT + 2, sWV), "s_add_u32 s%d, s%d, s%d" % (sT + 2, sT + 2, sIDX),
          "s_cmp_eq_u32 s%d, 10" % (sT + 2), "s_cselect_b32 s%d, s%d, 0x%x" % (sT, sT, BIG), "s_cselect_b32 s%d, s%d, 0x%x" % (sT + 1, sT + 1, BIG),
          "v_and_b32 v60, 31, v%d" % vLANE, "v_lshl_add_u32 v60, v60, 7, s%d" % sT,
          "v_lshl_add_u32 v62, v%d, 24, s%d" % (vLANE, sT + 1),
          "buffer_load_dword v60, v60, %s, 0 offen sc1" % s4(sF)]
    TP = ["v_and_b32 v60, 1, v60", "v_cmp_eq_u32 vcc, 0, v60", "v_mov_b32 v61, 1", "v_mov_b32 v60, vcc_lo",
          "buffer_store_dwordx2 v[60:61], v62, %s, 0 offen sc1" % s4(sD)]
    pro = P1.prologue()
    P1.vm.issue(('tp', 0))
    body = P1.main(xreads, wreads, mfmas, {3: ES + so[:10], 4: so[10:], 0: P1.w2.setup_dma(), 5: ES2, 6: ES3[:21], 7: ES3[21:42], 8: ES3[42:], 12: P1.w2.setup_rd(), 2: TP, OPT['wt'] + 100: warmups(56, 57), OPT['wt2'] + 200: warmups(58, 59, 1), OPT['ipf2'] + 300: iprefetch2(63, 'Q'), **l2_prefetch(54, 55), 15: flag_setup(P1.vm)}, {2: ('tp', 0)})
    L += (tlb_warm() + pro[0] if OPT['tlb'] == 2 else pro[0] + tlb_warm()) + S2 + lb.setup + lb2.setup + late_scalar_setup() + pro[1] + TL + body + ['Q_epi:']
    L += [tag_load()]
    P1.vm.issue(('tag', 0))
    VB = 32
    def Vb(hh, par, k): return VB + 16 * hh + 8 * par + 2 * k
    def cvt2(dst, src): return ["v_cvt_pk_bf16_f32 v%d, v%d, v%d" % (dst, src, src + 1), "v_cvt_pk_bf16_f32 v%d, v%d, v%d" % (dst + 1, src + 2, src + 3)]
    seg = [0]

    def slot():
        seg[0] += 1
        return P1.epi_slot(seg[0] - 1)
    npub = [0]

    def pub_point():
        npub[0] += 1
        return publishA(P1, PF, "Q") if npub[0] == OPT['pubQ'] else []

    def attention(par):
        L = []
        blocks = [par, par + 2, par + 4]
        units = [(hh, b) for b in blocks for hh in range(2)]
        pp = pub_point if par else (lambda: [])
        for b in blocks:
            for hh in range(2):
                L += cvt2(Qa(hh, b), Qa(hh, b)) + cvt2(Qa(hh, b) + 2, Ka(hh, b))
        if par == 0:
            for hh in range(2):
                L += cvt2(Ka(hh, 6), Ka(hh, 6))
            L += ["v_mul_f32 v%d, s%d, v%d" % (TA, sC0 + 1, TA), "v_exp_f32 v%d, v%d" % (TA, TA)]
        vc = []
        for b in blocks:
            for hh in range(2):
                vc += cvt2(Vb(hh, par, 1 + (b >> 1)), Va(hh, b))
        mf1, mf2 = [], []
        for (hh, b) in units:
            mf1 += ["v_mfma_f32_16x16x16_bf16 %s, %s, %s, %s" % (v4(Ka(hh, b)), v2(Qa(hh, b) + 2), v2(Qa(hh, b)), v4(MC))]
            kp = Ka(hh, 6) if b < 2 else Qa(hh, b - 2) + 2
            mk = MH0 if b == 0 else MH1 if b == 1 else MP
            mf2 += ["v_mfma_f32_16x16x16_bf16 %s, %s, %s, %s" % (v4(Va(hh, b)), v2(kp), v2(Qa(hh, b)), v4(mk))]
        L += interleave(mf1, vc)
        vh = []
        for hh in range(2):
            vh += cvt2(Vb(hh, par, 0), Va(hh, 6))
        if par == 0:
            vh += ["v_add_f32 v%d, 1.0, v%d" % (TA, TA), "v_rcp_f32 v%d, v%d" % (TA, TA)]
        L += interleave(mf2, vh + slot())
        if par == 0:
            L += ["buffer_store_dword v%d, v%d, %s, 0 offen sc1" % (TA, vGO, s4(sG))]
            P1.vm.issue(('stA', 100))
        for (hh, b) in units:
            S, P = Ka(hh, b), Va(hh, b)
            L += ["v_max_f32 v%d, v%d, v%d" % (S + r, S + r, P + r) for r in range(4)]
            L += ["v_max3_f32 v%d, v%d, v%d, v%d" % (P, S, S + 1, S + 2), "v_max_f32 v%d, v%d, v%d" % (P, P, S + 3)]
        L += pp() + slot()
        A, B, C, D, E, F = [Va(*u) for u in units]
        L += ["v_permlane32_swap_b32 v%d, v%d" % (A, B), "v_permlane32_swap_b32 v%d, v%d" % (C, D), "v_permlane32_swap_b32 v%d, v%d" % (E, F),
              "v_max_f32 v%d, v%d, v%d" % (A, A, B), "v_max_f32 v%d, v%d, v%d" % (C, C, D),
              "v_max_f32 v%d, v%d, v%d" % (E + 1, E, F), "v_max_f32 v%d, v%d, v%d" % (E, E, F),
              "v_permlane16_swap_b32 v%d, v%d" % (A, C), "v_permlane16_swap_b32 v%d, v%d" % (E, E + 1),
              "v_max_f32 v%d, v%d, v%d" % (A, A, C), "v_max_f32 v%d, v%d, v%d" % (E, E, E + 1),
              "v_mul_f32 v%d, s%d, v%d" % (C, sC0, A), "v_mul_f32 v%d, s%d, v%d" % (A, sC0, A),
              "v_mul_f32 v%d, s%d, v%d" % (F, sC0, E), "v_mul_f32 v%d, s%d, v%d" % (E, sC0, E),
              "v_permlane16_swap_b32 v%d, v%d" % (A, C), "v_permlane32_swap_b32 v%d, v%d" % (E, F),
              "v_mov_b32 v%d, v%d" % (B, A), "v_mov_b32 v%d, v%d" % (D, C),
              "v_permlane32_swap_b32 v%d, v%d" % (A, B), "v_permlane32_swap_b32 v%d, v%d" % (C, D)]
        prevP = SPARE
        sums = {}
        pend_mf = []
        for k in (4, 0, 2):
            us = units[k:k + 2]
            a = []
            for (hh, b) in us:
                S, P = Ka(hh, b), Va(hh, b)
                a += ["v_fma_f32 v%d, v%d, s%d, -v%d" % (S + r, S + r, sC0, P) for r in range(4)]
            L += interleave(pend_mf, a) if pend_mf else a
            for (hh, b) in us:
                S = Ka(hh, b)
                L += ["v_exp_f32 v%d, v%d" % (S + r, S + r) for r in range(4)]
            L += pp() + slot()
            for (hh, b) in us:
                L += cvt2(Va(hh, b) + 2, Ka(hh, b))
            for (hh, b) in us:
                P, Q = Va(hh, b), Qa(hh, b)
                L += ["v_and_b32 v%d, v%d, v%d" % (Q, P + 2, AM + 2), "v_and_b32 v%d, v%d, v%d" % (Q + 1, P + 3, AM + 3),
                      "v_and_b32 v%d, v%d, v%d" % (Q + 2, P + 2, AM), "v_and_b32 v%d, v%d, v%d" % (Q + 3, P + 3, AM + 1)]
            pend_mf = []
            for (hh, b) in us:
                P = Va(hh, b)
                pend_mf += ["v_mfma_f32_16x16x16_bf16 %s, %s, %s, 0" % (v4(prevP), v2(ONES), v2(P + 2))]
                sums[(hh, b)] = prevP
                prevP = P
            for (hh, b) in us:
                pend_mf += ["v_mfma_f32_16x16x32_bf16 %s, %s, %s, 0" % (v4(Ka(hh, b)), v4(Vb(hh, par, b >> 1)), v4(Qa(hh, b)))]
        order = [units[4], units[5]] + units[:4]
        rc = ["v_rcp_f32 v%d, v%d" % (sums[u], sums[u]) for u in order]
        L += interleave(pend_mf, rc[:4])
        for i, b in enumerate((blocks[2], blocks[0], blocks[1])):
            if i == 2:
                L += rc[4:]
            for hh in range(2):
                S = Ka(hh, b)
                sm = sums[(hh, b)]
                L += ["v_pk_mul_f32 %s, %s, %s op_sel_hi:[1,0]" % (v2(S + r), v2(S + r), v2(sm)) for r in (0, 2)]
            for hh in range(2):
                L += cvt2(Qa(0, b) + 2 * hh, Ka(hh, b))
            L += ["buffer_store_dwordx4 %s, v%d, %s, s%d offen%s" % (v4(Qa(0, b)), vST, s4(sA), sST + b, ["", " sc1", " nt", " sc1 nt"][OPT['stsc']])]
            P1.vm.issue(('stB' if par else 'stA', b))
        L += pp()
        return L
    L += attention(0) + attention(1)
    L += PF.stamp()
    L += phase2(P1, PF, "Q")
    return L


def main():
    K = NAME + "_kernel"
    L = [K + ":", "s_cmp_ge_u32 s2, 256", "s_cbranch_scc1 L_exit",
         "s_load_dwordx8 s[4:11], s[0:1], 0", "s_load_dwordx8 s[12:19], s[0:1], 32",
         "s_load_dwordx4 s[20:23], s[0:1], 64", "s_load_dwordx2 s[24:25], s[0:1], 80",
         "v_lshrrev_b32 v2, 6, v0", "v_and_b32 v%d, 63, v0" % vLANE, "v_readfirstlane_b32 s%d, v2" % sWV,
         "s_and_b32 s%d, s2, 7" % sXCD, "s_lshr_b32 s%d, s2, 3" % sIDX, "s_cmp_lt_u32 s%d, 11" % sIDX, "s_cbranch_scc1 L_Q"]
    pf = []
    if OPT['iprefetch']:
        i = L.index("v_lshrrev_b32 v2, 6, v0")
        L[i:i] = ["s_getpc_b64 s[26:27]", "v_and_b32 v63, 15, v0", "s_lshr_b32 s3, s2, 3", "s_lshl_b32 s3, s3, 11",
                  "v_lshl_add_u32 v63, v63, 7, s3", "global_load_dword v63, v63, s[26:27]"]
    rep = {}
    H = fix_hazards(["s_nop 3"] + pf + gen_H(), rep)
    sys.stderr.write("H: %d lines, nops %d\n" % (len(H), rep['nops']))
    Q = fix_hazards(["s_nop 3"] + pf + gen_Q(), rep)
    sys.stderr.write("Q: %d lines, nops %d\n" % (len(Q), rep['nops']))
    out = ["; generated by gen2.py: single persistent kernel, flag hand-off between GEMM1 and GEMM2",
           "; @launch grid=(256,1,1) block=(256,1,1) lds=163840",
           '.amdgcn_target "amdgcn-amd-amdhsa--gfx950"', ".text", ".globl " + K, ".p2align 8", ".type %s,@function" % K]
    out += fix_hazards(L) + H + ["L_exit:", "s_endpgm", ".p2align 6", "L_Q:"] + Q
    out += [".p2align 8", ".fill 6144, 4, 0xbf800000", "s_endpgm"]
    out += ['.section .rodata,"a"', ".p2align 6", """.amdhsa_kernel %s
  .amdhsa_next_free_vgpr 512
  .amdhsa_next_free_sgpr 102
  .amdhsa_accum_offset 256
  .amdhsa_group_segment_fixed_size 0
  .amdhsa_kernarg_size 88
  .amdhsa_user_sgpr_count 2
  .amdhsa_user_sgpr_kernarg_segment_ptr 1
  .amdhsa_system_sgpr_workgroup_id_x 1
.end_amdhsa_kernel""" % K]
    print("\n".join(out))


main()
```

```python
import re

_REG = re.compile(r'^(-?)(?:abs\()?([vas])(?:(\d+)|\[(\d+):(\d+)\])\)?$')
TRANS = ('v_exp_f32', 'v_log_f32', 'v_rcp_f32', 'v_rsq_f32', 'v_sqrt_f32', 'v_sin_f32', 'v_cos_f32')


def regs_of(tok):
    tok = tok.strip()
    if tok in ('vcc', 'exec'):
        return [tok]
    if tok in ('vcc_lo', 'vcc_hi'):
        return ['vcc']
    if tok in ('exec_lo', 'exec_hi'):
        return ['exec']
    if tok == 'm0':
        return ['m0']
    m = _REG.match(tok)
    if not m:
        return []
    k = m.group(2)
    if m.group(3) is not None:
        return [k + m.group(3)]
    return [k + str(i) for i in range(int(m.group(4)), int(m.group(5)) + 1)]


def split_ops(text):
    text = text.split(';')[0].strip()
    parts = text.split(None, 1)
    mn = parts[0]
    ops = []
    mods = []
    if len(parts) > 1:
        raw = [p.strip() for p in re.split(r',(?![^\[]*\])', parts[1])]
        for i, p in enumerate(raw):
            toks = p.split()
            if not toks:
                continue
            ops.append(toks[0])
            mods += toks[1:]
    return mn, ops, mods


class Ins:
    __slots__ = ('text', 'mn', 'kind', 'rd', 'wr', 'srcc', 'passes', 'data', 'ab')

    def __init__(self, text):
        self.text = text
        self.rd = set(); self.wr = set(); self.srcc = set(); self.passes = 0; self.data = set(); self.ab = set()
        t = text.strip()
        if not t or t.startswith(';') or t.startswith('.') or t.endswith(':'):
            self.kind = 'label' if t.endswith(':') else 'dir'
            self.mn = ''
            return
        mn, ops, mods = split_ops(t)
        base = re.sub(r'_e(32|64)$', '', mn)
        self.mn = base
        R = [regs_of(o) for o in ops]
        if base.startswith('v_mfma'):
            self.kind = 'mfma'
            self.passes = 8 if '32x32' in base else 4
            self.wr = set(R[0]); self.ab = set(R[1]) | set(R[2]); self.srcc = set(R[3])
            self.rd = self.ab | self.srcc
        elif base.startswith('v_'):
            self.kind = 'trans' if base in TRANS else 'valu'
            if base.startswith('v_cmp'):
                self.wr = set(R[0]); self.rd = set(sum(R[1:], []))
                if base.startswith('v_cmpx'):
                    self.wr.add('exec')
            elif base in ('v_swap_b32',) or base.startswith('v_permlane'):
                self.wr = set(R[0]) | set(R[1]); self.rd = set(self.wr)
            else:
                self.wr = set(R[0]); self.rd = set(sum(R[1:], []))
                if base in ('v_fmac_f32', 'v_dot2c_f32_bf16', 'v_writelane_b32'):
                    self.rd |= self.wr
                if base in ('v_add_co_u32', 'v_addc_co_u32', 'v_sub_co_u32'):
                    self.wr |= set(R[1])
        elif base.startswith('ds_'):
            self.kind = 'ds'
            if base.startswith('ds_read') or base.startswith('ds_bpermute') or base.startswith('ds_swizzle'):
                self.wr = set(R[0]); self.rd = set(sum(R[1:], []))
            else:
                self.rd = set(sum(R, []))
        elif base.startswith('buffer_') or base.startswith('global_'):
            self.kind = 'vmem'
            if base in ('buffer_inv', 'buffer_wbl2'):
                pass
            elif 'lds' in mods:
                self.rd = set(sum(R, [])) | {'m0'}
            elif '_load' in base:
                self.wr = set(R[0]); self.rd = set(sum(R[1:], []))
            elif base.startswith('buffer_'):
                self.rd = set(sum(R, []))
                if len(R[0]) > 2:
                    self.data = set(R[0])
                if 'atomic' in base and 'sc0' in mods:
                    self.wr = set(R[0])
            else:
                self.rd = set(sum(R, []))
                if len(R[1]) > 2:
                    self.data = set(R[1])
        elif base.startswith('s_'):
            self.kind = 'salu'
            if base in ('s_nop', 's_waitcnt', 's_barrier', 's_endpgm', 's_setprio', 's_sleep', 's_branch') or base.startswith('s_cbranch'):
                pass
            elif base.startswith('s_cmp') or base.startswith('s_bitcmp'):
                self.rd = set(sum(R, []))
            else:
                self.wr = set(R[0]); self.rd = set(sum(R[1:], []))
                if 'saveexec' in base:
                    self.wr.add('exec')
        else:
            raise ValueError('unknown instr: ' + text)


def fix_hazards(lines, report=None):
    out = []
    pos = 0
    valu_w = {}
    trans_w = {}
    mfma_w = {}
    mfma_c = {}
    st_data = {}
    salu_m0 = -100
    nnop = 0
    fwd = {}
    seen = set()
    for text in lines:
        ins = Ins(text)
        if ins.kind in ('label', 'dir'):
            out.append(text)
            lab = text.strip()[:-1]
            if ins.kind == 'label' and lab in fwd:
                np_ = fwd.pop(lab)
                if np_ < pos:
                    pos = np_
                    for dct in (valu_w, trans_w, st_data):
                        for r in dct:
                            dct[r] = min(dct[r], pos - 1)
                    for r in mfma_w:
                        mfma_w[r] = (min(mfma_w[r][0], pos - 1),) + mfma_w[r][1:]
                    for r in mfma_c:
                        mfma_c[r] = (min(mfma_c[r][0], pos - 1),) + mfma_c[r][1:]
                    salu_m0 = min(salu_m0, pos - 1)
            if ins.kind == 'label':
                seen.add(lab)
            continue
        if ins.mn.startswith('s_cbranch') or ins.mn == 's_branch':
            tgt = text.split()[1]
            if tgt not in seen:
                fwd.setdefault(tgt, pos + 1)
        need = 0

        def req(p, d):
            nonlocal need
            gap = pos - p - 1
            if gap < d:
                need = max(need, d - gap)
        isv = ins.kind in ('valu', 'trans')
        if ins.kind == 'mfma':
            for r in ins.rd:
                if r in valu_w:
                    req(valu_w[r], 2)
            for r in ins.ab:
                if r in mfma_w:
                    p, ps, _ = mfma_w[r]
                    req(p, {4: 8, 8: 12}[ps])
            for r in ins.srcc:
                if r in mfma_w:
                    p, ps, dset = mfma_w[r]
                    if dset == ins.srcc and ps == ins.passes:
                        pass
                    else:
                        req(p, {4: 6, 8: 10}[ps])
            for r in ins.wr:
                if r in mfma_w and r not in ins.srcc:
                    p, ps, dset = mfma_w[r]
                    req(p, {4: 6, 8: 10}[ps])
            if 'exec' in valu_w:
                req(valu_w['exec'], 4)
        else:
            if ins.kind in ('valu', 'trans', 'ds', 'vmem'):
                for r in (ins.rd | ins.wr):
                    if r in mfma_w:
                        p, ps, _ = mfma_w[r]
                        req(p, {4: 8, 8: 12}[ps])
            if isv:
                for r in ins.wr:
                    if r in mfma_c:
                        p, ps = mfma_c[r]
                        req(p, {4: 3, 8: 7}[ps])
                    if r in st_data:
                        req(st_data[r], 2)
                if ins.kind == 'valu':
                    for r in ins.rd:
                        if r in trans_w:
                            req(trans_w[r], 1)
                for r in ins.rd:
                    if (r[0] == 's' or r == 'vcc') and r in valu_w:
                        req(valu_w[r], 4 if ins.mn in ('v_readlane_b32', 'v_writelane_b32') else 2)
                if ins.mn.startswith('v_permlane'):
                    for r in ins.rd:
                        if r in valu_w:
                            req(valu_w[r], 2)
                    if 'exec' in valu_w:
                        req(valu_w['exec'], 4)
                if ins.mn in ('v_readfirstlane_b32', 'v_readlane_b32'):
                    for r in ins.rd:
                        if r in valu_w:
                            req(valu_w[r], 1)
                    if 'exec' in valu_w:
                        req(valu_w['exec'], 4)
                if 'dpp' in text or 'row_' in text or 'quad_perm' in text:
                    for r in ins.rd:
                        if r in valu_w:
                            req(valu_w[r], 2)
            if ins.kind in ('ds', 'vmem'):
                for r in ins.wr:
                    if r in st_data:
                        req(st_data[r], 1)
                for r in ins.rd:
                    if r in trans_w:
                        req(trans_w[r], 1)
            if ins.kind == 'vmem':
                for r in ins.rd:
                    if r[0] == 's' and r in valu_w:
                        req(valu_w[r], 5)
                if 'm0' in ins.rd:
                    req(salu_m0, 1)
            if ins.kind == 'salu':
                for r in ins.rd:
                    if r in valu_w:
                        req(valu_w[r], 2)
        while need > 0:
            k = min(need, 16)
            out.append('s_nop %d' % (k - 1))
            pos += k
            need -= k
            nnop += k
        out.append(text)
        if isv:
            for r in ins.wr:
                valu_w[r] = pos
                mfma_w.pop(r, None)
                if ins.kind == 'trans':
                    trans_w[r] = pos
                else:
                    trans_w.pop(r, None)
        elif ins.kind == 'mfma':
            for r in ins.wr:
                mfma_w[r] = (pos, ins.passes, ins.wr)
                valu_w.pop(r, None); trans_w.pop(r, None)
            for r in ins.srcc:
                mfma_c[r] = (pos, ins.passes)
        elif ins.kind == 'salu':
            for r in ins.wr:
                valu_w.pop(r, None)
            if 'm0' in ins.wr:
                salu_m0 = pos
        if ins.data:
            for r in ins.data:
                st_data[r] = pos
        if ins.mn == 's_nop':
            pos += int(text.split()[1], 0) + 1
        else:
            pos += 1
    if report is not None:
        report['nops'] = nnop
    return out


def interleave(main, fillers, start=0, per=None):
    out = []
    n = len(main) - start
    k = len(fillers)
    fi = 0
    for i, m in enumerate(main):
        out.append(m)
        if i < start:
            continue
        if per is None:
            tgt = ((i - start + 1) * k + n - 1) // n
        else:
            tgt = min(k, (i - start + 1) * per)
        while fi < tgt:
            f = fillers[fi]
            if isinstance(f, str):
                out.append(f)
            else:
                out.extend(f)
            fi += 1
    while fi < k:
        f = fillers[fi]
        if isinstance(f, str):
            out.append(f)
        else:
            out.extend(f)
        fi += 1
    return out


class VmTracker:
    def __init__(self):
        self.tags = []

    def issue(self, tag):
        self.tags.append(tag)

    def wait_for(self, pred):
        last = -1
        for i, t in enumerate(self.tags):
            if pred(t):
                last = i
        n = len(self.tags) - 1 - last
        return min(n, 63)
```

```python
import sys
from asmlib import *

COST = {'mfma': 8, 'trans': 8}


def cost(text):
    if text.endswith(':'):
        return 0
    m = text.split()[0]
    if m.startswith('v_mfma'):
        return 8
    if m.startswith(('v_exp', 'v_rcp', 'v_permlane')):
        return 8
    if m.startswith('buffer_') or m.startswith('global_'):
        return 10
    return 4


class Emit:
    def __init__(self):
        self.L = []
        self.vm = []
        self.lg = []
        self.lgdone = 0
        self.vmdone = 0
        self.now = 0

    def __call__(self, x, tag=None):
        if isinstance(x, tuple):
            x, tag = x
        if isinstance(x, list):
            for y in x:
                self(y)
            return
        self.L.append(x)
        self.now += cost(x)
        if tag == 'untracked':
            return
        if x.startswith(('buffer_', 'global_')):
            self.vm.append(tag)
        elif x.startswith('ds_'):
            self.lg.append((tag, self.now))
        elif x.startswith('s_waitcnt') and 'lgkmcnt(0)' in x:
            self.lgdone = len(self.lg)

    def vm_need(self, pred):
        last = -1
        for i, t in enumerate(self.vm):
            if t is not None and pred(t):
                last = i
        if last < self.vmdone:
            return None
        return last + 1

    def lg_need(self, pred):
        last = -1
        for i in range(self.lgdone, len(self.lg)):
            t = self.lg[i][0]
            if t is not None and pred(t):
                last = i
        return None if last < 0 else last + 1

    def lg_old(self, age):
        k = self.lgdone
        while k < len(self.lg) and self.lg[k][1] <= self.now - age:
            k += 1
        return k

    def wait(self, vmidx=None, lgidx=None):
        parts = []
        if vmidx is not None and vmidx > self.vmdone:
            n = min(len(self.vm) - vmidx, 63)
            parts.append("vmcnt(%d)" % n)
            self.vmdone = len(self.vm) - n
        if lgidx is not None and lgidx > self.lgdone:
            n = min(len(self.lg) - lgidx, 15)
            parts.append("lgkmcnt(%d)" % n)
            self.lgdone = len(self.lg) - n
        if parts:
            self.L.append("s_waitcnt " + " ".join(parts))
            self.now += 4


class Dma:
    def __init__(self, stream, tag, m0, pre, text, need, ok=None):
        self.stream, self.tag, self.m0, self.pre, self.text, self.need, self.ok = stream, tag, m0, pre, text, need, ok


class Sched:
    def __init__(self):
        self.streams = {}
        self.m0 = None

    def add(self, d):
        self.streams.setdefault(d.stream, []).append(d)

    def take(self, cap, w2key=1e9):
        seq = []
        n = 0
        while n < cap:
            best = None
            for s, q in self.streams.items():
                if q and (q[0].ok is None or q[0].ok(q[0], False)):
                    key = q[0].need if s != 'w2' else w2key
                    if best is None or key < bkey:
                        best, bkey = s, key
            if best is None:
                break
            d = self.streams[best].pop(0)
            if d.ok:
                d.ok(d, True)
            seq += [(x, None) for x in d.pre]
            if d.m0 is not None and d.m0 != self.m0:
                seq.append(("s_add_u32 m0, s%d, %d" % d.m0, None))
                self.m0 = d.m0
            seq.append((d.text, d.tag))
            n += 1
        return seq

    def pending(self, s=None):
        return sum(len(q) for k, q in self.streams.items() if s is None or k == s)


class Operand:
    def __init__(self, name, reads, tag, rel):
        self.name, self.reads, self.tag, self.rel = name, reads, tag, rel
        self.quad = None
        self.uses = 0
        self.issued = False


class Engine:
    def __init__(self, E, sched, w2, vis, units, nquads=32, age=110, verbose=None):
        self.E, self.sched, self.w2, self.vis = E, sched, w2, vis
        self.units = dict(units)
        self.free = list(range(nquads))
        self.age = age
        self.verbose = verbose
        self.pending_rd = []
        self.visible = set()

    def released(self, tag):
        return not any(k[:len(tag)] == tag for k in self.units)

    def range_free(self, lo, hi):
        return not any(a < hi and b > lo for a, b in self.units.values())

    def plan(self, segs):
        self.order = []
        self.left = {}
        for sg in segs:
            for (d, A, B, first) in sg['mf']:
                for o in (A, B):
                    if o.uses == 0:
                        self.order.append(o)
                        self.left[o.rel] = self.left.get(o.rel, 0) + 1
                    o.uses += 1
        self.nxt = 0

    def next_read(self, force=None):
        if not self.pending_rd:
            if self.nxt >= len(self.order):
                return False
            o = self.order[self.nxt]
            if o.tag not in self.visible or not self.free:
                assert force is None, ("forced read impossible", o.name, o.tag in self.visible, self.free)
                return False
            o.quad = self.free.pop(0)
            self.pending_rd = [(x, o) for x in o.reads(4 * o.quad)]
            self.nxt += 1
        x, o = self.pending_rd.pop(0)
        self.E(x, ('op', o.name, o.rel))
        if not self.pending_rd:
            o.issued = True
            self.left[o.rel] -= 1
        return True

    def barrier(self, si, extra_vm=None, pre=None, force_release=False):
        E = self.E
        tags = [t for t, s in self.vis.items() if s == si]
        for q in self.sched.streams.values():
            for d in q:
                assert d.tag not in tags, ("not issued in time", si, d.tag)
        vmi = E.vm_need(lambda t: t in tags or (extra_vm and extra_vm(t)))
        old = E.lg_old(self.age)
        rel = []
        lgi = None
        for k in list(self.units):
            if self.left.get(k, 0) == 0:
                need = E.lg_need(lambda t: t[0] == 'op' and t[2] == k)
                if need is None or need <= old or force_release:
                    rel.append(k)
                    if need is not None:
                        lgi = max(lgi or 0, need)
        if lgi is not None:
            lgi = max(lgi, old)
        E.wait(vmi, lgi)
        if pre:
            E(pre)
        E("s_barrier")
        for k in rel:
            del self.units[k]
        self.visible |= set(tags)

    def run_seg(self, si, sg):
        E = self.E
        w2 = self.w2
        w2n = w2.ready(E.now, sg.get('nw2r', 0))
        xv = (lambda t: t[0] == 'w2' and t[1] <= w2n[-1]) if w2n else None
        ev = sg.get('extra_vm')
        pred = (lambda t: (xv and xv(t)) or (ev and ev(t))) if (xv or ev) else None
        if sg.get('barrier', True):
            self.barrier(si, pred, sg.get('pre'), sg.get('force_release', 0 < si < 16))
        elif pred:
            E.wait(E.vm_need(pred), None)
        if w2.inflight_reads:
            E.wait(None, E.lg_need(lambda t: t[0] == 'w2r'))
            w2.recycle()
        E(sg.get('post', []))
        seq = self.sched.take(sg.get('ndma', 0), sg.get('w2key', 1e9))
        if self.verbose:
            sys.stderr.write("%s seg %d t=%d: w2rd %s dma %s | units %d\n" % (self.verbose, si, E.now, w2n, ' '.join('%s%d' % t for x, t in seq if t), len(self.units)))
        mf = sg['mf']
        n = len(mf)
        gaps = [[] for _ in range(n)]
        hasv = [False] * n
        vi = [i for i, (x, t) in enumerate(seq) if x.startswith('buffer_')]
        k = len(vi)
        lead = 2 if (vi and vi[0] > 0 and n >= 3 * k) else 0
        prev, pi = -1, 0
        for j, v in enumerate(vi):
            pos = lead + (j * (n - lead)) // k
            sal = seq[pi:v]
            room = list(range(prev + 1, pos)) or [pos]
            chunks = []
            for x in sal:
                if chunks and (len(chunks[-1]) < 2 or chunks[-1][-1][0].startswith('s_cmp')):
                    chunks[-1].append(x)
                else:
                    chunks.append([x])
            for c, ch in enumerate(chunks):
                gaps[room[min(c, len(room) - 1)]] += ch
            gaps[pos].append(seq[v])
            hasv[pos] = True
            prev, pi = pos, v + 1
        fill = []
        for g in sg.get('fill', []):
            for x in (g if isinstance(g, list) else [g]):
                tx = x if isinstance(x, str) else x[0]
                if fill and (tx.startswith(('s_cselect', 's_addc', 's_subb')) or tx.endswith(':')):
                    fill[-1].append(x)
                else:
                    fill.append([x])
        w2r = w2.read_instrs(w2n)
        tot = sum(cost(x if isinstance(x, str) else x[0]) for g in fill for x in g)
        dense = tot > 6 * n
        done = 0
        fi = 0
        wi = 0
        for i, (d, A, B, first) in enumerate(mf):
            for o in (A, B):
                while not o.issued:
                    self.next_read(force=o)
            need = E.lg_need(lambda t: t[0] == 'op' and t[1] in (A.name, B.name))
            if need is not None:
                E.wait(None, max(need, E.lg_old(self.age)))
            t0 = E.now
            E("v_mfma_f32_16x16x32_bf16 v[%d:%d], a[%d:%d], a[%d:%d], %s" % (d, d + 3, 4 * A.quad, 4 * A.quad + 3, 4 * B.quad, 4 * B.quad + 3,
                                                                               "0" if first else "v[%d:%d]" % (d, d + 3)))
            for o in (A, B):
                o.uses -= 1
                if o.uses == 0:
                    self.free.append(o.quad)
            for x in gaps[i]:
                E(x)
                if x[1] is not None and x[1][0] == 'w2':
                    w2.mark_issue(x[1][1], E.now)
            used = E.now - t0 - 8
            nr = sg.get('rdrate', 1)
            if not hasv[i] or dense:
                for _ in range(nr):
                    if used < 8 or dense:
                        if self.next_read():
                            used += 4
                tgt = ((i + 1) * len(w2r)) // max(n - 4, 1)
                while wi < min(tgt, len(w2r)) and (used < 8 or dense or wi + 2 < tgt):
                    E(w2r[wi]); wi += 1; used += 4
            want = tot * (i + 1) / n
            while fi < len(fill):
                c = sum(cost(x if isinstance(x, str) else x[0]) for x in fill[fi])
                behind = want - done
                if behind <= 0:
                    break
                if not dense and used + c > max(8, c) and behind < 3 * max(c, tot / n):
                    break
                if not dense and hasv[i] and behind < 3 * max(c, tot / n):
                    break
                E(fill[fi]); done += c; used += c; fi += 1
            E.now = max(E.now, t0 + 16)
        while wi < len(w2r):
            E(w2r[wi]); wi += 1
        while fi < len(fill):
            E(fill[fi]); fi += 1
```

```python
import sys
from asmlib import *
from engine import *

NAME = "gated_mix__sliding_local_dilated__glu_gated_glu__prompt"
A2_BYTES = 32 * 72 * 4096
G_OFF = A2_BYTES
F_OFF = A2_BYTES + 8192
MT_STRIDE = 72 * 4096
CLS = 72 * 2048
NLOG2E = 0xbfb8aa3b
SCL = 0x3eb8aa3b
BIG = 0x40000000

OPT = dict(masks=0x77777777, iprefetch=1, prof=0, maxd=10, npro=20, la=3, la0=3, rx=1, rm3=0, rnt=0,
           diag=-1, c0=-1, c1=-1, sel=0, warm=2, outsc=1, wt=1, rotb=1, rotq=2, pollst=3, map2=0, perm=2,
           nwsH=4, nwsQ=4, stsc=1, verbose=0, q3=1, lm=0, lq=7, rhi=0, tlb=0, ldsp=3, nost=0, pf0=9,
           w2t=2, w2prio=4, w2lag=800, nrm=2, fH=2, fdH=5, fdQ=8, pubH=9, pubQ=5, v13=11, v14=12, ndef=0,
           barH=0x25, barQ=0x11, quota=0, age=110, keep=0, fsplit=0, nwf=2, sall=0, maxd0=8, nxs=3, early=0, lagf=800, ppH=5, ppQ=1, vt=10)
for a in sys.argv[1:]:
    if '=' in a:
        k, v = a.split('=')
        assert k in OPT, k
        OPT[k] = int(v, 0)

NXS = OPT['nxs']
CUR = ['H']
pX, pQKV, pWO, pWG, pWU, pWD, pGW, pOUT, pDBG, pWS = 4, 6, 8, 12, 14, 16, 18, 20, 22, 24
sX, sW, sA, sG, sWO, sWD, sO, sD = 28, 32, 36, 40, 44, 48, 52, 56
sWV, sRB0, sCG, sXCD, sIDX, sKX, sKW, sMX, sMW, sM7, sROT, sM2 = 60, 61, 62, 63, 64, 65, 66, 67, 68, 69, 70, 71
sMT, sNT, sW2o, sW2h, sW2e, sS2, sAo, sAh, sAe, sSA = 72, 73, 74, 75, 76, 77, 78, 79, 80, 81
sC0 = 82
sST = 86
sF = 20
sS3 = 27
sPAR = 99
sPID = 98
sK = 97
sT = 88
sU = 4
vLANE = 1
vXD, vWD, vRD = 2, 9, 13
ACC = 64


def v4(b): return "v[%d:%d]" % (b, b + 3)
def v2(b): return "v[%d:%d]" % (b, b + 1)
def a4(b): return "a[%d:%d]" % (b, b + 3)
def a2(b): return "a[%d:%d]" % (b, b + 1)
def s4(b): return "s[%d:%d]" % (b, b + 3)


class Prof:
    def __init__(self, vreg):
        self.n = 0
        self.v = vreg

    def stamp(self):
        self.n += 1
        if OPT['diag'] >= 0:
            L = []
            if OPT['diag'] == self.n - 1:
                L += ["s_memrealtime s[100:101]", "s_waitcnt lgkmcnt(0)", "s_mov_b32 s26, s100"]
            if OPT['c0'] == self.n - 1:
                L += ["s_memtime s[100:101]", "s_waitcnt lgkmcnt(0)", "s_mov_b32 s3, s100"]
            if OPT['c1'] == self.n - 1:
                L += ["s_memtime s[100:101]", "s_waitcnt lgkmcnt(0)", "s_sub_u32 s3, s100, s3"]
            return L
        if not OPT['prof']:
            return []
        if OPT['sel'] and not (OPT['sel'] >> (self.n - 1)) & 1:
            return []
        return ["%s s[100:101]" % ("s_memtime" if OPT['prof'] == 1 else "s_memrealtime"), "s_waitcnt lgkmcnt(0)", "v_writelane_b32 v%d, s100, %d" % (self.v, self.n - 1)]

    def xstamp(self, lane):
        if OPT['prof'] < 2:
            return []
        return ["s_memrealtime s[100:101]", "s_waitcnt lgkmcnt(0)", "v_writelane_b32 v%d, s100, %d" % (self.v, lane)]

    def dump(self):
        if OPT['diag'] >= 0:
            lab = "D%d" % id(self)
            L = ["s_waitcnt vmcnt(0)"] + self.stamp() + ["s_mov_b32 s4, 10000"]
            if OPT['c0'] >= 0:
                L += ["s_lshr_b32 s3, s3, 2", "s_add_u32 s4, s3, 5000"]
            L += ["s_mov_b32 s5, 0", lab + ":", "s_memrealtime s[100:101]", "s_waitcnt lgkmcnt(0)", "s_sub_u32 s6, s100, s26",
                  "s_add_u32 s5, s5, 1", "s_cmp_gt_u32 s5, 100000", "s_cbranch_scc1 %s_x" % lab,
                  "s_cmp_lt_u32 s6, s4", "s_cbranch_scc1 " + lab, lab + "_x:"]
            return L
        if not OPT['prof']:
            return []
        L = ["s_waitcnt vmcnt(0)"] + self.stamp()
        L += ["s_memrealtime s[100:101]", "s_waitcnt lgkmcnt(0)", "v_writelane_b32 v%d, s100, 63" % self.v]
        L += ["s_lshl_b32 s100, s2, 2", "s_add_u32 s100, s100, s%d" % sWV, "s_lshl_b32 s100, s100, 8",
              "s_add_u32 s100, s100, %d" % (16 << 20), "v_lshl_add_u32 v2, v%d, 2, s100" % vLANE,
              "global_store_dword v2, v%d, s[%d:%d]" % (self.v, pWS, pWS + 1)]
        return L


def srd(d, p, nbytes, bias=0, add=0):
    L = []
    if bias:
        L += ["s_sub_u32 s%d, s%d, %d" % (d, p, bias), "s_subb_u32 s%d, s%d, 0" % (d + 1, p + 1)]
    elif add:
        L += ["s_add_u32 s%d, s%d, %d" % (d, p, add), "s_addc_u32 s%d, s%d, 0" % (d + 1, p + 1)]
    else:
        L += ["s_mov_b32 s%d, s%d" % (d, p), "s_mov_b32 s%d, s%d" % (d + 1, p + 1)]
    L += ["s_mov_b32 s%d, 0x%x" % (d + 2, nbytes + bias), "s_mov_b32 s%d, 0x20000" % (d + 3)]
    return L


class LdsBases:
    def __init__(self, regs, chunk=0xC000):
        self.regs = list(regs)
        self.map = {}
        self.setup = []
        self.chunk = chunk

    def addr(self, patreg, off):
        ch = off // self.chunk
        if ch == 0:
            return patreg, off
        key = (patreg, ch)
        if key not in self.map:
            r = self.regs.pop(0)
            self.map[key] = r
            self.setup.append("v_add_u32 v%d, 0x%x, v%d" % (r, ch * self.chunk, patreg))
        return self.map[key], off - ch * self.chunk


def stage_pre(s, dst, mul):
    m = (OPT['masks'] >> (4 * s)) & 7
    if CUR[0] == 'H' and OPT['lm'] == 0 and not OPT['rhi']:
        m = 0
    if m == 0:
        return ["s_mov_b32 s%d, %d" % (dst, s * mul)]
    return ["s_and_b32 s%d, s%d, %d" % (sK, sROT, m), "s_xor_b32 s%d, s%d, %d" % (sK, sK, s), "s_mul_i32 s%d, s%d, %d" % (dst, sK, mul)]


def rot_fix(typ):
    L = []
    if typ == 'Q' and OPT['q3']:
        L += ["s_cmp_eq_u32 s%d, 3" % sXCD, "s_cselect_b32 s%d, %d, %d" % (sT + 6, OPT['lq'], OPT['lm']), "s_and_b32 s%d, s%d, s%d" % (sROT, sROT, sT + 6)]
    else:
        L += ["s_and_b32 s%d, s%d, %d" % (sROT, sROT, OPT['lm'])]
    if OPT['rhi']:
        L += ["s_lshl_b32 s%d, s%d, 2" % (sT + 6, sXCD), "s_and_b32 s%d, s%d, 4" % (sT + 6, sT + 6), "s_xor_b32 s%d, s%d, s%d" % (sROT, sROT, sT + 6)]
    return L


def x_setup(L, typ):
    L += ["v_lshrrev_b32 v32, 3, v%d" % vLANE, "v_lshrrev_b32 v33, 4, v%d" % vLANE, "v_and_b32 v34, 7, v%d" % vLANE,
          "v_xor_b32 v35, v34, v33", "v_lshlrev_b32 v35, 4, v35", "v_lshl_add_u32 v36, v32, 11, v35", "v_xor_b32 v37, 64, v36"]
    if typ == 'H':
        L += ["s_mul_i32 s%d, s%d, 6" % (sT, sWV), "s_and_b32 s%d, s%d, 1" % (sPAR, sRB0),
              "s_add_u32 s%d, s%d, s%d" % (sT + 4, sT, sPAR),
              "s_sub_u32 s%d, s%d, s%d" % (sT + 5, sT, sPAR), "s_sub_u32 s%d, s%d, 11" % (sT + 5, sT + 5),
              "s_cmp_lt_u32 s%d, 2" % sWV, "s_cselect_b32 s%d, s%d, s%d" % (sT, sT + 4, sT + 5)]
    else:
        L += ["s_mul_i32 s%d, s%d, 3" % (sT, sWV), "s_add_u32 s%d, s%d, s%d" % (sT, sT, sRB0)]
    for bb in range(3):
        if typ == 'H':
            L += ["s_add_u32 s%d, s%d, %d" % (sT + 1, sT, 2 * bb)]
            if bb == 2:
                L += ["s_min_u32 s%d, s%d, 10" % (sT + 1, sT + 1)]
            L += ["s_add_u32 s%d, s%d, s%d" % (sT + 1, sT + 1, sRB0)]
        else:
            L += ["s_add_u32 s%d, s%d, %d" % (sT + 1, sT, bb)]
        L += ["s_lshr_b32 s%d, s%d, 1" % (sT + 2, sT + 1), "s_lshl_b32 s%d, s%d, 15" % (sT + 2, sT + 2),
              "s_and_b32 s%d, s%d, 1" % (sT + 1, sT + 1), "s_lshl_b32 s%d, s%d, 10" % (sT + 1, sT + 1),
              "s_add_u32 s%d, s%d, s%d" % (sT + 2, sT + 2, sT + 1)]
        if typ == 'H' and bb == 2:
            L += ["s_cmp_eq_u32 s%d, 3" % sWV, "s_cselect_b32 s%d, 0x%x, s%d" % (sT + 2, BIG, sT + 2)]
        for dd in range(2):
            d = 2 * bb + dd
            add = 4096 - 1024 * (d & 3) + (16384 if dd else 0)
            L += ["s_add_u32 s%d, s%d, %d" % (sT + 3, sT + 2, add), "v_add_u32 v%d, s%d, v%d" % (vXD + d, sT + 3, 36 + dd)]


def tlb_warm():
    if not OPT['tlb'] or OPT['tlb'] >= 4:
        return []
    d = 3
    if OPT['tlb'] == 3:
        return ["s_lshl_b32 s%d, s%d, 21" % (sT, sWV), "s_add_u32 s%d, s%d, 0x200000" % (sT, sT),
                "s_load_dword s%d, s[%d:%d], s%d" % (d, pWS, pWS + 1, sT),
                "s_cmp_eq_u32 s%d, 0" % sWV, "s_cselect_b64 s[%d:%d], s[%d:%d], s[%d:%d]" % (sT + 2, sT + 3, pDBG, pDBG + 1, pWS, pWS + 1),
                "s_cmp_eq_u32 s%d, 1" % sWV, "s_cselect_b64 s[%d:%d], s[%d:%d], s[%d:%d]" % (sT + 2, sT + 3, pOUT, pOUT + 1, sT + 2, sT + 3),
                "s_load_dword s%d, s[%d:%d], 0" % (d, sT + 2, sT + 3)]
    L = ["s_lshl_b32 s%d, s%d, 20" % (sT, sWV),
         "s_load_dword s%d, s[%d:%d], s%d" % (d, pWS, pWS + 1, sT), "s_add_u32 s%d, s%d, 0x400000" % (sT, sT),
         "s_load_dword s%d, s[%d:%d], s%d" % (d, pWS, pWS + 1, sT), "s_add_u32 s%d, s%d, 0x400000" % (sT, sT),
         "s_load_dword s%d, s[%d:%d], s%d" % (d, pWS, pWS + 1, sT),
         "s_and_b32 s%d, s%d, 1" % (sT, sWV), "s_lshl_b32 s%d, s%d, 20" % (sT, sT),
         "s_load_dword s%d, s[%d:%d], s%d" % (d, pWD, pWD + 1, sT),
         "s_load_dword s%d, s[%d:%d], s%d" % (d, pOUT, pOUT + 1, sT),
         "s_load_dword s%d, s[%d:%d], 0" % (d, pWO, pWO + 1),
         "s_load_dword s%d, s[%d:%d], 0" % (d, pDBG, pDBG + 1)]
    return L


def late_scalar_setup():
    L = []
    L += srd(sA, pWS, 0 if OPT['nost'] else A2_BYTES)
    L += srd(sWO, pWO, 512 * 1024) + srd(sWD, pWD, 1792 * 1024) + srd(sO, pOUT, 2048 * 1024)
    L += srd(sD, pDBG, 256)
    L += srd(sF, pWS, 32768, add=F_OFF)
    if OPT['map2'] == 0:
        sP = sT + 5
        L += ["s_mov_b32 s%d, s%d" % (sP, sIDX)]
        if OPT['perm']:
            for a, b in ((11, 8), (19, 9), (27, 10)):
                L += ["s_cmp_eq_u32 s%d, %d" % (sIDX, a), "s_cselect_b32 s%d, %d, s%d" % (sP, b, sP),
                      "s_cmp_eq_u32 s%d, %d" % (sIDX, b), "s_cselect_b32 s%d, %d, s%d" % (sP, a, sP)]
            if OPT['perm'] == 2:
                L += ["s_cmp_eq_u32 s%d, 3" % sXCD, "s_cselect_b32 s%d, s%d, s%d" % (sP, sIDX, sP)]
        L += ["s_lshl_b32 s%d, s%d, 2" % (sMT, sXCD), "s_lshr_b32 s%d, s%d, 3" % (sT, sP), "s_add_u32 s%d, s%d, s%d" % (sMT, sMT, sT),
              "s_and_b32 s%d, s%d, 7" % (sNT, sP)]
    else:
        L += ["s_lshr_b32 s%d, s%d, 1" % (sMT, sXCD), "s_lshl_b32 s%d, s%d, 3" % (sMT, sMT), "s_lshr_b32 s%d, s%d, 2" % (sT, sIDX),
              "s_add_u32 s%d, s%d, s%d" % (sMT, sMT, sT),
              "s_and_b32 s%d, s%d, 1" % (sNT, sXCD), "s_lshl_b32 s%d, s%d, 2" % (sNT, sNT), "s_and_b32 s%d, s%d, 3" % (sT + 1, sIDX),
              "s_add_u32 s%d, s%d, s%d" % (sNT, sNT, sT + 1)]
    L += [
          "s_lshl_b32 s%d, s%d, 11" % (sM2, sWV),
          "s_lshl_b32 s%d, s%d, 17" % (sW2o, sWV),
          "s_mul_i32 s%d, s%d, %d" % (sW2h, sWV, 14 * 32768), "s_add_u32 s%d, s%d, %d" % (sW2e, sW2h, 14 * 32768),
          "s_mul_i32 s%d, s%d, %d" % (sT + 1, sMT, MT_STRIDE),
          "s_lshl_b32 s%d, s%d, 13" % (sAo, sWV), "s_add_u32 s%d, s%d, s%d" % (sAo, sAo, sT + 1),
          "s_mul_i32 s%d, s%d, %d" % (sAh, sWV, 14 * 2048), "s_add_u32 s%d, s%d, s%d" % (sAh, sAh, sT + 1),
          "s_add_u32 s%d, s%d, %d" % (sAh, sAh, 16 * 2048), "s_add_u32 s%d, s%d, %d" % (sAe, sAh, 14 * 2048)]
    L += ["s_mul_i32 s%d, s%d, %d" % (sT + 3, sT, OPT['rm3']), "s_cmp_eq_u32 s%d, 3" % sNT, "s_cselect_b32 s%d, s%d, 0" % (sT + 3, sT + 3),
          "s_cselect_b32 s%d, s%d, 0" % (sT + 4, sT),
          "s_mul_i32 s%d, s%d, %d" % (sT + 2, sXCD, OPT['rx']), "s_add_u32 s%d, s%d, s%d" % (sT + 4, sT + 4, sT + 2),
          "s_add_u32 s%d, s%d, s%d" % (sT + 2, sT + 2, sT + 3),
          "s_and_b32 s%d, s%d, %d" % (sT + 3, sNT, 1 if OPT['rnt'] else 0), "s_add_u32 s%d, s%d, s%d" % (sT + 4, sT + 4, sT + 3),
          "s_mul_i32 s%d, s%d, %d" % (sT + 3, sT + 3, OPT['rnt']), "s_add_u32 s%d, s%d, s%d" % (sT + 2, sT + 2, sT + 3),
          "s_lshr_b32 s%d, s%d, %d" % (sT + 4, sT + 4, 1 if OPT['map2'] else 0), "s_and_b32 s%d, s%d, 1" % (sT + 4, sT + 4),
          "s_lshl_b32 s%d, s%d, 16" % (sT + 3, sT + 4), "s_add_u32 s%d, s%d, s%d" % (sW2o, sW2o, sT + 3),
          "s_lshl_b32 s%d, s%d, 12" % (sT + 3, sT + 4), "s_add_u32 s%d, s%d, s%d" % (sAo, sAo, sT + 3)]
    for _ in range(2):
        L += ["s_cmp_ge_u32 s%d, 7" % (sT + 2), "s_cselect_b32 s%d, 7, 0" % (sT + 3), "s_sub_u32 s%d, s%d, s%d" % (sT + 2, sT + 2, sT + 3)]
    L += ["s_lshl_b32 s%d, s%d, 16" % (sT + 3, sT + 2), "s_add_u32 s%d, s%d, s%d" % (sS2, sW2h, sT + 3),
          "s_lshl_b32 s%d, s%d, 12" % (sT + 3, sT + 2), "s_add_u32 s%d, s%d, s%d" % (sSA, sAh, sT + 3),
          "s_add_u32 s%d, s%d, %d" % (sS3, sS2, min(OPT['pf0'], 6) * 65536), "s_sub_u32 s%d, s%d, %d" % (sT + 3, sS3, 7 * 65536),
          "s_cmp_ge_u32 s%d, s%d" % (sS3, sW2e), "s_cselect_b32 s%d, s%d, s%d" % (sS3, sT + 3, sS3)]
    return L


def warmups(va, vb, mode=None):
    L = []
    mode = OPT['warm'] if mode is None else mode
    if mode == 2:
        L += [["s_lshl_b32 s%d, s%d, 2" % (sU + 12, sIDX), "s_add_u32 s%d, s%d, s%d" % (sU + 12, sU + 12, sWV)],
              ["s_mul_i32 s%d, s%d, %d" % (sU + 13, sU + 12, 14 * 1024), "s_lshl_b32 s%d, s%d, 12" % (sU + 12, sU + 12)],
              "v_min_u32 v%d, 13, v%d" % (va, vLANE), "v_lshl_add_u32 v%d, v%d, 10, s%d" % (va, va, sU + 13),
              "v_and_b32 v%d, 3, v%d" % (vb, vLANE), "v_lshl_add_u32 v%d, v%d, 10, s%d" % (vb, vb, sU + 12),
              ["s_and_b32 s%d, s%d, %d" % (sU + 12, sXCD, 1 if OPT['map2'] else 0), "s_lshl_b32 s%d, s%d, 29" % (sU + 12, sU + 12)],
              "buffer_load_dword v%d, v%d, %s, s%d offen offset:384" % (va, va, s4(sWD), sU + 12),
              "buffer_load_dword v%d, v%d, %s, s%d offen offset:384" % (vb, vb, s4(sWO), sU + 12)]
    elif mode:
        L += [["s_lshl_b32 s%d, s2, 2" % (sU + 12), "s_add_u32 s%d, s%d, s%d" % (sU + 12, sU + 12, sWV)],
              ["s_mul_i32 s%d, s%d, %d" % (sU + 13, sU + 12, 14 * 128), "s_lshl_b32 s%d, s%d, 9" % (sU + 12, sU + 12)],
              "v_min_u32 v%d, 13, v%d" % (va, vLANE), "v_lshl_add_u32 v%d, v%d, 7, s%d" % (va, va, sU + 13),
              "v_and_b32 v%d, 3, v%d" % (vb, vLANE), "v_lshl_add_u32 v%d, v%d, 7, s%d" % (vb, vb, sU + 12),
              "buffer_load_dword v%d, v%d, %s, 0 offen" % (va, va, s4(sWD)),
              "buffer_load_dword v%d, v%d, %s, 0 offen" % (vb, vb, s4(sWO))]
    return L


def warmt(va, vb):
    L = []
    if OPT['warmt'] == 2:
        L += [["s_lshl_b32 s%d, s%d, 16" % (sU + 14, sMT), "s_lshl_b32 s%d, s%d, 7" % (sU + 15, sNT)], "s_add_u32 s%d, s%d, s%d" % (sU + 14, sU + 14, sU + 15),
              "v_lshl_add_u32 v%d, v%d, 10, s%d" % (vb, vLANE, sU + 14),
              "buffer_load_dword v%d, v%d, %s, 0 offen" % (vb, vb, s4(sO))]
    elif OPT['warmt']:
        L += ["v_and_b32 v%d, 7, v%d" % (va, vLANE), "v_lshlrev_b32 v%d, 21, v%d" % (va, va),
              "v_and_b32 v%d, 1, v%d" % (vb, vLANE), "v_lshlrev_b32 v%d, 20, v%d" % (vb, vb),
              "buffer_load_dword v%d, v%d, %s, 0 offen" % (va, va, s4(sA)),
              "buffer_load_dword v%d, v%d, %s, 0 offen" % (vb, vb, s4(sO))]
    return L


def vtouch(va, vb):
    if OPT['tlb'] != 4:
        return []
    return ["v_and_b32 v%d, 7, v%d" % (va, vLANE), "v_lshlrev_b32 v%d, 21, v%d" % (va, va), "v_mov_b32 v%d, 0" % vb,
            "buffer_load_dword v%d, v%d, %s, 0 offen" % (va, va, s4(sA)),
            "buffer_load_dword v%d, v%d, %s, 0 offen sc1" % (va, vb, s4(sD)),
            "buffer_load_dword v%d, v%d, %s, 0 offen" % (va, vb, s4(sO))]


def store_offsets(specs):
    L = []
    for b, (base_sreg, add) in enumerate(specs):
        L += [["s_add_u32 s%d, s%d, %d" % (sU, base_sreg, add), "s_lshr_b32 s%d, s%d, 2" % (sU + 1, sU)],
              ["s_mul_i32 s%d, s%d, %d" % (sST + b, sU + 1, MT_STRIDE), "s_and_b32 s%d, s%d, 1" % (sU + 1, sU)],
              ["s_mul_i32 s%d, s%d, %d" % (sU + 1, sU + 1, CLS), "s_add_u32 s%d, s%d, s%d" % (sST + b, sST + b, sU + 1)],
              ["s_and_b32 s%d, s%d, 2" % (sU, sU), "s_lshl_b32 s%d, s%d, 9" % (sU, sU)],
              "s_add_u32 s%d, s%d, s%d" % (sST + b, sST + b, sU)]
    return L


vFO, vSH, vTO, vTG = 2, 3, 4, 6


def flag_setup():
    t = 8
    L = [["s_mul_i32 s%d, s%d, 43" % (sU, sMT), "s_lshr_b32 s%d, s%d, 7" % (sU, sU)],
         ["s_lshl_b32 s%d, s%d, 3" % (sU, sU), "s_mul_i32 s%d, s%d, %d" % (sU + 1, sMT, 4 * 187)],
         ["s_add_u32 s%d, s%d, %d" % (sU + 2, sU + 1, 3 * 187), "s_lshr_b32 s%d, s%d, 11" % (sU + 1, sU + 1)],
         ["s_lshr_b32 s%d, s%d, 11" % (sU + 2, sU + 2), "s_mul_i32 s%d, s%d, 14" % (sU + 1, sU + 1)],
         ["s_mul_i32 s%d, s%d, 14" % (sU + 2, sU + 2), "s_add_u32 s%d, s%d, 88" % (sU + 1, sU + 1)],
         "s_add_u32 s%d, s%d, 88" % (sU + 2, sU + 2),
         "v_and_b32 v%d, 15, v%d" % (t, vLANE), "v_min_u32 v%d, 13, v%d" % (t, t),
         "v_and_b32 v%d, 7, v%d" % (t + 1, vLANE), "v_add_u32 v%d, s%d, v%d" % (t + 1, sU, t + 1),
         "v_add_u32 v%d, s%d, v%d" % (t + 2, sU + 1, t), "v_add_u32 v%d, s%d, v%d" % (t + 3, sU + 2, t),
         "v_cmp_gt_u32 vcc, 16, v%d" % vLANE, "v_mov_b32 v%d, s%d" % (t, sPID),
         "v_cndmask_b32 v%d, v%d, v%d, vcc" % (t + 1, t + 2, t + 1),
         "v_cmp_gt_u32 vcc, 48, v%d" % vLANE,
         "v_cndmask_b32 v%d, v%d, v%d, vcc" % (t, t, t + 3),
         "v_cmp_gt_u32 vcc, 32, v%d" % vLANE,
         "v_cndmask_b32 v%d, v%d, v%d, vcc" % (t, t, t + 1),
         "v_lshlrev_b32 v%d, 7, v%d" % (vFO, t), "v_and_b32 v%d, 31, v%d" % (vSH, t),
         "v_lshrrev_b32 v%d, 5, v%d" % (t, t), "v_lshlrev_b32 v%d, 3, v%d" % (vTO, t)]
    return L


def tag_load():
    return "buffer_load_dwordx2 %s, v%d, %s, 0 offen sc1" % (v2(vTG), vTO, s4(sD))


class W2:
    AW2 = 128

    def __init__(self, sched, vW2):
        self.sched, self.vW2 = sched, vW2
        regs = list(range(32, 44))
        self.pat = regs[:4]
        self.lb = LdsBases(regs[4:], chunk=0x10000)
        for t in range(4):
            for ch in (1, 2):
                self.lb.addr(regs[t], ch * 0x10000)
        self.own = set(range(20))
        self.region = {}
        self.itime = {}
        self.nread = 0
        self.inflight_reads = []
        self.enabled = False
        self.eng = None
        for n in range(36):
            kb = n >> 1
            isO = kb < 4
            sr = sWO if isO else sWD
            sS = sW2o if isO else sS2
            for i in range(2):
                pre = []
                if i == 0 and n not in (0, 8):
                    if n == 4:
                        pre = ["s_xor_b32 s%d, s%d, 0x1c000" % (sS, sS)]
                    else:
                        pre = ["s_add_u32 s%d, s%d, 16384" % (sS, sS)]
                        if n % 4 == 0 and not isO:
                            pre += ["s_cmp_eq_u32 s%d, s%d" % (sS2, sW2e), "s_cselect_b32 s%d, s%d, s%d" % (sS2, sW2h, sS2)]
                sched.add(Dma('w2', ('w2', n), None, pre,
                              "buffer_load_dwordx4 v%d, %s, s%d offen offset:%d lds" % (vW2[i], s4(sr), sS, 1024 * i), 1000 + n, self.ok))

    def ok(self, d, commit):
        n = d.tag[1]
        if n not in self.region:
            if not self.enabled:
                return False
            c = [r for r in sorted(self.own) if self.eng.range_free(8192 * r, 8192 * r + 8192)]
            if not c:
                return False
            if commit:
                self.region[n] = c[0]
                self.own.discard(c[0])
        if commit:
            d.m0 = (sM2, 8192 * self.region[n])
        return True

    def mark_issue(self, n, now):
        self.itime.setdefault(n, []).append(now)

    def ready(self, now, cnt, lag=None):
        if lag is None:
            lag = OPT['lagf'] if any(t and t[0] in ('stA', 'stB') for t in self.eng.E.vm) else OPT['w2lag']
        out = []
        n = self.nread
        while len(out) < cnt and n < 16 and len(self.itime.get(n, [])) == 2 and self.itime[n][1] <= now - lag:
            out.append(n)
            n += 1
        return out

    def read_instrs(self, ns):
        out = []
        for n in ns:
            out += [(x, ('w2r', n)) for x in self.reads(n, lambda t: a2(self.AW2 + 16 * (n >> 1) + 4 * t + 2 * (n & 1)))]
            self.inflight_reads.append(n)
            self.nread = n + 1
        return out

    def recycle(self):
        for n in self.inflight_reads:
            self.own.add(self.region[n])
        self.inflight_reads = []

    def setup_dma(self):
        a, b = self.vW2
        return ["v_lshrrev_b32 v%d, 4, v%d" % (a, vLANE), "v_lshlrev_b32 v%d, 1, v%d" % (a, a),
                "v_and_b32 v%d, 7, v%d" % (b, vLANE), "v_xor_b32 v%d, v%d, v%d" % (a, a, b), "v_lshlrev_b32 v%d, 4, v%d" % (a, a),
                "v_lshrrev_b32 v%d, 3, v%d" % (b, vLANE), "v_lshl_add_u32 v%d, v%d, 10, v%d" % (a, b, a),
                ["s_lshl_b32 s%d, s%d, 7" % (sU, sNT), "v_add_u32 v%d, s%d, v%d" % (a, sU, a)],
                "v_add_u32 v%d, 7168, v%d" % (b, a)]

    def setup_rd(self):
        p = self.pat
        L = ["v_lshrrev_b32 v%d, 2, v%d" % (p[1], vLANE), "v_lshrrev_b32 v%d, 3, v%d" % (p[2], vLANE),
             "v_and_b32 v%d, 3, v%d" % (p[2], p[2]), "v_lshlrev_b32 v%d, 5, v%d" % (p[2], p[2]),
             "v_lshl_add_u32 v%d, v%d, 7, v%d" % (p[1], p[1], p[2]), "v_and_b32 v%d, 3, v%d" % (p[2], vLANE),
             "v_lshl_add_u32 v%d, v%d, 3, v%d" % (p[1], p[2], p[1]), "v_add_u32 v%d, s%d, v%d" % (p[0], sM2, p[1])]
        L += ["v_xor_b32 v%d, %d, v%d" % (p[t], 32 * t, p[0]) for t in range(1, 4)]
        return L + self.lb.setup

    def reads(self, n, dstf):
        out = []
        for t in range(4):
            r, o = self.lb.addr(self.pat[t], 8192 * self.region[n])
            out.append("ds_read_b64_tr_b16 %s, v%d offset:%d" % (dstf(t), r, o))
        return out

    def flush(self, E, keep):
        while True:
            if self.inflight_reads:
                E.wait(None, E.lg_need(lambda t: t[0] == 'w2r'))
                self.recycle()
            seq = self.sched.take(max(self.sched.pending() - keep, 0))
            for x in seq:
                E(x)
                if x[1] is not None:
                    self.mark_issue(x[1][1], E.now)
            ns = self.ready(E.now, 16, lag=0)
            if ns:
                E.wait(E.vm_need(lambda t: t[0] == 'w2' and t[1] <= ns[-1]), None)
                E(self.read_instrs(ns))
            if not seq and not ns:
                break
        assert self.nread == 16 and self.sched.pending() <= keep, (self.nread, self.sched.pending())


class Phase1:
    def __init__(self, typ, xslot, wbase, wslot, nws, wpitch, nwd, units, vW2):
        self.typ = typ
        CUR[0] = typ
        self.E = Emit()
        self.sched = Sched()
        self.w2 = W2(self.sched, vW2)
        vis = {('x', s): 2 * s - 1 for s in range(7)}
        vis.update({('w', t): t - 1 for t in range(13)})
        vis.update({('w', 13): OPT['v13'], ('w', 14): OPT['v14'], ('w', 15): 12, ('x', 7): OPT['v14'], ('gw', 0): -1})
        if OPT['fsplit']:
            vis.update({('w', 13): 12, ('w', 14): 13, ('w', 15): 14, ('x', 7): 13})
        for t in range(16):
            units[('w', t)] = (wbase + (t % nws) * wslot, wbase + (t % nws + 1) * wslot)
        self.eng = Engine(self.E, self.sched, self.w2, vis, units, age=OPT['age'], verbose=typ if OPT['verbose'] else None)
        self.w2.eng = self.eng
        nxd = 7 if typ == 'Q' else 6
        for s in range(8):
            slot = (s % NXS) * xslot
            for d in range(nxd):
                m0 = (sMX, slot) if d < 4 else (sMX, slot + 4096) if d < 6 else (sM7, slot + 24576)
                imm = 1024 * (d & 3) if d < 6 else 0
                pre = stage_pre(s, sKX, 128) if d == 0 else []
                ok = None if s < NXS else (lambda dd, c, s=s: self.eng.released(('x', s - NXS)))
                self.sched.add(Dma('x', ('x', s), m0, pre,
                                   "buffer_load_dwordx4 v%d, %s, s%d offen offset:%d lds" % (vXD + d, s4(sX), sKX, imm), vis[('x', s)] + 0.5, ok))
        for t in range(16):
            slot = wbase + (t % nws) * wslot
            for e in range(nwd):
                pre = []
                if e == 0:
                    pre = stage_pre(t >> 1, sKW, 64 * wpitch) if t % 2 == 0 else ["s_add_u32 s%d, s%d, %d" % (sKW, sKW, 32 * wpitch)]
                ok = None if t < nws else (lambda dd, c, t=t: self.eng.released(('w', t - nws)))
                self.sched.add(Dma('w', ('w', t), (sMW, slot), pre,
                                   "buffer_load_dwordx4 v%d, %s, s%d offen offset:%d lds" % (vWD + e, s4(sW), sKW, 1024 * e), vis[('w', t)] + 1, ok))

    def run(self, PF, segs, stamps):
        E, eng = self.E, self.eng
        eng.plan(segs)
        E(PF.stamp())
        eng.barrier(-1)
        while eng.next_read():
            pass
        for si, sg in enumerate(segs):
            if si in stamps:
                E(PF.stamp())
            elif OPT['sall'] and si > 12:
                E(["%s s[100:101]" % ("s_memtime" if OPT['prof'] == 1 else "s_memrealtime"), "s_waitcnt lgkmcnt(0)", "v_writelane_b32 v%d, s100, %d" % (PF.v, 16 + si - 13)])
            self.w2.enabled = si >= OPT['w2t']
            if sg.get('need_dma_done'):
                assert not self.sched.pending('x') and not self.sched.pending('w')
            sg.setdefault('w2key', si + OPT['w2prio'] + 0.25)
            eng.run_seg(si, sg)


def U(L):
    return [(x, 'untracked') for x in L]


def flag_store(val_reg, lab):
    return U(["s_cmp_lg_u32 s%d, 0" % sWV, "s_cbranch_scc1 %s" % lab,
              "s_mov_b32 exec_lo, 0", "s_brev_b32 exec_hi, 1",
              "buffer_store_dword v%d, v%d, %s, 0 offen sc1" % (val_reg, vFO, s4(sF)),
              "s_mov_b64 exec, -1", "%s:" % lab])


def tag_check(lab):
    return U(["s_mov_b32 s%d, 0" % sU,
              "%s_tag:" % lab,
              "v_cmp_eq_u32 vcc, 0, v%d" % (vTG + 1),
              "s_cmp_eq_u64 vcc, 0", "s_cbranch_scc1 %s_tagok" % lab,
              tag_load(), "s_add_u32 s%d, s%d, 1" % (sU, sU), "s_waitcnt vmcnt(0)",
              "s_cmp_lt_u32 s%d, 0x8000" % sU, "s_cbranch_scc1 %s_tag" % lab,
              "%s_tagok:" % lab,
              "v_lshrrev_b32 v%d, v%d, v%d" % (vTG, vSH, vTG), "v_and_b32 v%d, 1, v%d" % (vTG, vTG),
              "v_or_b32 v%d, 2, v%d" % (vTG + 1, vTG)])


def pub_seg(sg, PF, lab):
    sg['barrier'] = True
    sg['extra_vm'] = lambda t: t[0] in ('stA', 'tag')
    sg['pre'] = tag_check(lab)
    sg['post'] = flag_store(vTG, lab + "_fa") + PF.xstamp(40)


def pub_inline(E, PF, lab):
    E.wait(E.vm_need(lambda t: t[0] in ('stA', 'tag')), None)
    E(tag_check(lab))
    E("s_barrier")
    E(flag_store(vTG, lab + "_fa") + PF.xstamp(40))


def poll_check(vP, mask, want, lab):
    return U(["s_mov_b32 s%d, 0" % sU,
              "%s:" % lab,
              "v_and_b32 v%d, %d, v%d" % (vP, mask, vP),
              "v_cmp_ne_u32 vcc, v%d, v%d" % (want, vP),
              "s_cmp_eq_u64 vcc, 0", "s_cbranch_scc1 %s_ok" % lab,
              "buffer_load_dword v%d, v%d, %s, 0 offen sc1" % (vP, vFO, s4(sF)),
              "s_add_u32 s%d, s%d, 1" % (sU, sU),
              "s_waitcnt vmcnt(0)",
              "s_cmp_lt_u32 s%d, 0x8000" % sU, "s_cbranch_scc1 %s" % lab,
              "%s_ok:" % lab])


def pick_regions(cands):
    c = sorted(cands)
    for i in range(len(c) - 3):
        if c[i + 3] - c[i] <= 7:
            return c[i:i + 4]
    raise AssertionError(cands)


vAD, vOUT, vP, vXR, vG, vXW, vT = 13, 15, 16, 18, 20, 44, 52
POLL = "buffer_load_dword v%d, v%d, %s, 0 offen sc1" % (vP, vFO, s4(sF))


def phase2(P1, PF, lab):
    E, w2 = P1.E, P1.w2
    AC = {(0, 'o'): 64, (0, 'h'): 96, (1, 'o'): 128, (1, 'h'): 160}
    VWF = 192
    sSA0 = sS3
    w2.flush(E, 0)
    R1 = pick_regions([w2.region[n] for n in range(16, 24)])
    R2 = pick_regions([r for r in range(20) if r not in R1])
    E(["v_lshlrev_b32 v%d, 4, v%d" % (vAD, vLANE), "s_mov_b32 s%d, s%d" % (sSA0, sSA), "s_mov_b32 s%d, s%d" % (sSA, sAo)])
    E.wait(E.vm_need(lambda t: t[0] == 'pa'), None)
    E(PF.stamp())
    E(poll_check(vP, 1, vTG, lab + "_pa"))
    E(PF.stamp())
    LA, NAB = OPT['la'], 7

    def issue(st):
        p, u = divmod(st, 9)
        out = []
        for i in range(4):
            gq = [("buffer_load_dwordx4 %s, v%d, %s, s%d offen offset:%d sc1" % (a4(16 * (st % NAB) + 4 * i), vAD + p, s4(sA), sSA, 1024 * i), ('a', st))]
            if i == 3 and st < 17:
                if u == 8:
                    gq += ["s_mov_b32 s%d, s%d" % (sSA, sAo)]
                elif u == 0:
                    gq += ["s_xor_b32 s%d, s%d, 0x1000" % (sSA, sAo)]
                elif u == 1:
                    gq += ["s_mov_b32 s%d, s%d" % (sSA, sSA0)]
                else:
                    gq += ["s_add_u32 s%d, s%d, 4096" % (sSA, sSA),
                           "s_cmp_eq_u32 s%d, s%d" % (sSA, sAe), "s_cselect_b32 s%d, s%d, s%d" % (sSA, sAh, sSA)]
            out.append(gq)
        return out
    nxt = 0
    for st in range(OPT['la0']):
        E(issue(st))
        nxt += 1
    L = []
    m, g = vT, vT + 1
    L += ["v_and_b32 v%d, 15, v%d" % (m, vLANE), "v_lshrrev_b32 v%d, 4, v%d" % (g, vLANE),
          "s_lshl_b32 s%d, s%d, 8" % (sU, sMT), "v_lshl_add_u32 v%d, v%d, 2, s%d" % (vG + 4, m, sU),
          "v_add_u32 v%d, %d, v%d" % (vAD + 1, CLS, vAD)]
    L += srd(sG, pWS, 8192, add=G_OFF)
    L += [("buffer_load_dword v%d, v%d, %s, 0 offen offset:%d sc1" % (vG + r, vG + 4, s4(sG), 64 * r), ('g', 0)) for r in range(4)]
    L += ["v_and_b32 v%d, 2, v%d" % (vT + 2, g), "v_xor_b32 v%d, v%d, v%d" % (vT + 2, vT + 2, m),
          "v_lshl_add_u32 v%d, v%d, 4, v%d" % (vT + 2, g, vT + 2), "v_lshl_add_u32 v%d, v%d, 4, s%d" % (vT + 2, vT + 2, sM2)]
    for t in range(4):
        L += ["v_xor_b32 v%d, %d, v%d" % (vT + 3, 64 * t, vT + 2)]
        for e, R in enumerate((R1, R2)):
            L += ["v_add_u32 v%d, %d, v%d" % (vXW + 4 * e + t, 8192 * R[t >> 1] + 1024 * (t & 1), vT + 3)]
    c, mm = vT, vT + 1
    L += ["v_and_b32 v%d, 7, v%d" % (c, vLANE), "v_lshrrev_b32 v%d, 3, v%d" % (mm, vLANE),
          "s_and_b32 s%d, s%d, 1" % (sU, sWV), "s_lshl_b32 s%d, s%d, 3" % (sU, sU), "v_add_u32 v%d, s%d, v%d" % (mm, sU, mm),
          "s_lshl_b32 s%d, s%d, 1" % (sU + 1, sMT), "s_lshr_b32 s%d, s%d, 1" % (sU + 2, sWV), "s_add_u32 s%d, s%d, s%d" % (sU + 1, sU + 1, sU + 2),
          "s_lshl_b32 s%d, s%d, 15" % (sU + 1, sU + 1), "s_lshl_b32 s%d, s%d, 7" % (sU + 3, sNT), "s_add_u32 s%d, s%d, s%d" % (sU + 1, sU + 1, sU + 3),
          "v_lshl_add_u32 v%d, v%d, 4, s%d" % (vOUT, c, sU + 1), "v_lshl_add_u32 v%d, v%d, 11, v%d" % (vOUT, mm, vOUT),
          "v_lshlrev_b32 v%d, 1, v%d" % (vT + 2, c), "v_xor_b32 v%d, v%d, v%d" % (mm, mm, vT + 2), "v_lshlrev_b32 v%d, 4, v%d" % (mm, mm),
          "v_and_b32 v%d, 3, v%d" % (vT + 2, c), "v_lshl_add_u32 v%d, v%d, 9, v%d" % (mm, vT + 2, mm),
          "v_lshrrev_b32 v%d, 2, v%d" % (c, c)]
    for e, R in enumerate((R1, R2)):
        L += ["s_cmp_eq_u32 s%d, 0" % (sU + 2),
              "s_mov_b32 s%d, %d" % (sU + 4, 8192 * R[2]), "s_cselect_b32 s%d, %d, s%d" % (sU + 4, 8192 * R[0], sU + 4),
              "s_mov_b32 s%d, %d" % (sU + 5, 8192 * (R[3] - R[2])), "s_cselect_b32 s%d, %d, s%d" % (sU + 5, 8192 * (R[1] - R[0]), sU + 5),
              "v_mad_u32_u24 v%d, v%d, s%d, v%d" % (vXR + e, c, sU + 5, mm), "v_add_u32 v%d, s%d, v%d" % (vXR + e, sU + 4, vXR + e)]
    E(L)
    E.wait(E.vm_need(lambda t: t[0] in ('stA', 'stB')), None)
    E("s_barrier")
    E(flag_store(vTG + 1, lab + "_fb"))

    def wfrag(kb, t):
        return a4(W2.AW2 + 16 * kb + 4 * t) if kb < 8 else v4(VWF + 16 * (kb & 3) + 4 * t)

    def xw(e, q, t, src):
        R = (R1, R2)[e]
        return "ds_write_b128 v%d, %s offset:%d" % (vXW + 4 * e + t, v4(src), 8192 * (R[2 + (t >> 1)] - R[t >> 1]) * q)

    def xr(e, dst):
        return ["ds_read_b128 %s, v%d offset:%d" % (v4(dst + 8 * w + 4 * h), vXR + e, 2048 * w + 256 * h) for w in range(4) for h in range(2)]

    def fin(p, dst):
        return ["v_cvt_pk_bf16_f32 v%d, v%d, v%d" % (dst + i, dst + 2 * i, dst + 2 * i + 1) for i in range(4)] + \
               ["buffer_store_dwordx4 %s, v%d, %s, 0 offen offset:%d%s" % (v4(dst), vOUT, s4(sO), 1024 * p, ["", " sc1", " nt", " sc0 sc1"][OPT['outsc']])]
    pollst = OPT['pollst']
    chk = 9 - LA
    assert pollst < chk
    O0, H0, O1, H1 = AC[(0, 'o')], AC[(0, 'h')], AC[(1, 'o')], AC[(1, 'h')]
    ex = {}
    mul0 = ["v_mul_f32 v%d, v%d, v%d" % (O0 + i, O0 + i, vG + 2 * (i >> 4)) for i in range(32)]
    fma0 = ["v_fma_f32 v%d, v%d, v%d, v%d" % (H0 + i, H0 + i, vG + 4 + 2 * (i >> 4), O0 + i) for i in range(32)]
    mul1 = ["v_mul_f32 v%d, v%d, v%d" % (O1 + i, O1 + i, vG + 1 + 2 * (i >> 4)) for i in range(32)]
    ex[2] = mul0[:18]
    ex[8] = mul0[18:] + ["v_sub_f32 v%d, 1.0, v%d" % (vG + 4 + r, vG + r) for r in range(4)]
    ex[9] = fma0[:14]
    ex[10] = fma0[14:]
    ex[11] = mul1[:18]
    ex[12] = mul1[18:22]
    ex[13] = mul1[22:26]
    ex[15] = [xw(0, q, t, H0 + 16 * q + 4 * t) for q in range(2) for t in range(4)]
    ex[16] = xr(0, O0)
    add0 = ["v_add_f32 v%d, v%d, v%d" % (O0 + i, O0 + i, O0 + 8 + i) for i in range(8)] + \
           ["v_add_f32 v%d, v%d, v%d" % (O0 + 16 + i, O0 + 16 + i, O0 + 24 + i) for i in range(8)] + \
           ["v_add_f32 v%d, v%d, v%d" % (O0 + i, O0 + i, O0 + 16 + i) for i in range(8)]
    ex[16] += mul1[26:]
    ex[17] = add0 + fin(0, O0)
    for st in range(18):
        p, u = divmod(st, 9)
        E.wait(E.vm_need(lambda g_: (g_[0] == 'a' and g_[1] <= st) or (st == chk and g_[0] == 'pb') or (st == 2 and g_[0] == 'g')),
               E.lg_need(lambda t_: t_ == ('f', st, 0) or (st == 16 and t_[0] == 'xw') or (st == 17 and t_[0] == 'xr')))
        if st == 16:
            E("s_barrier")
        if st == chk:
            E(poll_check(vP, 3, vTG + 1, lab + "_pb"))
        if st in (0, 9):
            E(PF.stamp())
        rd = []
        if 4 <= u + 1 < 9:
            for k, kb in enumerate((2 * u + 2, 2 * u + 3)):
                for h in range(2):
                    rd += [(x, ('f', st + 1, k)) for x in w2.reads(2 * kb + h, lambda t: v2(VWF + 16 * (kb & 3) + 4 * t + 2 * h))]
        dm = []
        for _ in range(2):
            if nxt < 18 and nxt <= st + LA:
                dm += issue(nxt)
                nxt += 1
        if st == pollst:
            dm += [[(POLL, ('pb', 0))]]
        acc = AC[(p, 'o' if u < 2 else 'h')]
        mf = []
        order = [(q, t, k) for k in range(2) for q in range(2) for t in range(4)] if u >= 4 else \
                [(q, t, k) for q in range(2) for t in range(4) for k in range(2)]
        for q, t, k in order:
            d = v4(acc + 16 * q + 4 * t)
            mf.append("v_mfma_f32_16x16x32_bf16 %s, %s, %s, %s" % (d, wfrag(2 * u + k, t), a4(16 * (st % NAB) + 8 * k + 4 * q),
                                                                "0" if (u in (0, 2) and k == 0) else d))
        gaps = [[] for _ in mf]
        load = [0] * 16
        load[15] += 4
        if u >= 4:
            load[7] += 4
        sal = []
        vpos = []
        for i, gg in enumerate(dm):
            pos = min(i * OPT['ldsp'], 14) if len(dm) <= 5 else min(i * 2, 15)
            gaps[pos] += sal + [gg[0]]
            load[pos] += 8 + 4 * len(sal)
            sal = []
            if len(gg) > 1:
                rest = gg[1:]
                nx = min(pos + 1, 15)
                gaps[nx] += rest[:1]
                load[nx] += 4
                if len(rest) > 1:
                    nx = min(pos + (2 if len(dm) <= 5 and OPT['ldsp'] > 2 else 1), 15)
                    gaps[nx] += rest[1:]
                    load[nx] += 8

        def put(items, lo, hi):
            g = lo
            m = len(items)
            for i, it in enumerate(items):
                c = 8 if it[0].startswith(("ds_write", "buffer_")) else 4
                room = sum(max(0, 8 - load[z]) for z in range(g, hi))
                cap = 8
                while room < 4 * (m - i):
                    cap += 4
                    room = sum(max(0, cap - load[z]) for z in range(g, hi))
                while g < hi - 1 and load[g] + c > max(cap, c):
                    g += 1
                gaps[g].append(it)
                load[g] += c
        e = ex.get(st, [])
        dsx = [(x, ('xw',) if x.startswith("ds_write") else ('xr',)) for x in e if x.startswith("ds_")]
        put(rd[:8] + dsx + rd[8:], 0, 16)
        put([(x, None) for x in e if not x.startswith("ds_")], 3 if st in (2, 9, 11) else 0, 16)
        for i, (m_, gg) in enumerate(zip(mf, gaps)):
            if i == 8 and u >= 4:
                E.wait(None, E.lg_need(lambda t_: t_ == ('f', st, 1)))
            E(m_)
            E(gg)
    L = PF.stamp()
    for q in range(2):
        for i in range(0, 16, 2):
            L += ["v_pk_fma_f32 %s, %s, %s, %s op_sel:[0,1,0] op_sel_hi:[1,1,1]" % (v2(H1 + 16 * q + i), v2(H1 + 16 * q + i), v2(vG + 4 + 2 * q), v2(O1 + 16 * q + i))]
            if i % 4 == 2:
                L += [xw(1, q, i >> 2, H1 + 16 * q + (i & ~3))]
    L += ["s_waitcnt lgkmcnt(0)", "s_barrier"] + xr(1, O1)
    L += ["s_waitcnt lgkmcnt(4)"]
    L += ["v_pk_add_f32 %s, %s, %s" % (v2(O1 + i), v2(O1 + i), v2(O1 + 8 + i)) for i in range(0, 8, 2)]
    L += ["s_waitcnt lgkmcnt(0)"]
    L += ["v_pk_add_f32 %s, %s, %s" % (v2(O1 + 16 + i), v2(O1 + 16 + i), v2(O1 + 24 + i)) for i in range(0, 8, 2)]
    L += ["v_pk_add_f32 %s, %s, %s" % (v2(O1 + i), v2(O1 + i), v2(O1 + 16 + i)) for i in range(0, 8, 2)]
    L += fin(1, O1)
    L += PF.stamp() + PF.dump() + ["s_endpgm"]
    E(L)


def gen_H():
    PF = Prof(31)
    L = PF.stamp()
    L += ["s_mul_i32 s%d, s%d, 21" % (sT, sXCD), "s_add_u32 s%d, s%d, s%d" % (sT, sT, sIDX), "s_sub_u32 s%d, s%d, 11" % (sT, sT),
          "s_mul_i32 s%d, s%d, 171" % (sCG, sT), "s_lshr_b32 s%d, s%d, 11" % (sCG, sCG),
          "s_mul_i32 s%d, s%d, 12" % (sT + 1, sCG), "s_sub_u32 s%d, s%d, s%d" % (sT, sT, sT + 1),
          "s_mul_i32 s%d, s%d, 11" % (sRB0, sT),
          "s_mul_i32 s%d, s%d, 14" % (sPID, sT), "s_add_u32 s%d, s%d, s%d" % (sPID, sPID, sCG), "s_add_u32 s%d, s%d, 88" % (sPID, sPID),
          "s_mul_i32 s%d, s%d, %d" % (sROT, sCG, OPT['rotb']), "s_add_u32 s%d, s%d, s%d" % (sROT, sT, sROT)]
    L += rot_fix('H')
    x_setup(L, 'H')
    L += ["v_and_b32 v38, 1, v33", "v_lshlrev_b32 v38, 1, v38", "v_xor_b32 v38, v34, v38", "v_lshlrev_b32 v38, 4, v38",
          "s_movk_i32 s%d, 3584" % sT, "v_mad_u32_u24 v38, v32, s%d, v38" % sT, "v_xor_b32 v39, 64, v38",
          "s_and_b32 s%d, s%d, 1" % (sT, sWV), "s_lshl_b32 s%d, s%d, 7" % (sT, sT),
          "s_lshl_b32 s%d, s%d, 8" % (sT + 1, sCG), "s_add_u32 s%d, s%d, s%d" % (sT, sT, sT + 1)]
    for e in range(4):
        L += ["s_add_u32 s%d, s%d, %d" % (sT + 1, sT, e * (8 * 3584 - 1024)), "v_add_u32 v%d, s%d, v%d" % (vWD + e, sT + 1, 38 + (e & 1))]
    L += ["s_mul_i32 s%d, s%d, 6144" % (sMX, sWV), "s_lshl_b32 s%d, s%d, 12" % (sMW, sWV)]
    L += ["s_waitcnt lgkmcnt(0)"] + PF.xstamp(50)
    L += srd(sX, pX, 2048 * 1024, bias=4096)
    L += ["s_cmp_lt_u32 s%d, 2" % sWV, "s_cselect_b32 s%d, s%d, s%d" % (sW, pWG, pWU), "s_cselect_b32 s%d, s%d, s%d" % (sW + 1, pWG + 1, pWU + 1),
          "s_mov_b32 s%d, %d" % (sW + 2, 512 * 3584), "s_mov_b32 s%d, 0x20000" % (sW + 3)]
    XS, WB, WS, NWS = 24576, 24576 * NXS, 16384, OPT['nwsH']
    units = {}
    for st in range(8):
        lo = (st % NXS) * XS
        if st < 6:
            units[('x', st)] = (lo, lo + XS)
        else:
            for k in range(3):
                units[('x', st, k)] = (lo + 8192 * k, lo + 8192 * k + 8192)
    P1 = Phase1('H', XS, WB, WS, NWS, 3584, 4, units, (62, 0))
    E = P1.E
    lb = LdsBases(range(vRD + 4, 31))
    vx0, vx1, vw0, vw1 = vRD, vRD + 1, vRD + 2, vRD + 3
    S2 = ["v_and_b32 v40, 15, v%d" % vLANE, "v_lshrrev_b32 v41, 1, v40", "v_xor_b32 v41, v41, v33",
          "v_lshlrev_b32 v41, 4, v41", "v_lshl_add_u32 v%d, v40, 7, v41" % vx0, "v_xor_b32 v%d, 64, v%d" % (vx1, vx0)]
    S2 += ["v_lshrrev_b32 v42, 2, v40", "v_lshl_add_u32 v43, v33, 3, v42",
           "v_lshrrev_b32 v44, 1, v42", "v_and_b32 v45, 1, v33", "v_lshl_add_u32 v44, v45, 1, v44",
           "s_and_b32 s%d, s%d, 1" % (sT, sWV), "s_lshl_b32 s%d, s%d, 1" % (sT, sT), "v_xor_b32 v44, s%d, v44" % sT,
           "v_lshlrev_b32 v44, 5, v44", "v_lshl_add_u32 v43, v43, 7, v44",
           "v_and_b32 v45, 3, v%d" % vLANE, "v_lshl_add_u32 v43, v45, 3, v43",
           "s_lshr_b32 s%d, s%d, 1" % (sT, sWV), "s_lshl_b32 s%d, s%d, 12" % (sT, sT),
           "v_add_u32 v%d, s%d, v43" % (vw0, sT), "v_xor_b32 v%d, 32, v%d" % (vw1, vw0)]
    ops = {}

    def X(t, b):
        if ('x', t, b) not in ops:
            r, o = lb.addr(vx1 if (t & 1) else vx0, ((t >> 1) % NXS) * XS + 2048 * b)
            st = t >> 1
            ops[('x', t, b)] = Operand(('x', t, b), lambda q: ["ds_read_b128 %s, v%d offset:%d" % (a4(q), r, o)], ('x', st),
                                       ('x', st) if st < 6 else ('x', st, b >> 2))
        return ops[('x', t, b)]

    def W(t, q):
        if ('w', t, q) not in ops:
            ad = [lb.addr(vw1 if (q & 1) else vw0, WB + (t % NWS) * WS + (8192 if q >= 2 else 0) + 512 * h) for h in range(2)]
            ops[('w', t, q)] = Operand(('w', t, q), lambda qq: ["ds_read_b64_tr_b16 %s, v%d offset:%d" % (a2(qq + 2 * h), ad[h][0], ad[h][1]) for h in range(2)],
                                       ('w', t), ('w', t))
        return ops[('w', t, q)]
    D = lambda b, q: ACC + 16 * b + 4 * q
    vST = 61
    ES = ["s_mov_b32 s%d, 0x%x" % (sC0, NLOG2E), "s_mov_b32 s%d, 0x%x" % (sC0 + 1, NLOG2E),
          "s_mov_b32 s%d, 1.0" % (sC0 + 2), "s_mov_b32 s%d, 1.0" % (sC0 + 3),
          ["s_lshl_b32 s%d, s%d, 2" % (sU, sCG), "s_add_u32 s%d, s%d, s%d" % (sU, sU, sWV)],
          ["s_add_u32 s%d, s%d, 16" % (sU, sU), "s_lshl_b32 s%d, s%d, 11" % (sU, sU)],
          "v_lshlrev_b32 v%d, 4, v%d" % (vST, vLANE), "v_add_u32 v%d, s%d, v%d" % (vST, sU, vST)]
    ES += [["s_add_u32 s%d, s%d, s%d" % (sU + 2, sRB0, sPAR), "s_sub_u32 s%d, s%d, s%d" % (sU + 3, sRB0, sPAR)]]
    so = store_offsets([(sU + 2, 2 * b) for b in range(5)] + [(sRB0, 10)] + [(sU + 3, 1 + 2 * b) for b in range(5)])
    stf = ["", " sc1", " nt", " sc1 nt"][OPT['stsc']]

    def store(b):
        return ("buffer_store_dwordx4 %s, v%d, %s, s%d offen%s" % (v4(ACC + 16 * b), vST, s4(sA), sST + b, stf), ('stA' if b < 6 else 'stB', b))

    def epi(b, pk):
        G = [ACC + 16 * b + i for i in range(8)]
        Uu = [ACC + 16 * b + 8 + i for i in range(8)]
        if pk:
            T = ["v_pk_mul_f32 %s, %s, s[%d:%d]" % (v2(G[i]), v2(G[i]), sC0, sC0 + 1) for i in range(0, 8, 2)]
            T += ["v_exp_f32 v%d, v%d" % (g, g) for g in G]
            T += ["v_pk_add_f32 %s, %s, s[%d:%d]" % (v2(G[i]), v2(G[i]), sC0 + 2, sC0 + 3) for i in range(0, 8, 2)]
            T += ["v_rcp_f32 v%d, v%d" % (g, g) for g in G]
            T += ["v_pk_mul_f32 %s, %s, %s" % (v2(Uu[i]), v2(Uu[i]), v2(G[i])) for i in range(0, 8, 2)]
        else:
            T = ["v_mul_f32 v%d, s%d, v%d" % (g, sC0, g) for g in G]
            T += ["v_exp_f32 v%d, v%d" % (g, g) for g in G]
            T += ["v_add_f32 v%d, 1.0, v%d" % (g, g) for g in G]
            T += ["v_rcp_f32 v%d, v%d" % (g, g) for g in G]
            T += ["v_mul_f32 v%d, v%d, v%d" % (u, u, g) for u, g in zip(Uu, G)]
        T += ["v_cvt_pk_bf16_f32 v%d, v%d, v%d" % (G[i], Uu[2 * i], Uu[2 * i + 1]) for i in range(4)]
        return T + [store(b)]
    extra = {0: P1.w2.setup_dma(), 1: P1.w2.setup_rd(), 5: ES, 6: so[:15], 7: so[15:30], 8: so[30:45], 9: so[45:]}
    extra[OPT['wt']] = extra.get(OPT['wt'], []) + warmups(58, 59)
    extra[OPT['vt']] = extra.get(OPT['vt'], []) + vtouch(56, 57)
    segs = []
    for t in range(12):
        segs.append(dict(mf=[(D(b, q), W(t, q), X(t, b), t == 0) for b in range(11) for q in range(4)],
                         fill=extra.get(t, []), ndma=OPT['maxd'] if t >= 4 else OPT['maxd0'], nw2r=OPT['nrm']))
    F = OPT['fH']
    fs = flag_setup() + [(tag_load(), ('tag', 0))]
    if OPT['fsplit']:
        for t in range(12, 16):
            segs.append(dict(mf=[(D(b, q), W(t, q), X(t, b), False) for b in range(F) for q in range(4)],
                             fill=fs[:12] if t == 14 else fs[12:] if t == 15 else [], ndma=(OPT['maxd'] * 4 * F + 22) // 44, nw2r=1, need_dma_done=(t == 14), rdrate=2))
    else:
        segs.append(dict(mf=[(D(b, q), W(t, q), X(t, b), False) for t in range(12, 16) for b in range(F) for q in range(4)],
                         fill=fs, ndma=(OPT['maxd'] * 16 * F) // 44, nw2r=2, need_dma_done=True, rdrate=2))
    s0 = len(segs)
    queue = []
    nfused = 10
    ready = F
    taken = 0
    allq = [x for b in range(nfused) for x in epi(b, False)]
    for b in range(F, 11):
        n = min(OPT['quota'] or -(-45 * nfused // (11 - F)), 45 * min(b, nfused) - taken)
        si = len(segs)
        segs.append(dict(mf=[(D(b, q), W(t, q), X(t, b), False) for q in range(4) for t in range(12, 16)],
                         fill=allq[taken:taken + n], ndma=OPT['fdH'], nw2r=OPT['nwf'], barrier=bool((OPT['barH'] >> (si - s0)) & 1),
                         force_release=(b == 10)))
        if b == OPT['pubH']:
            assert taken >= 270
            pub_seg(segs[-1], PF, "H")
        taken += n
    segs[-1]['barrier'] = True
    if OPT['ppH']:
        f = segs[-1]['fill']
        f.insert(len(f) * (10 - OPT['ppH']) // 10, (POLL, ('pa', 0)))
    for x in P1.sched.take(10):
        E(x)
    E(PF.xstamp(51) + tlb_warm() + S2 + ["@LB"] + late_scalar_setup())
    for x in P1.sched.take(OPT['npro'] - 10):
        E(x)
    P1.run(PF, segs, (0, 4, 8, 12))
    E(PF.stamp())
    if OPT['pubH'] > 10:
        pub_inline(E, PF, "H")
    P1.w2.flush(E, OPT['keep'])
    if not OPT['ppH']:
        E(POLL, ('pa', 0))
    E(allq[taken:] + epi(10, True))
    E(PF.stamp())
    phase2(P1, PF, "H")
    i = E.L.index("@LB")
    return L + E.L[:i] + lb.setup + E.L[i + 1:]


def gen_Q():
    PF = Prof(10 if False else 31)
    L = PF.stamp()
    L += ["s_mov_b32 s%d, s%d" % (sCG, sXCD), "s_mul_i32 s%d, s%d, 12" % (sRB0, sIDX),
          "s_lshl_b32 s%d, s%d, 3" % (sPID, sIDX), "s_add_u32 s%d, s%d, s%d" % (sPID, sPID, sXCD),
          "s_add_u32 s%d, s%d, s%d" % (sROT, sIDX, sXCD), "s_add_u32 s%d, s%d, %d" % (sROT, sROT, OPT['rotq'])]
    L += rot_fix('Q')
    x_setup(L, 'Q')
    L += ["s_lshl_b32 s%d, s%d, 4" % (sT, sRB0), "s_add_u32 s%d, s%d, s%d" % (sT, sT, sWV),
          "s_sub_u32 s%d, s%d, 16" % (sT, sT), "s_lshl_b32 s%d, s%d, 10" % (sT, sT), "s_add_u32 s%d, s%d, 4096" % (sT, sT),
          "s_cmp_eq_u32 s%d, 0" % sRB0, "s_cselect_b32 s%d, 0x%x, s%d" % (sT, BIG, sT),
          "s_cmp_ge_u32 s%d, 2" % sWV, "s_cselect_b32 s%d, 0x%x, s%d" % (sT, BIG, sT),
          "s_and_b32 s%d, s%d, 1" % (sT + 1, sWV), "s_lshl_b32 s%d, s%d, 6" % (sT + 1, sT + 1),
          "v_xor_b32 v38, s%d, v36" % (sT + 1), "v_add_u32 v%d, s%d, v38" % (vXD + 6, sT)]
    L += ["v_and_b32 v38, 1, v33", "v_lshlrev_b32 v38, 1, v38", "v_xor_b32 v38, v34, v38", "v_lshlrev_b32 v38, 4, v38",
          "s_movk_i32 s%d, 3072" % sT, "v_mad_u32_u24 v38, v32, s%d, v38" % sT,
          "s_mul_i32 s%d, s%d, 3" % (sT, sWV), "s_lshl_b32 s%d, s%d, 7" % (sT + 4, sCG)]
    for e in range(3):
        L += ["s_add_u32 s%d, s%d, %d" % (sT + 1, sT, e),
              "s_and_b32 s%d, s%d, 3" % (sT + 2, sT + 1), "s_mul_i32 s%d, s%d, %d" % (sT + 2, sT + 2, 8 * 3072),
              "s_lshr_b32 s%d, s%d, 2" % (sT + 3, sT + 1), "s_lshl_b32 s%d, s%d, 10" % (sT + 3, sT + 3),
              "s_add_u32 s%d, s%d, s%d" % (sT + 2, sT + 2, sT + 3), "s_add_u32 s%d, s%d, s%d" % (sT + 2, sT + 2, sT + 4),
              "s_sub_u32 s%d, s%d, %d" % (sT + 2, sT + 2, 1024 * e),
              "s_and_b32 s%d, s%d, 1" % (sT + 1, sT + 1), "s_lshl_b32 s%d, s%d, 6" % (sT + 1, sT + 1),
              "v_xor_b32 v39, s%d, v38" % (sT + 1), "v_add_u32 v%d, s%d, v39" % (vWD + e, sT + 2)]
    L += ["s_mul_i32 s%d, s%d, 6144" % (sMX, sWV), "s_mul_i32 s%d, s%d, 3072" % (sMW, sWV), "s_lshl_b32 s%d, s%d, 10" % (sM7, sWV)]
    L += ["v_lshlrev_b32 v39, 2, v32", "s_mov_b32 s%d, 0x%x" % (sT, OPT['masks'] & 0x77777777),
          "v_lshrrev_b32 v39, v39, s%d" % sT, "s_and_b32 s%d, s%d, 7" % (sT + 1, sROT), "v_and_b32 v39, s%d, v39" % (sT + 1),
          "v_xor_b32 v39, v39, v32", "v_lshl_add_u32 v39, v39, 3, v34", "v_lshlrev_b32 v39, 4, v39"]
    L += ["s_waitcnt lgkmcnt(0)"] + PF.xstamp(50)
    L += srd(sX, pX, 2048 * 1024, bias=4096) + srd(sW, pQKV, 512 * 3072) + srd(sG, pGW, 1024)
    XS, WB, WS, NWS = 28672, 28672 * NXS, 12288, OPT['nwsQ']
    GW = WB + NWS * WS
    L += ["s_mov_b32 m0, %d" % GW, "s_nop 0", "buffer_load_dwordx4 v39, %s, 0 offen lds" % s4(sG)]
    units = {('x', st): ((st % NXS) * XS, (st % NXS + 1) * XS) for st in range(8)}
    units[('gw', 0)] = (GW, GW + 1024)
    P1 = Phase1('Q', XS, WB, WS, NWS, 3072, 3, units, (12, 0))
    E = P1.E
    lb = LdsBases(range(vRD + 9, 31))
    lb2 = LdsBases(range(44, 48))
    vx0, vx1, vw0, vw1, vh0, vh1, vt0, vt1, vg = [vRD + i for i in range(9)]
    S2 = ["v_and_b32 v40, 15, v%d" % vLANE, "v_lshrrev_b32 v41, 1, v40", "v_xor_b32 v41, v41, v33",
          "v_lshlrev_b32 v41, 4, v41", "v_lshl_add_u32 v42, v40, 7, v41",
          "s_lshr_b32 s%d, s%d, 1" % (sT, sWV), "s_mul_i32 s%d, s%d, %d" % (sT + 1, sT, 6 * 2048),
          "v_add_u32 v%d, s%d, v42" % (vx0, sT + 1), "v_xor_b32 v%d, 64, v%d" % (vx1, vx0)]
    S2 += ["s_lshl_b32 s%d, s%d, 2" % (sT + 1, sCG), "s_add_u32 s%d, s%d, s%d" % (sT + 1, sT + 1, sWV),
           "s_min_u32 s%d, s%d, 11" % (sT + 1, sT + 1), "s_lshl_b32 s%d, s%d, 11" % (sT + 1, sT + 1),
           "v_add_u32 v%d, s%d, v42" % (vt0, sT + 1), "v_xor_b32 v%d, 64, v%d" % (vt1, vt0)]
    S2 += ["v_or_b32 v43, 8, v40", "v_lshrrev_b32 v44, 1, v43", "v_xor_b32 v44, v44, v33", "v_lshlrev_b32 v44, 4, v44",
           "v_lshl_add_u32 v44, v43, 7, v44",
           "v_lshrrev_b32 v45, 3, v40", "v_lshl_add_u32 v44, v45, 11, v44", "v_add_u32 v44, %d, v44" % (4 * 2048),
           "v_add_u32 v45, %d, v42" % (12 * 2048),
           "s_cmp_eq_u32 s%d, 0" % sT, "s_cselect_b64 vcc, -1, 0",
           "v_cndmask_b32 v%d, v44, v45, vcc" % vh0, "v_xor_b32 v%d, 64, v%d" % (vh1, vh0)]
    S2 += ["v_lshrrev_b32 v42, 2, v40", "v_lshl_add_u32 v43, v33, 3, v42",
           "v_lshrrev_b32 v44, 1, v42", "v_and_b32 v45, 1, v33", "v_lshl_add_u32 v44, v45, 1, v44",
           "s_and_b32 s%d, s%d, 1" % (sT, sWV), "s_lshl_b32 s%d, s%d, 1" % (sT, sT), "v_xor_b32 v44, s%d, v44" % sT,
           "v_lshlrev_b32 v44, 5, v44", "v_lshl_add_u32 v43, v43, 7, v44",
           "v_and_b32 v45, 3, v%d" % vLANE, "v_lshl_add_u32 v%d, v45, 3, v43" % vw0,
           "v_xor_b32 v%d, 32, v%d" % (vw1, vw0),
           "v_lshlrev_b32 v45, 4, v33", "v_add_u32 v%d, %d, v45" % (vg, GW)]

    def Qa(hh, b): return ACC + 4 * (hh * 20 + b)
    def Ka(hh, b): return ACC + 4 * (hh * 20 + 6 + b)
    def Va(hh, b): return ACC + 4 * (hh * 20 + 13 + b)
    TA = ACC + 160
    ops = {}

    def X(t, b):
        if ('x', t, b) not in ops:
            xo = ((t >> 1) % NXS) * XS
            tag = ('x', t >> 1)
            if b < 6:
                r, o = lb.addr(vx1 if (t & 1) else vx0, xo + 2048 * b)
            elif b == 6:
                r, o = lb.addr(vh1 if (t & 1) else vh0, xo)
            elif b == 7:
                r, o = lb.addr(vt1 if (t & 1) else vt0, xo)
            else:
                r, o, tag = vg, 64 * t, ('gw', 0)
            ops[('x', t, b)] = Operand(('x', t, b), lambda q: ["ds_read_b128 %s, v%d offset:%d" % (a4(q), r, o)], tag, tag)
        return ops[('x', t, b)]

    def W(t, seg, hh):
        if ('w', t, seg, hh) not in ops:
            ad = [lb2.addr(vw1 if hh else vw0, WB + (t % NWS) * WS + 4096 * seg + 512 * h) for h in range(2)]
            ops[('w', t, seg, hh)] = Operand(('w', t, seg, hh), lambda qq: ["ds_read_b64_tr_b16 %s, v%d offset:%d" % (a2(qq + 2 * h), ad[h][0], ad[h][1]) for h in range(2)],
                                             ('w', t), ('w', t))
        return ops[('w', t, seg, hh)]

    def tiles(b):
        out = []
        for hh in range(2):
            if b < 6:
                out.append((Qa(hh, b), 0, hh))
            out += [(Ka(hh, b), 1, hh), (Va(hh, b), 2, hh)]
        return out

    def mm(t, b, tile):
        d, seg, hh = tile
        return (d, X(t, b), W(t, seg, hh), t == 0) if seg == 2 else (d, W(t, seg, hh), X(t, b), t == 0)

    def gate(t):
        return (TA, X(t, 8), X(t, 7), t == 0)
    MC, MP, MH0, MH1, AM, ONES, SPARE = 228, 232, 236, 240, 244, 248, 252
    vST, vGO = 250, 251
    ES = [srd(sG, pWS, 8192, add=G_OFF),
          "s_mov_b32 s%d, 0x%x" % (sC0, SCL), "s_mov_b32 s%d, 0x%x" % (sC0 + 1, NLOG2E),
          ["s_lshl_b32 s%d, s%d, 1" % (sU, sCG), "s_and_b32 s%d, s%d, 1" % (sU + 1, sWV)],
          ["s_add_u32 s%d, s%d, s%d" % (sU, sU, sU + 1), "s_lshl_b32 s%d, s%d, 11" % (sU, sU)],
          "v_lshlrev_b32 v%d, 4, v%d" % (vST, vLANE), "v_add_u32 v%d, s%d, v%d" % (vST, sU, vST),
          ["s_lshl_b32 s%d, s%d, 2" % (sU, sCG), "s_add_u32 s%d, s%d, s%d" % (sU, sU, sWV)],
          ["s_add_u32 s%d, s%d, s%d" % (sU + 1, sU, sRB0), "s_lshl_b32 s%d, s%d, 6" % (sU + 1, sU + 1)],
          ["s_cmp_lt_u32 s%d, 12" % sU, "s_cselect_b32 s%d, s%d, 0x%x" % (sU + 1, sU + 1, BIG)],
          "v_lshl_add_u32 v%d, v%d, 2, s%d" % (vGO, vLANE, sU + 1),
          "v_mov_b32 v%d, 0x%x" % (SPARE, BIG),
          "v_cmp_gt_u32 vcc, 16, v%d" % vLANE,
          "v_mov_b32 v%d, 0x3f803f80" % ONES, "v_mov_b32 v%d, 0x3f803f80" % (ONES + 1),
          "v_cndmask_b32 v%d, v%d, v%d, vcc" % (vGO, SPARE, vGO),
          ["s_lshr_b32 s%d, s%d, 1" % (sU + 2, sWV), "s_mul_i32 s%d, s%d, 6" % (sU + 2, sU + 2)],
          "s_add_u32 s%d, s%d, s%d" % (sU + 2, sU + 2, sRB0)]
    so = store_offsets([(sU + 2, b) for b in range(6)])
    HV, HV2 = sU + 4, sU + 6
    ES2 = ["v_and_b32 v%d, 15, v%d" % (SPARE, vLANE), "v_lshrrev_b32 v%d, 4, v%d" % (SPARE + 1, vLANE),
           "v_lshlrev_b32 v%d, 2, v%d" % (SPARE + 1, SPARE + 1), "v_sub_u32 v%d, v%d, v%d" % (SPARE, SPARE, SPARE + 1),
           "v_mov_b32 v%d, 0xff800000" % (SPARE + 2),
           ["s_lshr_b32 s%d, s%d, 1" % (sU, sWV), "s_or_b32 s%d, s%d, s%d" % (sU, sU, sRB0)],
           ["s_cmp_lg_u32 s%d, 0" % sU, "s_cselect_b64 s[%d:%d], -1, 0" % (HV, HV + 1)],
           ["s_mov_b32 s%d, s%d" % (HV2, HV), "s_mov_b32 s%d, 0" % (HV2 + 1)],
           "v_mov_b32 v%d, 0" % AM, "v_mov_b32 v%d, 0" % (AM + 1)]
    ES3 = []
    for r in range(4):
        ES3 += ["v_subrev_u32 v%d, %d, v%d" % (SPARE + 3, r, SPARE), "v_cmp_gt_u32 vcc, 8, v%d" % (SPARE + 3),
                "v_mov_b32 v%d, 0x%x" % (SPARE + 1, 0xffff0000 if (r & 1) else 0xffff),
                "v_add_u32 v%d, %d, v%d" % (SPARE + 3, 16 - r, SPARE),
                "v_cndmask_b32 v%d, v%d, 0, vcc" % (MC + r, SPARE + 2),
                "v_cndmask_b32 v%d, 0, v%d, vcc" % (SPARE + 1, SPARE + 1),
                "v_cmp_gt_u32 vcc, 8, v%d" % (SPARE + 3),
                "v_or_b32 v%d, v%d, v%d" % (AM + (r >> 1), AM + (r >> 1), SPARE + 1),
                "v_add_u32 v%d, %d, v%d" % (SPARE + 3, 8 - r, SPARE),
                "v_cndmask_b32 v%d, v%d, 0, vcc" % (MP + r, SPARE + 2),
                "s_and_b64 vcc, vcc, s[%d:%d]" % (HV, HV + 1),
                "v_cndmask_b32 v%d, v%d, 0, vcc" % (MH1 + r, SPARE + 2),
                "v_cmp_gt_u32 vcc, 8, v%d" % (SPARE + 3),
                "s_and_b64 vcc, vcc, s[%d:%d]" % (HV2, HV2 + 1),
                "v_cndmask_b32 v%d, v%d, 0, vcc" % (MH0 + r, SPARE + 2)]
    ES3 += ["v_not_b32 v%d, v%d" % (AM + 2, AM), "v_not_b32 v%d, v%d" % (AM + 3, AM + 1)]
    TL = ["s_lshl_b32 s%d, s%d, 12" % (sT, sXCD), "s_lshl_b32 s%d, s%d, 3" % (sT + 1, sXCD),
          "s_lshl_b32 s%d, s%d, 4" % (sT + 2, sWV), "s_add_u32 s%d, s%d, s%d" % (sT + 2, sT + 2, sIDX),
          "s_cmp_eq_u32 s%d, 10" % (sT + 2), "s_cselect_b32 s%d, s%d, 0x%x" % (sT, sT, BIG), "s_cselect_b32 s%d, s%d, 0x%x" % (sT + 1, sT + 1, BIG),
          "v_and_b32 v60, 31, v%d" % vLANE, "v_lshl_add_u32 v60, v60, 7, s%d" % sT,
          "v_lshl_add_u32 v62, v%d, 24, s%d" % (vLANE, sT + 1),
          "buffer_load_dword v60, v60, %s, 0 offen sc1" % s4(sF)]
    TP = ["v_and_b32 v60, 1, v60", "v_cmp_eq_u32 vcc, 0, v60", "v_mov_b32 v61, 1", "v_mov_b32 v60, vcc_lo",
          "buffer_store_dwordx2 v[60:61], v62, %s, 0 offen sc1" % s4(sD)]
    stf = ["", " sc1", " nt", " sc1 nt"][OPT['stsc']]
    VB = 48
    def Vb(hh, k): return VB + 8 * hh + 2 * k
    def cvt2(dst, src): return ["v_cvt_pk_bf16_f32 v%d, v%d, v%d" % (dst, src, src + 1), "v_cvt_pk_bf16_f32 v%d, v%d, v%d" % (dst + 1, src + 2, src + 3)]
    def sumd(hh, b): return (SPARE, TA)[hh] if b == 0 else Qa(hh, 4) if b == 1 else Qa(hh, b - 2)

    def norm(b):
        T = ["v_rcp_f32 v%d, v%d" % (sumd(hh, b), sumd(hh, b)) for hh in range(2)]
        for hh in range(2):
            T += ["v_mul_f32 v%d, v%d, v%d" % (Va(hh, b) + r, Va(hh, b) + r, sumd(hh, b)) for r in range(4)]
        for hh in range(2):
            T += cvt2(Ka(0, b) + 2 * hh, Va(hh, b))
        return T + [("buffer_store_dwordx4 %s, v%d, %s, s%d offen%s" % (v4(Ka(0, b)), vST, s4(sA), sST + b, stf), ('stB' if b & 1 else 'stA', b))]

    def att(b, mid):
        T = []
        if b == 0:
            for hh in range(2):
                T += cvt2(Ka(hh, 6), Ka(hh, 6)) + cvt2(Vb(hh, 0), Va(hh, 6))
        for hh in range(2):
            T += cvt2(Qa(hh, b), Qa(hh, b)) + cvt2(Qa(hh, b) + 2, Ka(hh, b)) + cvt2(Vb(hh, 1 + (b >> 1)), Va(hh, b))
        for hh in range(2):
            kp = Ka(hh, 6) if b < 2 else Qa(hh, b - 2) + 2
            mk = MH0 if b == 0 else MH1 if b == 1 else MP
            T += ["v_mfma_f32_16x16x16_bf16 %s, %s, %s, %s" % (v4(Ka(hh, b)), v2(Qa(hh, b) + 2), v2(Qa(hh, b)), v4(MC)),
                  "v_mfma_f32_16x16x16_bf16 %s, %s, %s, %s" % (v4(Va(hh, b)), v2(kp), v2(Qa(hh, b)), v4(mk))]
        T += mid
        for hh in range(2):
            S, P = Ka(hh, b), Va(hh, b)
            T += ["v_max_f32 v%d, v%d, v%d" % (S + r, S + r, P + r) for r in range(4)]
        for hh in range(2):
            S, P = Ka(hh, b), Va(hh, b)
            T += ["v_max3_f32 v%d, v%d, v%d, v%d" % (P, S, S + 1, S + 2)]
        for hh in range(2):
            S, P = Ka(hh, b), Va(hh, b)
            T += ["v_max_f32 v%d, v%d, v%d" % (P, P, S + 3)]
        Ee, Ff = Va(0, b), Va(1, b)
        T += ["v_permlane32_swap_b32 v%d, v%d" % (Ee, Ff),
              "v_max_f32 v%d, v%d, v%d" % (Ee + 1, Ee, Ff), "v_max_f32 v%d, v%d, v%d" % (Ee, Ee, Ff),
              "v_permlane16_swap_b32 v%d, v%d" % (Ee, Ee + 1),
              "v_max_f32 v%d, v%d, v%d" % (Ee, Ee, Ee + 1),
              "v_mul_f32 v%d, s%d, v%d" % (Ff, sC0, Ee), "v_mul_f32 v%d, s%d, v%d" % (Ee, sC0, Ee),
              "v_permlane32_swap_b32 v%d, v%d" % (Ee, Ff)]
        for hh in range(2):
            T += ["v_fma_f32 v%d, v%d, s%d, -v%d" % (Ka(hh, b) + r, Ka(hh, b) + r, sC0, Va(hh, b)) for r in range(4)]
        for hh in range(2):
            T += ["v_exp_f32 v%d, v%d" % (Ka(hh, b) + r, Ka(hh, b) + r) for r in range(4)]
        for hh in range(2):
            T += cvt2(Va(hh, b) + 2, Ka(hh, b))
        for hh in range(2):
            P, S = Va(hh, b), Ka(hh, b)
            T += ["v_and_b32 v%d, v%d, v%d" % (S, P + 2, AM + 2), "v_and_b32 v%d, v%d, v%d" % (S + 1, P + 3, AM + 3),
                  "v_and_b32 v%d, v%d, v%d" % (S + 2, P + 2, AM), "v_and_b32 v%d, v%d, v%d" % (S + 3, P + 3, AM + 1)]
        for hh in range(2):
            T += ["v_mfma_f32_16x16x16_bf16 %s, %s, %s, 0" % (v4(sumd(hh, b)), v2(ONES), v2(Va(hh, b) + 2))]
        for hh in range(2):
            T += ["v_mfma_f32_16x16x32_bf16 %s, %s, %s, 0" % (v4(Va(hh, b)), v4(Vb(hh, b >> 1)), v4(Ka(hh, b)))]
        return T
    gsig = ["v_mul_f32 v%d, s%d, v%d" % (TA, sC0 + 1, TA), "v_exp_f32 v%d, v%d" % (TA, TA), "s_nop 0",
            "v_add_f32 v%d, 1.0, v%d" % (TA, TA), "v_rcp_f32 v%d, v%d" % (TA, TA), "s_nop 0",
            ("buffer_store_dword v%d, v%d, %s, 0 offen sc1" % (TA, vGO, s4(sG)), ('stA', 100))]
    extra = {0: P1.w2.setup_dma(), 1: P1.w2.setup_rd(), 2: TP, 3: ES + so[:10], 4: so[10:], 5: ES2, 6: ES3[:21], 7: ES3[21:42], 8: ES3[42:]}
    extra[OPT['wt']] = extra.get(OPT['wt'], []) + warmups(56, 57)
    extra[OPT['vt']] = extra.get(OPT['vt'], []) + vtouch(54, 55)
    segs = []
    for t in range(12):
        segs.append(dict(mf=[mm(t, b, tl) for b in range(7) for tl in tiles(b)] + [gate(t)],
                         fill=extra.get(t, []), ndma=OPT['maxd'] if t >= 4 else OPT['maxd0'], nw2r=OPT['nrm']))
    segs[2]['extra_vm'] = lambda t: t[0] == 'tp'
    fs = flag_setup() + [(tag_load(), ('tag', 0))]
    if OPT['fsplit']:
        for t in range(12, 16):
            segs.append(dict(mf=[gate(t)] + [mm(t, b, tl) for b in (6, 0) for tl in tiles(b)],
                             fill=fs[:12] if t == 14 else fs[12:] if t == 15 else [], ndma=3, nw2r=1, need_dma_done=(t == 14), rdrate=2))
    else:
        segs.append(dict(mf=sum([[gate(t)] + [mm(t, b, tl) for b in (6, 0) for tl in tiles(b)] for t in range(12, 16)], []),
                         fill=fs, ndma=OPT['maxd'], nw2r=2, need_dma_done=True, rdrate=2))
    s0 = len(segs)
    seq = [0, 2, 4, 1, 3, 5]
    for i in range(1, 6):
        b, pb = seq[i], seq[i - 1]
        if i == 1:
            f = att(pb, gsig)
        elif i == 4 and OPT['ndef'] == 0:
            f = norm(seq[i - 2]) + att(pb, [])
        else:
            f = att(pb, norm(seq[i - 2]))
        si = len(segs)
        segs.append(dict(mf=[mm(t, b, tl) for tl in tiles(b) for t in range(12, 16)], fill=f, ndma=OPT['fdQ'], nw2r=OPT['nwf'] + 2,
                         barrier=bool((OPT['barQ'] >> (si - s0)) & 1), force_release=(i == 5)))
        if i == OPT['pubQ']:
            assert i >= 5
            pub_seg(segs[-1], PF, "Q")
    segs[-1]['barrier'] = True
    for x in P1.sched.take(10):
        E(x)
    E(PF.xstamp(51) + tlb_warm() + S2 + ["@LB"] + late_scalar_setup())
    for x in P1.sched.take(OPT['npro'] - 10):
        E(x)
    E(TL[:-1])
    E(TL[-1], ('tp', 0))
    P1.run(PF, segs, (0, 4, 8, 12))
    E(PF.stamp())
    if OPT['pubQ'] > 5:
        pub_inline(E, PF, "Q")
    tail = att(5, norm(3))
    cutp = len(tail) - 28
    if OPT['ppQ']:
        E(POLL, ('pa', 0))
    E(tail[:cutp])
    P1.w2.flush(E, OPT['keep'])
    if not OPT['ppQ']:
        E(POLL, ('pa', 0))
    E(tail[cutp:] + norm(5))
    E(PF.stamp())
    phase2(P1, PF, "Q")
    i = E.L.index("@LB")
    return L + E.L[:i] + lb.setup + lb2.setup + E.L[i + 1:]


def main():
    K = NAME + "_kernel"
    L = [K + ":", "s_cmp_ge_u32 s2, 256", "s_cbranch_scc1 L_exit",
         "s_load_dwordx8 s[4:11], s[0:1], 0", "s_load_dwordx8 s[12:19], s[0:1], 32",
         "s_load_dwordx4 s[20:23], s[0:1], 64", "s_load_dwordx2 s[24:25], s[0:1], 80",
         "v_lshrrev_b32 v2, 6, v0", "v_and_b32 v%d, 63, v0" % vLANE, "v_readfirstlane_b32 s%d, v2" % sWV,
         "s_and_b32 s%d, s2, 7" % sXCD, "s_lshr_b32 s%d, s2, 3" % sIDX, "s_cmp_lt_u32 s%d, 11" % sIDX, "s_cbranch_scc1 L_Q"]
    pf = []
    if OPT['iprefetch']:
        i = L.index("v_lshrrev_b32 v2, 6, v0")
        L[i:i] = ["s_getpc_b64 s[26:27]", "v_and_b32 v63, 15, v0", "s_lshr_b32 s3, s2, 3", "s_lshl_b32 s3, s3, 11",
                  "v_lshl_add_u32 v63, v63, 7, s3", "global_load_dword v63, v63, s[26:27]"]
    rep = {}
    H = fix_hazards(["s_nop 3"] + pf + gen_H(), rep)
    sys.stderr.write("H: %d lines, nops %d\n" % (len(H), rep['nops']))
    Q = fix_hazards(["s_nop 3"] + pf + gen_Q(), rep)
    sys.stderr.write("Q: %d lines, nops %d\n" % (len(Q), rep['nops']))
    out = ["; generated by gen9.py: single persistent kernel, flag hand-off between GEMM1 and GEMM2",
           "; @launch grid=(256,1,1) block=(256,1,1) lds=163840",
           '.amdgcn_target "amdgcn-amd-amdhsa--gfx950"', ".text", ".globl " + K, ".p2align 8", ".type %s,@function" % K]
    out += fix_hazards(L) + H + ["L_exit:", "s_endpgm", ".p2align 6", "L_Q:"] + Q
    out += [".p2align 8", ".fill 6144, 4, 0xbf800000", "s_endpgm"]
    out += ['.section .rodata,"a"', ".p2align 6", """.amdhsa_kernel %s
  .amdhsa_next_free_vgpr 512
  .amdhsa_next_free_sgpr 102
  .amdhsa_accum_offset 256
  .amdhsa_group_segment_fixed_size 0
  .amdhsa_kernarg_size 88
  .amdhsa_user_sgpr_count 2
  .amdhsa_user_sgpr_kernarg_segment_ptr 1
  .amdhsa_system_sgpr_workgroup_id_x 1
.end_amdhsa_kernel""" % K]
    print("\n".join(out))


main()
```

```python
import sys
from asmlib import *
from engine import *

NAME = "gated_mix__sliding_local_dilated__glu_gated_glu__prompt"
A2_BYTES = 32 * 72 * 4096
G_OFF = A2_BYTES
F_OFF = A2_BYTES + 8192
MT_STRIDE = 72 * 4096
CLS = 72 * 2048
NLOG2E = 0xbfb8aa3b
SCL = 0x3eb8aa3b
BIG = 0x40000000

OPT = dict(masks=0x77777777, iprefetch=1, prof=0, maxd=10, npro=20, la=3, la0=3, rx=1, rm3=0, rnt=0,
           diag=-1, c0=-1, c1=-1, sel=0, warm=2, outsc=1, wt=3, rotb=0, rotq=0, pollst=4, map2=0, perm=1,
           nwsH=4, nwsQ=4, stsc=1, verbose=0, q3=1, lm=1, lq=7, rhi=1, tlb=0, ldsp=3, nost=0, pf0=9,
           w2t=2, w2prio=4, w2lag=800, nrm=2, fH=2, fdH=5, fdQ=8, pubH=8, pubQ=5, v13=11, v14=12, ndef=0,
           barH=0x25, barQ=0x11, quota=0, age=110, keep=0, fsplit=0, nwf=2, sall=0, maxd0=8, nxs=3, early=0, lagf=800, ppH=9, ppQ=1, vt=10, chain=0)
for a in sys.argv[1:]:
    if '=' in a:
        k, v = a.split('=')
        assert k in OPT, k
        OPT[k] = int(v, 0)

NXS = OPT['nxs']
CUR = ['H']
pX, pQKV, pWO, pWG, pWU, pWD, pGW, pOUT, pDBG, pWS = 4, 6, 8, 12, 14, 16, 18, 20, 22, 24
sX, sW, sA, sG, sWO, sWD, sO, sD = 28, 32, 36, 40, 44, 48, 52, 56
sWV, sRB0, sCG, sXCD, sIDX, sKX, sKW, sMX, sMW, sM7, sROT, sM2 = 60, 61, 62, 63, 64, 65, 66, 67, 68, 69, 70, 71
sMT, sNT, sW2o, sW2h, sW2e, sS2, sAo, sAh, sAe, sSA = 72, 73, 74, 75, 76, 77, 78, 79, 80, 81
sC0 = 82
sST = 86
sF = 20
sS3 = 27
sPAR = 99
sPID = 98
sK = 97
sT = 88
sU = 4
vLANE = 1
vXD, vWD, vRD = 2, 9, 13
ACC = 64


def v4(b): return "v[%d:%d]" % (b, b + 3)
def v2(b): return "v[%d:%d]" % (b, b + 1)
def a4(b): return "a[%d:%d]" % (b, b + 3)
def a2(b): return "a[%d:%d]" % (b, b + 1)
def s4(b): return "s[%d:%d]" % (b, b + 3)


class Prof:
    def __init__(self, vreg):
        self.n = 0
        self.v = vreg

    def stamp(self):
        self.n += 1
        if OPT['diag'] >= 0:
            L = []
            if OPT['diag'] == self.n - 1:
                L += ["s_memrealtime s[100:101]", "s_waitcnt lgkmcnt(0)", "s_mov_b32 s26, s100"]
            if OPT['c0'] == self.n - 1:
                L += ["s_memtime s[100:101]", "s_waitcnt lgkmcnt(0)", "s_mov_b32 s3, s100"]
            if OPT['c1'] == self.n - 1:
                L += ["s_memtime s[100:101]", "s_waitcnt lgkmcnt(0)", "s_sub_u32 s3, s100, s3"]
            return L
        if not OPT['prof']:
            return []
        if OPT['sel'] and not (OPT['sel'] >> (self.n - 1)) & 1:
            return []
        return ["%s s[100:101]" % ("s_memtime" if OPT['prof'] == 1 else "s_memrealtime"), "s_waitcnt lgkmcnt(0)", "v_writelane_b32 v%d, s100, %d" % (self.v, self.n - 1)]

    def xstamp(self, lane):
        if OPT['prof'] < 2:
            return []
        return ["s_memrealtime s[100:101]", "s_waitcnt lgkmcnt(0)", "v_writelane_b32 v%d, s100, %d" % (self.v, lane)]

    def dump(self):
        if OPT['diag'] >= 0:
            lab = "D%d" % id(self)
            L = ["s_waitcnt vmcnt(0)"] + self.stamp() + ["s_mov_b32 s4, 10000"]
            if OPT['c0'] >= 0:
                L += ["s_lshr_b32 s3, s3, 2", "s_add_u32 s4, s3, 5000"]
            L += ["s_mov_b32 s5, 0", lab + ":", "s_memrealtime s[100:101]", "s_waitcnt lgkmcnt(0)", "s_sub_u32 s6, s100, s26",
                  "s_add_u32 s5, s5, 1", "s_cmp_gt_u32 s5, 100000", "s_cbranch_scc1 %s_x" % lab,
                  "s_cmp_lt_u32 s6, s4", "s_cbranch_scc1 " + lab, lab + "_x:"]
            return L
        if not OPT['prof']:
            return []
        L = ["s_waitcnt vmcnt(0)"] + self.stamp()
        L += ["s_memrealtime s[100:101]", "s_waitcnt lgkmcnt(0)", "v_writelane_b32 v%d, s100, 63" % self.v]
        L += ["s_lshl_b32 s100, s2, 2", "s_add_u32 s100, s100, s%d" % sWV, "s_lshl_b32 s100, s100, 8",
              "s_add_u32 s100, s100, %d" % (16 << 20), "v_lshl_add_u32 v2, v%d, 2, s100" % vLANE,
              "global_store_dword v2, v%d, s[%d:%d]" % (self.v, pWS, pWS + 1)]
        return L


def srd(d, p, nbytes, bias=0, add=0):
    L = []
    if bias:
        L += ["s_sub_u32 s%d, s%d, %d" % (d, p, bias), "s_subb_u32 s%d, s%d, 0" % (d + 1, p + 1)]
    elif add:
        L += ["s_add_u32 s%d, s%d, %d" % (d, p, add), "s_addc_u32 s%d, s%d, 0" % (d + 1, p + 1)]
    else:
        L += ["s_mov_b32 s%d, s%d" % (d, p), "s_mov_b32 s%d, s%d" % (d + 1, p + 1)]
    L += ["s_mov_b32 s%d, 0x%x" % (d + 2, nbytes + bias), "s_mov_b32 s%d, 0x20000" % (d + 3)]
    return L


class LdsBases:
    def __init__(self, regs, chunk=0xC000):
        self.regs = list(regs)
        self.map = {}
        self.setup = []
        self.chunk = chunk

    def addr(self, patreg, off):
        ch = off // self.chunk
        if ch == 0:
            return patreg, off
        key = (patreg, ch)
        if key not in self.map:
            r = self.regs.pop(0)
            self.map[key] = r
            self.setup.append("v_add_u32 v%d, 0x%x, v%d" % (r, ch * self.chunk, patreg))
        return self.map[key], off - ch * self.chunk


def stage_pre(s, dst, mul):
    m = (OPT['masks'] >> (4 * s)) & 7
    if CUR[0] == 'H' and OPT['lm'] == 0 and not OPT['rhi']:
        m = 0
    if m == 0:
        return ["s_mov_b32 s%d, %d" % (dst, s * mul)]
    return ["s_and_b32 s%d, s%d, %d" % (sK, sROT, m), "s_xor_b32 s%d, s%d, %d" % (sK, sK, s), "s_mul_i32 s%d, s%d, %d" % (dst, sK, mul)]


def rot_fix(typ):
    L = []
    if typ == 'Q' and OPT['q3']:
        L += ["s_cmp_eq_u32 s%d, 3" % sXCD, "s_cselect_b32 s%d, %d, %d" % (sT + 6, OPT['lq'], OPT['lm']), "s_and_b32 s%d, s%d, s%d" % (sROT, sROT, sT + 6)]
    else:
        L += ["s_and_b32 s%d, s%d, %d" % (sROT, sROT, OPT['lm'])]
    if OPT['rhi']:
        L += ["s_lshl_b32 s%d, s%d, 2" % (sT + 6, sXCD), "s_and_b32 s%d, s%d, 4" % (sT + 6, sT + 6), "s_xor_b32 s%d, s%d, s%d" % (sROT, sROT, sT + 6)]
    return L


def x_setup(L, typ):
    L += ["v_lshrrev_b32 v32, 3, v%d" % vLANE, "v_lshrrev_b32 v33, 4, v%d" % vLANE, "v_and_b32 v34, 7, v%d" % vLANE,
          "v_xor_b32 v35, v34, v33", "v_lshlrev_b32 v35, 4, v35", "v_lshl_add_u32 v36, v32, 11, v35", "v_xor_b32 v37, 64, v36"]
    if typ == 'H':
        L += ["s_mul_i32 s%d, s%d, 6" % (sT, sWV), "s_and_b32 s%d, s%d, 1" % (sPAR, sRB0),
              "s_add_u32 s%d, s%d, s%d" % (sT + 4, sT, sPAR),
              "s_sub_u32 s%d, s%d, s%d" % (sT + 5, sT, sPAR), "s_sub_u32 s%d, s%d, 11" % (sT + 5, sT + 5),
              "s_cmp_lt_u32 s%d, 2" % sWV, "s_cselect_b32 s%d, s%d, s%d" % (sT, sT + 4, sT + 5)]
    else:
        L += ["s_mul_i32 s%d, s%d, 3" % (sT, sWV), "s_add_u32 s%d, s%d, s%d" % (sT, sT, sRB0)]
    for bb in range(3):
        if typ == 'H':
            L += ["s_add_u32 s%d, s%d, %d" % (sT + 1, sT, 2 * bb)]
            if bb == 2:
                L += ["s_min_u32 s%d, s%d, 10" % (sT + 1, sT + 1)]
            L += ["s_add_u32 s%d, s%d, s%d" % (sT + 1, sT + 1, sRB0)]
        else:
            L += ["s_add_u32 s%d, s%d, %d" % (sT + 1, sT, bb)]
        L += ["s_lshr_b32 s%d, s%d, 1" % (sT + 2, sT + 1), "s_lshl_b32 s%d, s%d, 15" % (sT + 2, sT + 2),
              "s_and_b32 s%d, s%d, 1" % (sT + 1, sT + 1), "s_lshl_b32 s%d, s%d, 10" % (sT + 1, sT + 1),
              "s_add_u32 s%d, s%d, s%d" % (sT + 2, sT + 2, sT + 1)]
        if typ == 'H' and bb == 2:
            L += ["s_cmp_eq_u32 s%d, 3" % sWV, "s_cselect_b32 s%d, 0x%x, s%d" % (sT + 2, BIG, sT + 2)]
        for dd in range(2):
            d = 2 * bb + dd
            add = 4096 - 1024 * (d & 3) + (16384 if dd else 0)
            L += ["s_add_u32 s%d, s%d, %d" % (sT + 3, sT + 2, add), "v_add_u32 v%d, s%d, v%d" % (vXD + d, sT + 3, 36 + dd)]


def tlb_warm():
    if not OPT['tlb'] or OPT['tlb'] >= 4:
        return []
    d = 3
    if OPT['tlb'] == 3:
        return ["s_lshl_b32 s%d, s%d, 21" % (sT, sWV), "s_add_u32 s%d, s%d, 0x200000" % (sT, sT),
                "s_load_dword s%d, s[%d:%d], s%d" % (d, pWS, pWS + 1, sT),
                "s_cmp_eq_u32 s%d, 0" % sWV, "s_cselect_b64 s[%d:%d], s[%d:%d], s[%d:%d]" % (sT + 2, sT + 3, pDBG, pDBG + 1, pWS, pWS + 1),
                "s_cmp_eq_u32 s%d, 1" % sWV, "s_cselect_b64 s[%d:%d], s[%d:%d], s[%d:%d]" % (sT + 2, sT + 3, pOUT, pOUT + 1, sT + 2, sT + 3),
                "s_load_dword s%d, s[%d:%d], 0" % (d, sT + 2, sT + 3)]
    L = ["s_lshl_b32 s%d, s%d, 20" % (sT, sWV),
         "s_load_dword s%d, s[%d:%d], s%d" % (d, pWS, pWS + 1, sT), "s_add_u32 s%d, s%d, 0x400000" % (sT, sT),
         "s_load_dword s%d, s[%d:%d], s%d" % (d, pWS, pWS + 1, sT), "s_add_u32 s%d, s%d, 0x400000" % (sT, sT),
         "s_load_dword s%d, s[%d:%d], s%d" % (d, pWS, pWS + 1, sT),
         "s_and_b32 s%d, s%d, 1" % (sT, sWV), "s_lshl_b32 s%d, s%d, 20" % (sT, sT),
         "s_load_dword s%d, s[%d:%d], s%d" % (d, pWD, pWD + 1, sT),
         "s_load_dword s%d, s[%d:%d], s%d" % (d, pOUT, pOUT + 1, sT),
         "s_load_dword s%d, s[%d:%d], 0" % (d, pWO, pWO + 1),
         "s_load_dword s%d, s[%d:%d], 0" % (d, pDBG, pDBG + 1)]
    return L


def late_scalar_setup():
    L = []
    L += srd(sA, pWS, 0 if OPT['nost'] else A2_BYTES)
    L += srd(sWO, pWO, 512 * 1024) + srd(sWD, pWD, 1792 * 1024) + srd(sO, pOUT, 2048 * 1024)
    L += srd(sD, pDBG, 256)
    L += srd(sF, pWS, 32768, add=F_OFF)
    if OPT['map2'] == 0:
        sP = sT + 5
        L += ["s_mov_b32 s%d, s%d" % (sP, sIDX)]
        if OPT['perm']:
            for a, b in ((11, 8), (19, 9), (27, 10)):
                L += ["s_cmp_eq_u32 s%d, %d" % (sIDX, a), "s_cselect_b32 s%d, %d, s%d" % (sP, b, sP),
                      "s_cmp_eq_u32 s%d, %d" % (sIDX, b), "s_cselect_b32 s%d, %d, s%d" % (sP, a, sP)]
            if OPT['perm'] == 2:
                L += ["s_cmp_eq_u32 s%d, 3" % sXCD, "s_cselect_b32 s%d, s%d, s%d" % (sP, sIDX, sP)]
        L += ["s_lshl_b32 s%d, s%d, 2" % (sMT, sXCD), "s_lshr_b32 s%d, s%d, 3" % (sT, sP), "s_add_u32 s%d, s%d, s%d" % (sMT, sMT, sT),
              "s_and_b32 s%d, s%d, 7" % (sNT, sP)]
    else:
        L += ["s_lshr_b32 s%d, s%d, 1" % (sMT, sXCD), "s_lshl_b32 s%d, s%d, 3" % (sMT, sMT), "s_lshr_b32 s%d, s%d, 2" % (sT, sIDX),
              "s_add_u32 s%d, s%d, s%d" % (sMT, sMT, sT),
              "s_and_b32 s%d, s%d, 1" % (sNT, sXCD), "s_lshl_b32 s%d, s%d, 2" % (sNT, sNT), "s_and_b32 s%d, s%d, 3" % (sT + 1, sIDX),
              "s_add_u32 s%d, s%d, s%d" % (sNT, sNT, sT + 1)]
    L += [
          "s_lshl_b32 s%d, s%d, 11" % (sM2, sWV),
          "s_lshl_b32 s%d, s%d, 17" % (sW2o, sWV),
          "s_mul_i32 s%d, s%d, %d" % (sW2h, sWV, 14 * 32768), "s_add_u32 s%d, s%d, %d" % (sW2e, sW2h, 14 * 32768),
          "s_mul_i32 s%d, s%d, %d" % (sT + 1, sMT, MT_STRIDE),
          "s_lshl_b32 s%d, s%d, 13" % (sAo, sWV), "s_add_u32 s%d, s%d, s%d" % (sAo, sAo, sT + 1),
          "s_mul_i32 s%d, s%d, %d" % (sAh, sWV, 14 * 2048), "s_add_u32 s%d, s%d, s%d" % (sAh, sAh, sT + 1),
          "s_add_u32 s%d, s%d, %d" % (sAh, sAh, 16 * 2048), "s_add_u32 s%d, s%d, %d" % (sAe, sAh, 14 * 2048)]
    L += ["s_mul_i32 s%d, s%d, %d" % (sT + 3, sT, OPT['rm3']), "s_cmp_eq_u32 s%d, 3" % sNT, "s_cselect_b32 s%d, s%d, 0" % (sT + 3, sT + 3),
          "s_cselect_b32 s%d, s%d, 0" % (sT + 4, sT),
          "s_mul_i32 s%d, s%d, %d" % (sT + 2, sXCD, OPT['rx']), "s_add_u32 s%d, s%d, s%d" % (sT + 4, sT + 4, sT + 2),
          "s_add_u32 s%d, s%d, s%d" % (sT + 2, sT + 2, sT + 3),
          "s_and_b32 s%d, s%d, %d" % (sT + 3, sNT, 1 if OPT['rnt'] else 0), "s_add_u32 s%d, s%d, s%d" % (sT + 4, sT + 4, sT + 3),
          "s_mul_i32 s%d, s%d, %d" % (sT + 3, sT + 3, OPT['rnt']), "s_add_u32 s%d, s%d, s%d" % (sT + 2, sT + 2, sT + 3),
          "s_lshr_b32 s%d, s%d, %d" % (sT + 4, sT + 4, 1 if OPT['map2'] else 0), "s_and_b32 s%d, s%d, 1" % (sT + 4, sT + 4),
          "s_lshl_b32 s%d, s%d, 16" % (sT + 3, sT + 4), "s_add_u32 s%d, s%d, s%d" % (sW2o, sW2o, sT + 3),
          "s_lshl_b32 s%d, s%d, 12" % (sT + 3, sT + 4), "s_add_u32 s%d, s%d, s%d" % (sAo, sAo, sT + 3)]
    for _ in range(2):
        L += ["s_cmp_ge_u32 s%d, 7" % (sT + 2), "s_cselect_b32 s%d, 7, 0" % (sT + 3), "s_sub_u32 s%d, s%d, s%d" % (sT + 2, sT + 2, sT + 3)]
    L += ["s_lshl_b32 s%d, s%d, 16" % (sT + 3, sT + 2), "s_add_u32 s%d, s%d, s%d" % (sS2, sW2h, sT + 3),
          "s_lshl_b32 s%d, s%d, 12" % (sT + 3, sT + 2), "s_add_u32 s%d, s%d, s%d" % (sSA, sAh, sT + 3),
          "s_add_u32 s%d, s%d, %d" % (sS3, sS2, min(OPT['pf0'], 6) * 65536), "s_sub_u32 s%d, s%d, %d" % (sT + 3, sS3, 7 * 65536),
          "s_cmp_ge_u32 s%d, s%d" % (sS3, sW2e), "s_cselect_b32 s%d, s%d, s%d" % (sS3, sT + 3, sS3)]
    return L


def warmups(va, vb, mode=None):
    L = []
    mode = OPT['warm'] if mode is None else mode
    if mode == 2:
        L += [["s_lshl_b32 s%d, s%d, 2" % (sU + 12, sIDX), "s_add_u32 s%d, s%d, s%d" % (sU + 12, sU + 12, sWV)],
              ["s_mul_i32 s%d, s%d, %d" % (sU + 13, sU + 12, 14 * 1024), "s_lshl_b32 s%d, s%d, 12" % (sU + 12, sU + 12)],
              "v_min_u32 v%d, 13, v%d" % (va, vLANE), "v_lshl_add_u32 v%d, v%d, 10, s%d" % (va, va, sU + 13),
              "v_and_b32 v%d, 3, v%d" % (vb, vLANE), "v_lshl_add_u32 v%d, v%d, 10, s%d" % (vb, vb, sU + 12),
              ["s_and_b32 s%d, s%d, %d" % (sU + 12, sXCD, 1 if OPT['map2'] else 0), "s_lshl_b32 s%d, s%d, 29" % (sU + 12, sU + 12)],
              "buffer_load_dword v%d, v%d, %s, s%d offen offset:384" % (va, va, s4(sWD), sU + 12),
              "buffer_load_dword v%d, v%d, %s, s%d offen offset:384" % (vb, vb, s4(sWO), sU + 12)]
    elif mode:
        L += [["s_lshl_b32 s%d, s2, 2" % (sU + 12), "s_add_u32 s%d, s%d, s%d" % (sU + 12, sU + 12, sWV)],
              ["s_mul_i32 s%d, s%d, %d" % (sU + 13, sU + 12, 14 * 128), "s_lshl_b32 s%d, s%d, 9" % (sU + 12, sU + 12)],
              "v_min_u32 v%d, 13, v%d" % (va, vLANE), "v_lshl_add_u32 v%d, v%d, 7, s%d" % (va, va, sU + 13),
              "v_and_b32 v%d, 3, v%d" % (vb, vLANE), "v_lshl_add_u32 v%d, v%d, 7, s%d" % (vb, vb, sU + 12),
              "buffer_load_dword v%d, v%d, %s, 0 offen" % (va, va, s4(sWD)),
              "buffer_load_dword v%d, v%d, %s, 0 offen" % (vb, vb, s4(sWO))]
    return L


def warmt(va, vb):
    L = []
    if OPT['warmt'] == 2:
        L += [["s_lshl_b32 s%d, s%d, 16" % (sU + 14, sMT), "s_lshl_b32 s%d, s%d, 7" % (sU + 15, sNT)], "s_add_u32 s%d, s%d, s%d" % (sU + 14, sU + 14, sU + 15),
              "v_lshl_add_u32 v%d, v%d, 10, s%d" % (vb, vLANE, sU + 14),
              "buffer_load_dword v%d, v%d, %s, 0 offen" % (vb, vb, s4(sO))]
    elif OPT['warmt']:
        L += ["v_and_b32 v%d, 7, v%d" % (va, vLANE), "v_lshlrev_b32 v%d, 21, v%d" % (va, va),
              "v_and_b32 v%d, 1, v%d" % (vb, vLANE), "v_lshlrev_b32 v%d, 20, v%d" % (vb, vb),
              "buffer_load_dword v%d, v%d, %s, 0 offen" % (va, va, s4(sA)),
              "buffer_load_dword v%d, v%d, %s, 0 offen" % (vb, vb, s4(sO))]
    return L


def vtouch(va, vb):
    if OPT['tlb'] != 4:
        return []
    return ["v_and_b32 v%d, 7, v%d" % (va, vLANE), "v_lshlrev_b32 v%d, 21, v%d" % (va, va), "v_mov_b32 v%d, 0" % vb,
            "buffer_load_dword v%d, v%d, %s, 0 offen" % (va, va, s4(sA)),
            "buffer_load_dword v%d, v%d, %s, 0 offen sc1" % (va, vb, s4(sD)),
            "buffer_load_dword v%d, v%d, %s, 0 offen" % (va, vb, s4(sO))]


def store_offsets(specs):
    L = []
    for b, (base_sreg, add) in enumerate(specs):
        L += [["s_add_u32 s%d, s%d, %d" % (sU, base_sreg, add), "s_lshr_b32 s%d, s%d, 2" % (sU + 1, sU)],
              ["s_mul_i32 s%d, s%d, %d" % (sST + b, sU + 1, MT_STRIDE), "s_and_b32 s%d, s%d, 1" % (sU + 1, sU)],
              ["s_mul_i32 s%d, s%d, %d" % (sU + 1, sU + 1, CLS), "s_add_u32 s%d, s%d, s%d" % (sST + b, sST + b, sU + 1)],
              ["s_and_b32 s%d, s%d, 2" % (sU, sU), "s_lshl_b32 s%d, s%d, 9" % (sU, sU)],
              "s_add_u32 s%d, s%d, s%d" % (sST + b, sST + b, sU)]
    return L


vFO, vSH, vTO, vTG = 2, 3, 4, 6


def flag_setup():
    t = 8
    L = [["s_mul_i32 s%d, s%d, 43" % (sU, sMT), "s_lshr_b32 s%d, s%d, 7" % (sU, sU)],
         ["s_lshl_b32 s%d, s%d, 3" % (sU, sU), "s_mul_i32 s%d, s%d, %d" % (sU + 1, sMT, 4 * 187)],
         ["s_add_u32 s%d, s%d, %d" % (sU + 2, sU + 1, 3 * 187), "s_lshr_b32 s%d, s%d, 11" % (sU + 1, sU + 1)],
         ["s_lshr_b32 s%d, s%d, 11" % (sU + 2, sU + 2), "s_mul_i32 s%d, s%d, 14" % (sU + 1, sU + 1)],
         ["s_mul_i32 s%d, s%d, 14" % (sU + 2, sU + 2), "s_add_u32 s%d, s%d, 88" % (sU + 1, sU + 1)],
         "s_add_u32 s%d, s%d, 88" % (sU + 2, sU + 2),
         "v_and_b32 v%d, 15, v%d" % (t, vLANE), "v_min_u32 v%d, 13, v%d" % (t, t),
         "v_and_b32 v%d, 7, v%d" % (t + 1, vLANE), "v_add_u32 v%d, s%d, v%d" % (t + 1, sU, t + 1),
         "v_add_u32 v%d, s%d, v%d" % (t + 2, sU + 1, t), "v_add_u32 v%d, s%d, v%d" % (t + 3, sU + 2, t),
         "v_cmp_gt_u32 vcc, 16, v%d" % vLANE, "v_mov_b32 v%d, s%d" % (t, sPID),
         "v_cndmask_b32 v%d, v%d, v%d, vcc" % (t + 1, t + 2, t + 1),
         "v_cmp_gt_u32 vcc, 48, v%d" % vLANE,
         "v_cndmask_b32 v%d, v%d, v%d, vcc" % (t, t, t + 3),
         "v_cmp_gt_u32 vcc, 32, v%d" % vLANE,
         "v_cndmask_b32 v%d, v%d, v%d, vcc" % (t, t, t + 1),
         "v_lshlrev_b32 v%d, 7, v%d" % (vFO, t), "v_and_b32 v%d, 31, v%d" % (vSH, t),
         "v_lshrrev_b32 v%d, 5, v%d" % (t, t), "v_lshlrev_b32 v%d, 3, v%d" % (vTO, t)]
    return L


def tag_load():
    return "buffer_load_dwordx2 %s, v%d, %s, 0 offen sc1" % (v2(vTG), vTO, s4(sD))


class W2:
    AW2 = 128

    def __init__(self, sched, vW2):
        self.sched, self.vW2 = sched, vW2
        regs = list(range(32, 44))
        self.pat = regs[:4]
        self.lb = LdsBases(regs[4:], chunk=0x10000)
        for t in range(4):
            for ch in (1, 2):
                self.lb.addr(regs[t], ch * 0x10000)
        self.own = set(range(20))
        self.region = {}
        self.itime = {}
        self.nread = 0
        self.inflight_reads = []
        self.enabled = False
        self.eng = None
        for n in range(36):
            kb = n >> 1
            isO = kb < 4
            sr = sWO if isO else sWD
            sS = sW2o if isO else sS2
            for i in range(2):
                pre = []
                if i == 0 and n not in (0, 8):
                    if n == 4:
                        pre = ["s_xor_b32 s%d, s%d, 0x1c000" % (sS, sS)]
                    else:
                        pre = ["s_add_u32 s%d, s%d, 16384" % (sS, sS)]
                        if n % 4 == 0 and not isO:
                            pre += ["s_cmp_eq_u32 s%d, s%d" % (sS2, sW2e), "s_cselect_b32 s%d, s%d, s%d" % (sS2, sW2h, sS2)]
                sched.add(Dma('w2', ('w2', n), None, pre,
                              "buffer_load_dwordx4 v%d, %s, s%d offen offset:%d lds" % (vW2[i], s4(sr), sS, 1024 * i), 1000 + n, self.ok))

    def ok(self, d, commit):
        n = d.tag[1]
        if n not in self.region:
            if not self.enabled:
                return False
            c = [r for r in sorted(self.own) if self.eng.range_free(8192 * r, 8192 * r + 8192)]
            if not c:
                return False
            if commit:
                self.region[n] = c[0]
                self.own.discard(c[0])
        if commit:
            d.m0 = (sM2, 8192 * self.region[n])
        return True

    def mark_issue(self, n, now):
        self.itime.setdefault(n, []).append(now)

    def ready(self, now, cnt, lag=None):
        if lag is None:
            lag = OPT['lagf'] if any(t and t[0] in ('stA', 'stB') for t in self.eng.E.vm) else OPT['w2lag']
        out = []
        n = self.nread
        while len(out) < cnt and n < 16 and len(self.itime.get(n, [])) == 2 and self.itime[n][1] <= now - lag:
            out.append(n)
            n += 1
        return out

    def read_instrs(self, ns):
        out = []
        for n in ns:
            out += [(x, ('w2r', n)) for x in self.reads(n, lambda t: a2(self.AW2 + 16 * (n >> 1) + 4 * t + 2 * (n & 1)))]
            self.inflight_reads.append(n)
            self.nread = n + 1
        return out

    def recycle(self):
        for n in self.inflight_reads:
            self.own.add(self.region[n])
        self.inflight_reads = []

    def setup_dma(self):
        a, b = self.vW2
        return ["v_lshrrev_b32 v%d, 4, v%d" % (a, vLANE), "v_lshlrev_b32 v%d, 1, v%d" % (a, a),
                "v_and_b32 v%d, 7, v%d" % (b, vLANE), "v_xor_b32 v%d, v%d, v%d" % (a, a, b), "v_lshlrev_b32 v%d, 4, v%d" % (a, a),
                "v_lshrrev_b32 v%d, 3, v%d" % (b, vLANE), "v_lshl_add_u32 v%d, v%d, 10, v%d" % (a, b, a),
                ["s_lshl_b32 s%d, s%d, 7" % (sU, sNT), "v_add_u32 v%d, s%d, v%d" % (a, sU, a)],
                "v_add_u32 v%d, 7168, v%d" % (b, a)]

    def setup_rd(self):
        p = self.pat
        L = ["v_lshrrev_b32 v%d, 2, v%d" % (p[1], vLANE), "v_lshrrev_b32 v%d, 3, v%d" % (p[2], vLANE),
             "v_and_b32 v%d, 3, v%d" % (p[2], p[2]), "v_lshlrev_b32 v%d, 5, v%d" % (p[2], p[2]),
             "v_lshl_add_u32 v%d, v%d, 7, v%d" % (p[1], p[1], p[2]), "v_and_b32 v%d, 3, v%d" % (p[2], vLANE),
             "v_lshl_add_u32 v%d, v%d, 3, v%d" % (p[1], p[2], p[1]), "v_add_u32 v%d, s%d, v%d" % (p[0], sM2, p[1])]
        L += ["v_xor_b32 v%d, %d, v%d" % (p[t], 32 * t, p[0]) for t in range(1, 4)]
        return L + self.lb.setup

    def reads(self, n, dstf):
        out = []
        for t in range(4):
            r, o = self.lb.addr(self.pat[t], 8192 * self.region[n])
            out.append("ds_read_b64_tr_b16 %s, v%d offset:%d" % (dstf(t), r, o))
        return out

    def flush(self, E, keep):
        while True:
            if self.inflight_reads:
                E.wait(None, E.lg_need(lambda t: t[0] == 'w2r'))
                self.recycle()
            seq = self.sched.take(max(self.sched.pending() - keep, 0))
            for x in seq:
                E(x)
                if x[1] is not None:
                    self.mark_issue(x[1][1], E.now)
            ns = self.ready(E.now, 16, lag=0)
            if ns:
                E.wait(E.vm_need(lambda t: t[0] == 'w2' and t[1] <= ns[-1]), None)
                E(self.read_instrs(ns))
            if not seq and not ns:
                break
        assert self.nread == 16 and self.sched.pending() <= keep, (self.nread, self.sched.pending())


class Phase1:
    def __init__(self, typ, xslot, wbase, wslot, nws, wpitch, nwd, units, vW2):
        self.typ = typ
        CUR[0] = typ
        self.E = Emit()
        self.sched = Sched()
        self.w2 = W2(self.sched, vW2)
        vis = {('x', s): 2 * s - 1 for s in range(7)}
        vis.update({('w', t): t - 1 for t in range(13)})
        vis.update({('w', 13): OPT['v13'], ('w', 14): OPT['v14'], ('w', 15): 12, ('x', 7): OPT['v14'], ('gw', 0): -1})
        if OPT['chain']:
            vis.update({('w', t): (t & ~1) - 1 for t in range(12)})
        if OPT['fsplit']:
            vis.update({('w', 13): 12, ('w', 14): 13, ('w', 15): 14, ('x', 7): 13})
        for t in range(16):
            units[('w', t)] = (wbase + (t % nws) * wslot, wbase + (t % nws + 1) * wslot)
        self.eng = Engine(self.E, self.sched, self.w2, vis, units, age=OPT['age'], verbose=typ if OPT['verbose'] else None)
        self.w2.eng = self.eng
        nxd = 7 if typ == 'Q' else 6
        for s in range(8):
            slot = (s % NXS) * xslot
            for d in range(nxd):
                m0 = (sMX, slot) if d < 4 else (sMX, slot + 4096) if d < 6 else (sM7, slot + 24576)
                imm = 1024 * (d & 3) if d < 6 else 0
                pre = stage_pre(s, sKX, 128) if d == 0 else []
                ok = None if s < NXS else (lambda dd, c, s=s: self.eng.released(('x', s - NXS)))
                self.sched.add(Dma('x', ('x', s), m0, pre,
                                   "buffer_load_dwordx4 v%d, %s, s%d offen offset:%d lds" % (vXD + d, s4(sX), sKX, imm), vis[('x', s)] + 0.5, ok))
        for t in range(16):
            slot = wbase + (t % nws) * wslot
            for e in range(nwd):
                pre = []
                if e == 0:
                    pre = stage_pre(t >> 1, sKW, 64 * wpitch) if t % 2 == 0 else ["s_add_u32 s%d, s%d, %d" % (sKW, sKW, 32 * wpitch)]
                ok = None if t < nws else (lambda dd, c, t=t: self.eng.released(('w', t - nws)))
                self.sched.add(Dma('w', ('w', t), (sMW, slot), pre,
                                   "buffer_load_dwordx4 v%d, %s, s%d offen offset:%d lds" % (vWD + e, s4(sW), sKW, 1024 * e), vis[('w', t)] + 1, ok))

    def run(self, PF, segs, stamps):
        E, eng = self.E, self.eng
        eng.plan(segs)
        E(PF.stamp())
        eng.barrier(-1)
        while eng.next_read():
            pass
        for si, sg in enumerate(segs):
            if si in stamps:
                E(PF.stamp())
            elif OPT['sall'] and si > 12:
                E(["%s s[100:101]" % ("s_memtime" if OPT['prof'] == 1 else "s_memrealtime"), "s_waitcnt lgkmcnt(0)", "v_writelane_b32 v%d, s100, %d" % (PF.v, 16 + si - 13)])
            self.w2.enabled = si >= OPT['w2t']
            if sg.get('need_dma_done'):
                assert not self.sched.pending('x') and not self.sched.pending('w')
            sg.setdefault('w2key', si + OPT['w2prio'] + 0.25)
            eng.run_seg(si, sg)


def U(L):
    return [(x, 'untracked') for x in L]


def flag_store(val_reg, lab):
    return U(["s_cmp_lg_u32 s%d, 0" % sWV, "s_cbranch_scc1 %s" % lab,
              "s_mov_b32 exec_lo, 0", "s_brev_b32 exec_hi, 1",
              "buffer_store_dword v%d, v%d, %s, 0 offen sc1" % (val_reg, vFO, s4(sF)),
              "s_mov_b64 exec, -1", "%s:" % lab])


def tag_check(lab):
    return U(["s_mov_b32 s%d, 0" % sU,
              "%s_tag:" % lab,
              "v_cmp_eq_u32 vcc, 0, v%d" % (vTG + 1),
              "s_cmp_eq_u64 vcc, 0", "s_cbranch_scc1 %s_tagok" % lab,
              tag_load(), "s_add_u32 s%d, s%d, 1" % (sU, sU), "s_waitcnt vmcnt(0)",
              "s_cmp_lt_u32 s%d, 0x8000" % sU, "s_cbranch_scc1 %s_tag" % lab,
              "%s_tagok:" % lab,
              "v_lshrrev_b32 v%d, v%d, v%d" % (vTG, vSH, vTG), "v_and_b32 v%d, 1, v%d" % (vTG, vTG),
              "v_or_b32 v%d, 2, v%d" % (vTG + 1, vTG)])


def pub_seg(sg, PF, lab):
    sg['barrier'] = True
    sg['extra_vm'] = lambda t: t[0] in ('stA', 'tag')
    sg['pre'] = tag_check(lab)
    sg['post'] = flag_store(vTG, lab + "_fa") + PF.xstamp(40)


def pub_inline(E, PF, lab):
    E.wait(E.vm_need(lambda t: t[0] in ('stA', 'tag')), None)
    E(tag_check(lab))
    E("s_barrier")
    E(flag_store(vTG, lab + "_fa") + PF.xstamp(40))


def poll_check(vP, mask, want, lab):
    return U(["s_mov_b32 s%d, 0" % sU,
              "%s:" % lab,
              "v_and_b32 v%d, %d, v%d" % (vP, mask, vP),
              "v_cmp_ne_u32 vcc, v%d, v%d" % (want, vP),
              "s_cmp_eq_u64 vcc, 0", "s_cbranch_scc1 %s_ok" % lab,
              "buffer_load_dword v%d, v%d, %s, 0 offen sc1" % (vP, vFO, s4(sF)),
              "s_add_u32 s%d, s%d, 1" % (sU, sU),
              "s_waitcnt vmcnt(0)",
              "s_cmp_lt_u32 s%d, 0x8000" % sU, "s_cbranch_scc1 %s" % lab,
              "%s_ok:" % lab])


def pick_regions(cands):
    c = sorted(cands)
    for i in range(len(c) - 3):
        if c[i + 3] - c[i] <= 7:
            return c[i:i + 4]
    raise AssertionError(cands)


vAD, vOUT, vP, vXR, vG, vXW, vT = 13, 15, 16, 18, 20, 44, 52
POLL = "buffer_load_dword v%d, v%d, %s, 0 offen sc1" % (vP, vFO, s4(sF))


def phase2(P1, PF, lab):
    E, w2 = P1.E, P1.w2
    AC = {(0, 'o'): 64, (0, 'h'): 96, (1, 'o'): 128, (1, 'h'): 160}
    VWF = 192
    sSA0 = sS3
    w2.flush(E, 0)
    R1 = pick_regions([w2.region[n] for n in range(16, 24)])
    R2 = pick_regions([r for r in range(20) if r not in R1])
    E(["v_lshlrev_b32 v%d, 4, v%d" % (vAD, vLANE), "s_mov_b32 s%d, s%d" % (sSA0, sSA), "s_mov_b32 s%d, s%d" % (sSA, sAo)])
    E.wait(E.vm_need(lambda t: t[0] == 'pa'), None)
    E(PF.stamp())
    E(poll_check(vP, 1, vTG, lab + "_pa"))
    E(PF.stamp())
    LA, NAB = OPT['la'], 7

    def issue(st):
        p, u = divmod(st, 9)
        out = []
        for i in range(4):
            gq = [("buffer_load_dwordx4 %s, v%d, %s, s%d offen offset:%d sc1" % (a4(16 * (st % NAB) + 4 * i), vAD + p, s4(sA), sSA, 1024 * i), ('a', st))]
            if i == 3 and st < 17:
                if u == 8:
                    gq += ["s_mov_b32 s%d, s%d" % (sSA, sAo)]
                elif u == 0:
                    gq += ["s_xor_b32 s%d, s%d, 0x1000" % (sSA, sAo)]
                elif u == 1:
                    gq += ["s_mov_b32 s%d, s%d" % (sSA, sSA0)]
                else:
                    gq += ["s_add_u32 s%d, s%d, 4096" % (sSA, sSA),
                           "s_cmp_eq_u32 s%d, s%d" % (sSA, sAe), "s_cselect_b32 s%d, s%d, s%d" % (sSA, sAh, sSA)]
            out.append(gq)
        return out
    nxt = 0
    for st in range(OPT['la0']):
        E(issue(st))
        nxt += 1
    L = []
    m, g = vT, vT + 1
    L += ["v_and_b32 v%d, 15, v%d" % (m, vLANE), "v_lshrrev_b32 v%d, 4, v%d" % (g, vLANE),
          "s_lshl_b32 s%d, s%d, 8" % (sU, sMT), "v_lshl_add_u32 v%d, v%d, 2, s%d" % (vG + 4, m, sU),
          "v_add_u32 v%d, %d, v%d" % (vAD + 1, CLS, vAD)]
    L += srd(sG, pWS, 8192, add=G_OFF)
    L += [("buffer_load_dword v%d, v%d, %s, 0 offen offset:%d sc1" % (vG + r, vG + 4, s4(sG), 64 * r), ('g', 0)) for r in range(4)]
    L += ["v_and_b32 v%d, 2, v%d" % (vT + 2, g), "v_xor_b32 v%d, v%d, v%d" % (vT + 2, vT + 2, m),
          "v_lshl_add_u32 v%d, v%d, 4, v%d" % (vT + 2, g, vT + 2), "v_lshl_add_u32 v%d, v%d, 4, s%d" % (vT + 2, vT + 2, sM2)]
    for t in range(4):
        L += ["v_xor_b32 v%d, %d, v%d" % (vT + 3, 64 * t, vT + 2)]
        for e, R in enumerate((R1, R2)):
            L += ["v_add_u32 v%d, %d, v%d" % (vXW + 4 * e + t, 8192 * R[t >> 1] + 1024 * (t & 1), vT + 3)]
    c, mm = vT, vT + 1
    L += ["v_and_b32 v%d, 7, v%d" % (c, vLANE), "v_lshrrev_b32 v%d, 3, v%d" % (mm, vLANE),
          "s_and_b32 s%d, s%d, 1" % (sU, sWV), "s_lshl_b32 s%d, s%d, 3" % (sU, sU), "v_add_u32 v%d, s%d, v%d" % (mm, sU, mm),
          "s_lshl_b32 s%d, s%d, 1" % (sU + 1, sMT), "s_lshr_b32 s%d, s%d, 1" % (sU + 2, sWV), "s_add_u32 s%d, s%d, s%d" % (sU + 1, sU + 1, sU + 2),
          "s_lshl_b32 s%d, s%d, 15" % (sU + 1, sU + 1), "s_lshl_b32 s%d, s%d, 7" % (sU + 3, sNT), "s_add_u32 s%d, s%d, s%d" % (sU + 1, sU + 1, sU + 3),
          "v_lshl_add_u32 v%d, v%d, 4, s%d" % (vOUT, c, sU + 1), "v_lshl_add_u32 v%d, v%d, 11, v%d" % (vOUT, mm, vOUT),
          "v_lshlrev_b32 v%d, 1, v%d" % (vT + 2, c), "v_xor_b32 v%d, v%d, v%d" % (mm, mm, vT + 2), "v_lshlrev_b32 v%d, 4, v%d" % (mm, mm),
          "v_and_b32 v%d, 3, v%d" % (vT + 2, c), "v_lshl_add_u32 v%d, v%d, 9, v%d" % (mm, vT + 2, mm),
          "v_lshrrev_b32 v%d, 2, v%d" % (c, c)]
    for e, R in enumerate((R1, R2)):
        L += ["s_cmp_eq_u32 s%d, 0" % (sU + 2),
              "s_mov_b32 s%d, %d" % (sU + 4, 8192 * R[2]), "s_cselect_b32 s%d, %d, s%d" % (sU + 4, 8192 * R[0], sU + 4),
              "s_mov_b32 s%d, %d" % (sU + 5, 8192 * (R[3] - R[2])), "s_cselect_b32 s%d, %d, s%d" % (sU + 5, 8192 * (R[1] - R[0]), sU + 5),
              "v_mad_u32_u24 v%d, v%d, s%d, v%d" % (vXR + e, c, sU + 5, mm), "v_add_u32 v%d, s%d, v%d" % (vXR + e, sU + 4, vXR + e)]
    E(L)
    E.wait(E.vm_need(lambda t: t[0] in ('stA', 'stB')), None)
    E("s_barrier")
    E(flag_store(vTG + 1, lab + "_fb"))

    def wfrag(kb, t):
        return a4(W2.AW2 + 16 * kb + 4 * t) if kb < 8 else v4(VWF + 16 * (kb & 3) + 4 * t)

    def xw(e, q, t, src):
        R = (R1, R2)[e]
        return "ds_write_b128 v%d, %s offset:%d" % (vXW + 4 * e + t, v4(src), 8192 * (R[2 + (t >> 1)] - R[t >> 1]) * q)

    def xr(e, dst):
        return ["ds_read_b128 %s, v%d offset:%d" % (v4(dst + 8 * w + 4 * h), vXR + e, 2048 * w + 256 * h) for w in range(4) for h in range(2)]

    def fin(p, dst):
        return ["v_cvt_pk_bf16_f32 v%d, v%d, v%d" % (dst + i, dst + 2 * i, dst + 2 * i + 1) for i in range(4)] + \
               ["buffer_store_dwordx4 %s, v%d, %s, 0 offen offset:%d%s" % (v4(dst), vOUT, s4(sO), 1024 * p, ["", " sc1", " nt", " sc0 sc1"][OPT['outsc']])]
    pollst = OPT['pollst']
    chk = 9 - LA
    assert pollst < chk
    O0, H0, O1, H1 = AC[(0, 'o')], AC[(0, 'h')], AC[(1, 'o')], AC[(1, 'h')]
    ex = {}
    mul0 = ["v_mul_f32 v%d, v%d, v%d" % (O0 + i, O0 + i, vG + 2 * (i >> 4)) for i in range(32)]
    fma0 = ["v_fma_f32 v%d, v%d, v%d, v%d" % (H0 + i, H0 + i, vG + 4 + 2 * (i >> 4), O0 + i) for i in range(32)]
    mul1 = ["v_mul_f32 v%d, v%d, v%d" % (O1 + i, O1 + i, vG + 1 + 2 * (i >> 4)) for i in range(32)]
    ex[2] = mul0[:18]
    ex[8] = mul0[18:] + ["v_sub_f32 v%d, 1.0, v%d" % (vG + 4 + r, vG + r) for r in range(4)]
    ex[9] = fma0[:14]
    ex[10] = fma0[14:]
    ex[11] = mul1[:18]
    ex[12] = mul1[18:22]
    ex[13] = mul1[22:26]
    ex[15] = [xw(0, q, t, H0 + 16 * q + 4 * t) for q in range(2) for t in range(4)]
    ex[16] = xr(0, O0)
    add0 = ["v_add_f32 v%d, v%d, v%d" % (O0 + i, O0 + i, O0 + 8 + i) for i in range(8)] + \
           ["v_add_f32 v%d, v%d, v%d" % (O0 + 16 + i, O0 + 16 + i, O0 + 24 + i) for i in range(8)] + \
           ["v_add_f32 v%d, v%d, v%d" % (O0 + i, O0 + i, O0 + 16 + i) for i in range(8)]
    ex[16] += mul1[26:]
    ex[17] = add0 + fin(0, O0)
    for st in range(18):
        p, u = divmod(st, 9)
        E.wait(E.vm_need(lambda g_: (g_[0] == 'a' and g_[1] <= st) or (st == chk and g_[0] == 'pb') or (st == 2 and g_[0] == 'g')),
               E.lg_need(lambda t_: t_ == ('f', st, 0) or (st == 16 and t_[0] == 'xw') or (st == 17 and t_[0] == 'xr')))
        if st == 16:
            E("s_barrier")
        if st == chk:
            E(poll_check(vP, 3, vTG + 1, lab + "_pb"))
        if st in (0, 9):
            E(PF.stamp())
        rd = []
        if 4 <= u + 1 < 9:
            for k, kb in enumerate((2 * u + 2, 2 * u + 3)):
                for h in range(2):
                    rd += [(x, ('f', st + 1, k)) for x in w2.reads(2 * kb + h, lambda t: v2(VWF + 16 * (kb & 3) + 4 * t + 2 * h))]
        dm = []
        for _ in range(2):
            if nxt < 18 and nxt <= st + LA:
                dm += issue(nxt)
                nxt += 1
        if st == pollst:
            dm += [[(POLL, ('pb', 0))]]
        acc = AC[(p, 'o' if u < 2 else 'h')]
        mf = []
        order = [(q, t, k) for k in range(2) for q in range(2) for t in range(4)] if u >= 4 else \
                [(q, t, k) for q in range(2) for t in range(4) for k in range(2)]
        for q, t, k in order:
            d = v4(acc + 16 * q + 4 * t)
            mf.append("v_mfma_f32_16x16x32_bf16 %s, %s, %s, %s" % (d, wfrag(2 * u + k, t), a4(16 * (st % NAB) + 8 * k + 4 * q),
                                                                "0" if (u in (0, 2) and k == 0) else d))
        gaps = [[] for _ in mf]
        load = [0] * 16
        load[15] += 4
        if u >= 4:
            load[7] += 4
        sal = []
        vpos = []
        for i, gg in enumerate(dm):
            pos = min(i * OPT['ldsp'], 14) if len(dm) <= 5 else min(i * 2, 15)
            gaps[pos] += sal + [gg[0]]
            load[pos] += 8 + 4 * len(sal)
            sal = []
            if len(gg) > 1:
                rest = gg[1:]
                nx = min(pos + 1, 15)
                gaps[nx] += rest[:1]
                load[nx] += 4
                if len(rest) > 1:
                    nx = min(pos + (2 if len(dm) <= 5 and OPT['ldsp'] > 2 else 1), 15)
                    gaps[nx] += rest[1:]
                    load[nx] += 8

        def put(items, lo, hi):
            g = lo
            m = len(items)
            for i, it in enumerate(items):
                c = 8 if it[0].startswith(("ds_write", "buffer_")) else 4
                room = sum(max(0, 8 - load[z]) for z in range(g, hi))
                cap = 8
                while room < 4 * (m - i):
                    cap += 4
                    room = sum(max(0, cap - load[z]) for z in range(g, hi))
                while g < hi - 1 and load[g] + c > max(cap, c):
                    g += 1
                gaps[g].append(it)
                load[g] += c
        e = ex.get(st, [])
        dsx = [(x, ('xw',) if x.startswith("ds_write") else ('xr',)) for x in e if x.startswith("ds_")]
        put(rd[:8] + dsx + rd[8:], 0, 16)
        put([(x, None) for x in e if not x.startswith("ds_")], 3 if st in (2, 9, 11) else 0, 16)
        for i, (m_, gg) in enumerate(zip(mf, gaps)):
            if i == 8 and u >= 4:
                E.wait(None, E.lg_need(lambda t_: t_ == ('f', st, 1)))
            E(m_)
            E(gg)
    L = PF.stamp()
    for q in range(2):
        for i in range(0, 16, 2):
            L += ["v_pk_fma_f32 %s, %s, %s, %s op_sel:[0,1,0] op_sel_hi:[1,1,1]" % (v2(H1 + 16 * q + i), v2(H1 + 16 * q + i), v2(vG + 4 + 2 * q), v2(O1 + 16 * q + i))]
            if i % 4 == 2:
                L += [xw(1, q, i >> 2, H1 + 16 * q + (i & ~3))]
    L += ["s_waitcnt lgkmcnt(0)", "s_barrier"] + xr(1, O1)
    L += ["s_waitcnt lgkmcnt(4)"]
    L += ["v_pk_add_f32 %s, %s, %s" % (v2(O1 + i), v2(O1 + i), v2(O1 + 8 + i)) for i in range(0, 8, 2)]
    L += ["s_waitcnt lgkmcnt(0)"]
    L += ["v_pk_add_f32 %s, %s, %s" % (v2(O1 + 16 + i), v2(O1 + 16 + i), v2(O1 + 24 + i)) for i in range(0, 8, 2)]
    L += ["v_pk_add_f32 %s, %s, %s" % (v2(O1 + i), v2(O1 + i), v2(O1 + 16 + i)) for i in range(0, 8, 2)]
    L += fin(1, O1)
    L += PF.stamp() + PF.dump() + ["s_endpgm"]
    E(L)


def gen_H():
    PF = Prof(31)
    L = PF.stamp()
    L += ["s_mul_i32 s%d, s%d, 21" % (sT, sXCD), "s_add_u32 s%d, s%d, s%d" % (sT, sT, sIDX), "s_sub_u32 s%d, s%d, 11" % (sT, sT),
          "s_mul_i32 s%d, s%d, 171" % (sCG, sT), "s_lshr_b32 s%d, s%d, 11" % (sCG, sCG),
          "s_mul_i32 s%d, s%d, 12" % (sT + 1, sCG), "s_sub_u32 s%d, s%d, s%d" % (sT, sT, sT + 1),
          "s_mul_i32 s%d, s%d, 11" % (sRB0, sT),
          "s_mul_i32 s%d, s%d, 14" % (sPID, sT), "s_add_u32 s%d, s%d, s%d" % (sPID, sPID, sCG), "s_add_u32 s%d, s%d, 88" % (sPID, sPID),
          "s_mul_i32 s%d, s%d, %d" % (sROT, sCG, OPT['rotb']), "s_add_u32 s%d, s%d, s%d" % (sROT, sT, sROT)]
    L += rot_fix('H')
    x_setup(L, 'H')
    L += ["v_and_b32 v38, 1, v33", "v_lshlrev_b32 v38, 1, v38", "v_xor_b32 v38, v34, v38", "v_lshlrev_b32 v38, 4, v38",
          "s_movk_i32 s%d, 3584" % sT, "v_mad_u32_u24 v38, v32, s%d, v38" % sT, "v_xor_b32 v39, 64, v38",
          "s_and_b32 s%d, s%d, 1" % (sT, sWV), "s_lshl_b32 s%d, s%d, 7" % (sT, sT),
          "s_lshl_b32 s%d, s%d, 8" % (sT + 1, sCG), "s_add_u32 s%d, s%d, s%d" % (sT, sT, sT + 1)]
    for e in range(4):
        L += ["s_add_u32 s%d, s%d, %d" % (sT + 1, sT, e * (8 * 3584 - 1024)), "v_add_u32 v%d, s%d, v%d" % (vWD + e, sT + 1, 38 + (e & 1))]
    L += ["s_mul_i32 s%d, s%d, 6144" % (sMX, sWV), "s_lshl_b32 s%d, s%d, 12" % (sMW, sWV)]
    L += ["s_waitcnt lgkmcnt(0)"] + PF.xstamp(50)
    L += srd(sX, pX, 2048 * 1024, bias=4096)
    L += ["s_cmp_lt_u32 s%d, 2" % sWV, "s_cselect_b32 s%d, s%d, s%d" % (sW, pWG, pWU), "s_cselect_b32 s%d, s%d, s%d" % (sW + 1, pWG + 1, pWU + 1),
          "s_mov_b32 s%d, %d" % (sW + 2, 512 * 3584), "s_mov_b32 s%d, 0x20000" % (sW + 3)]
    XS, WB, WS, NWS = 24576, 24576 * NXS, 16384, OPT['nwsH']
    units = {}
    for st in range(8):
        lo = (st % NXS) * XS
        if st < 6:
            units[('x', st)] = (lo, lo + XS)
        else:
            for k in range(3):
                units[('x', st, k)] = (lo + 8192 * k, lo + 8192 * k + 8192)
    P1 = Phase1('H', XS, WB, WS, NWS, 3584, 4, units, (62, 0))
    E = P1.E
    lb = LdsBases(range(vRD + 4, 31))
    vx0, vx1, vw0, vw1 = vRD, vRD + 1, vRD + 2, vRD + 3
    S2 = ["v_and_b32 v40, 15, v%d" % vLANE, "v_lshrrev_b32 v41, 1, v40", "v_xor_b32 v41, v41, v33",
          "v_lshlrev_b32 v41, 4, v41", "v_lshl_add_u32 v%d, v40, 7, v41" % vx0, "v_xor_b32 v%d, 64, v%d" % (vx1, vx0)]
    S2 += ["v_lshrrev_b32 v42, 2, v40", "v_lshl_add_u32 v43, v33, 3, v42",
           "v_lshrrev_b32 v44, 1, v42", "v_and_b32 v45, 1, v33", "v_lshl_add_u32 v44, v45, 1, v44",
           "s_and_b32 s%d, s%d, 1" % (sT, sWV), "s_lshl_b32 s%d, s%d, 1" % (sT, sT), "v_xor_b32 v44, s%d, v44" % sT,
           "v_lshlrev_b32 v44, 5, v44", "v_lshl_add_u32 v43, v43, 7, v44",
           "v_and_b32 v45, 3, v%d" % vLANE, "v_lshl_add_u32 v43, v45, 3, v43",
           "s_lshr_b32 s%d, s%d, 1" % (sT, sWV), "s_lshl_b32 s%d, s%d, 12" % (sT, sT),
           "v_add_u32 v%d, s%d, v43" % (vw0, sT), "v_xor_b32 v%d, 32, v%d" % (vw1, vw0)]
    ops = {}

    def X(t, b):
        if ('x', t, b) not in ops:
            r, o = lb.addr(vx1 if (t & 1) else vx0, ((t >> 1) % NXS) * XS + 2048 * b)
            st = t >> 1
            ops[('x', t, b)] = Operand(('x', t, b), lambda q: ["ds_read_b128 %s, v%d offset:%d" % (a4(q), r, o)], ('x', st),
                                       ('x', st) if st < 6 else ('x', st, b >> 2))
        return ops[('x', t, b)]

    def W(t, q):
        if ('w', t, q) not in ops:
            ad = [lb.addr(vw1 if (q & 1) else vw0, WB + (t % NWS) * WS + (8192 if q >= 2 else 0) + 512 * h) for h in range(2)]
            ops[('w', t, q)] = Operand(('w', t, q), lambda qq: ["ds_read_b64_tr_b16 %s, v%d offset:%d" % (a2(qq + 2 * h), ad[h][0], ad[h][1]) for h in range(2)],
                                       ('w', t), ('w', t))
        return ops[('w', t, q)]
    D = lambda b, q: ACC + 16 * b + 4 * q
    vST = 61
    ES = ["s_mov_b32 s%d, 0x%x" % (sC0, NLOG2E), "s_mov_b32 s%d, 0x%x" % (sC0 + 1, NLOG2E),
          "s_mov_b32 s%d, 1.0" % (sC0 + 2), "s_mov_b32 s%d, 1.0" % (sC0 + 3),
          ["s_lshl_b32 s%d, s%d, 2" % (sU, sCG), "s_add_u32 s%d, s%d, s%d" % (sU, sU, sWV)],
          ["s_add_u32 s%d, s%d, 16" % (sU, sU), "s_lshl_b32 s%d, s%d, 11" % (sU, sU)],
          "v_lshlrev_b32 v%d, 4, v%d" % (vST, vLANE), "v_add_u32 v%d, s%d, v%d" % (vST, sU, vST)]
    ES += [["s_add_u32 s%d, s%d, s%d" % (sU + 2, sRB0, sPAR), "s_sub_u32 s%d, s%d, s%d" % (sU + 3, sRB0, sPAR)]]
    so = store_offsets([(sU + 2, 2 * b) for b in range(5)] + [(sRB0, 10)] + [(sU + 3, 1 + 2 * b) for b in range(5)])
    stf = ["", " sc1", " nt", " sc1 nt"][OPT['stsc']]

    def store(b):
        return ("buffer_store_dwordx4 %s, v%d, %s, s%d offen%s" % (v4(ACC + 16 * b), vST, s4(sA), sST + b, stf), ('stA' if b < 6 else 'stB', b))

    def epi(b, pk):
        G = [ACC + 16 * b + i for i in range(8)]
        Uu = [ACC + 16 * b + 8 + i for i in range(8)]
        if pk:
            T = ["v_pk_mul_f32 %s, %s, s[%d:%d]" % (v2(G[i]), v2(G[i]), sC0, sC0 + 1) for i in range(0, 8, 2)]
            T += ["v_exp_f32 v%d, v%d" % (g, g) for g in G]
            T += ["v_pk_add_f32 %s, %s, s[%d:%d]" % (v2(G[i]), v2(G[i]), sC0 + 2, sC0 + 3) for i in range(0, 8, 2)]
            T += ["v_rcp_f32 v%d, v%d" % (g, g) for g in G]
            T += ["v_pk_mul_f32 %s, %s, %s" % (v2(Uu[i]), v2(Uu[i]), v2(G[i])) for i in range(0, 8, 2)]
        else:
            T = ["v_mul_f32 v%d, s%d, v%d" % (g, sC0, g) for g in G]
            T += ["v_exp_f32 v%d, v%d" % (g, g) for g in G]
            T += ["v_add_f32 v%d, 1.0, v%d" % (g, g) for g in G]
            T += ["v_rcp_f32 v%d, v%d" % (g, g) for g in G]
            T += ["v_mul_f32 v%d, v%d, v%d" % (u, u, g) for u, g in zip(Uu, G)]
        T += ["v_cvt_pk_bf16_f32 v%d, v%d, v%d" % (G[i], Uu[2 * i], Uu[2 * i + 1]) for i in range(4)]
        return T + [store(b)]
    extra = {0: P1.w2.setup_dma(), 1: P1.w2.setup_rd(), 5: ES, 6: so[:15], 7: so[15:30], 8: so[30:45], 9: so[45:]}
    extra[OPT['wt']] = extra.get(OPT['wt'], []) + warmups(58, 59)
    extra[OPT['vt']] = extra.get(OPT['vt'], []) + vtouch(56, 57)
    segs = []
    for t in range(12):
        if OPT['chain']:
            al = [(D(b, q), W(k, q), X(k, b), k == 0) for b in range(11) for q in (range(4) if (b % 2 == 0 or OPT['chain'] == 1) else range(3, -1, -1))
                  for k in ((t & ~1, t | 1) if (q % 2 == 0 or OPT['chain'] < 3 or t < 2) else (t | 1, t & ~1))]
            mfl = al[44 * (t & 1):44 * (t & 1) + 44]
        else:
            mfl = [(D(b, q), W(t, q), X(t, b), t == 0) for b in range(11) for q in range(4)]
        segs.append(dict(mf=mfl,
                         fill=extra.get(t, []), ndma=OPT['maxd'] if t >= 4 else OPT['maxd0'], nw2r=OPT['nrm']))
    F = OPT['fH']
    fs = flag_setup() + [(tag_load(), ('tag', 0))]
    if OPT['fsplit']:
        for t in range(12, 16):
            segs.append(dict(mf=[(D(b, q), W(t, q), X(t, b), False) for b in range(F) for q in range(4)],
                             fill=fs[:12] if t == 14 else fs[12:] if t == 15 else [], ndma=(OPT['maxd'] * 4 * F + 22) // 44, nw2r=1, need_dma_done=(t == 14), rdrate=2))
    else:
        segs.append(dict(mf=[(D(b, q), W(t, q), X(t, b), False) for t in range(12, 16) for b in range(F) for q in range(4)],
                         fill=fs, ndma=(OPT['maxd'] * 16 * F) // 44, nw2r=2, need_dma_done=True, rdrate=2))
    s0 = len(segs)
    queue = []
    nfused = 10
    ready = F
    taken = 0
    allq = [x for b in range(nfused) for x in epi(b, False)]
    for b in range(F, 11):
        n = min(OPT['quota'] or -(-45 * nfused // (11 - F)), 45 * min(b, nfused) - taken)
        si = len(segs)
        segs.append(dict(mf=[(D(b, q), W(t, q), X(t, b), False) for q in range(4) for t in range(12, 16)],
                         fill=allq[taken:taken + n], ndma=OPT['fdH'], nw2r=OPT['nwf'], barrier=bool((OPT['barH'] >> (si - s0)) & 1),
                         force_release=(b == 10)))
        if b == OPT['pubH']:
            assert taken >= 270
            pub_seg(segs[-1], PF, "H")
        taken += n
    segs[-1]['barrier'] = True
    if OPT['ppH']:
        f = segs[-1]['fill']
        f.insert(len(f) * (10 - OPT['ppH']) // 10, (POLL, ('pa', 0)))
    for x in P1.sched.take(10):
        E(x)
    E(PF.xstamp(51) + tlb_warm() + S2 + ["@LB"] + late_scalar_setup())
    for x in P1.sched.take(OPT['npro'] - 10):
        E(x)
    P1.run(PF, segs, (0, 4, 8, 12))
    E(PF.stamp())
    if OPT['pubH'] > 10:
        pub_inline(E, PF, "H")
    P1.w2.flush(E, OPT['keep'])
    if not OPT['ppH']:
        E(POLL, ('pa', 0))
    E(allq[taken:] + epi(10, True))
    E(PF.stamp())
    phase2(P1, PF, "H")
    i = E.L.index("@LB")
    return L + E.L[:i] + lb.setup + E.L[i + 1:]


def gen_Q():
    PF = Prof(10 if False else 31)
    L = PF.stamp()
    L += ["s_mov_b32 s%d, s%d" % (sCG, sXCD), "s_mul_i32 s%d, s%d, 12" % (sRB0, sIDX),
          "s_lshl_b32 s%d, s%d, 3" % (sPID, sIDX), "s_add_u32 s%d, s%d, s%d" % (sPID, sPID, sXCD),
          "s_add_u32 s%d, s%d, s%d" % (sROT, sIDX, sXCD), "s_add_u32 s%d, s%d, %d" % (sROT, sROT, OPT['rotq'])]
    L += rot_fix('Q')
    x_setup(L, 'Q')
    L += ["s_lshl_b32 s%d, s%d, 4" % (sT, sRB0), "s_add_u32 s%d, s%d, s%d" % (sT, sT, sWV),
          "s_sub_u32 s%d, s%d, 16" % (sT, sT), "s_lshl_b32 s%d, s%d, 10" % (sT, sT), "s_add_u32 s%d, s%d, 4096" % (sT, sT),
          "s_cmp_eq_u32 s%d, 0" % sRB0, "s_cselect_b32 s%d, 0x%x, s%d" % (sT, BIG, sT),
          "s_cmp_ge_u32 s%d, 2" % sWV, "s_cselect_b32 s%d, 0x%x, s%d" % (sT, BIG, sT),
          "s_and_b32 s%d, s%d, 1" % (sT + 1, sWV), "s_lshl_b32 s%d, s%d, 6" % (sT + 1, sT + 1),
          "v_xor_b32 v38, s%d, v36" % (sT + 1), "v_add_u32 v%d, s%d, v38" % (vXD + 6, sT)]
    L += ["v_and_b32 v38, 1, v33", "v_lshlrev_b32 v38, 1, v38", "v_xor_b32 v38, v34, v38", "v_lshlrev_b32 v38, 4, v38",
          "s_movk_i32 s%d, 3072" % sT, "v_mad_u32_u24 v38, v32, s%d, v38" % sT,
          "s_mul_i32 s%d, s%d, 3" % (sT, sWV), "s_lshl_b32 s%d, s%d, 7" % (sT + 4, sCG)]
    for e in range(3):
        L += ["s_add_u32 s%d, s%d, %d" % (sT + 1, sT, e),
              "s_and_b32 s%d, s%d, 3" % (sT + 2, sT + 1), "s_mul_i32 s%d, s%d, %d" % (sT + 2, sT + 2, 8 * 3072),
              "s_lshr_b32 s%d, s%d, 2" % (sT + 3, sT + 1), "s_lshl_b32 s%d, s%d, 10" % (sT + 3, sT + 3),
              "s_add_u32 s%d, s%d, s%d" % (sT + 2, sT + 2, sT + 3), "s_add_u32 s%d, s%d, s%d" % (sT + 2, sT + 2, sT + 4),
              "s_sub_u32 s%d, s%d, %d" % (sT + 2, sT + 2, 1024 * e),
              "s_and_b32 s%d, s%d, 1" % (sT + 1, sT + 1), "s_lshl_b32 s%d, s%d, 6" % (sT + 1, sT + 1),
              "v_xor_b32 v39, s%d, v38" % (sT + 1), "v_add_u32 v%d, s%d, v39" % (vWD + e, sT + 2)]
    L += ["s_mul_i32 s%d, s%d, 6144" % (sMX, sWV), "s_mul_i32 s%d, s%d, 3072" % (sMW, sWV), "s_lshl_b32 s%d, s%d, 10" % (sM7, sWV)]
    L += ["v_lshlrev_b32 v39, 2, v32", "s_mov_b32 s%d, 0x%x" % (sT, OPT['masks'] & 0x77777777),
          "v_lshrrev_b32 v39, v39, s%d" % sT, "s_and_b32 s%d, s%d, 7" % (sT + 1, sROT), "v_and_b32 v39, s%d, v39" % (sT + 1),
          "v_xor_b32 v39, v39, v32", "v_lshl_add_u32 v39, v39, 3, v34", "v_lshlrev_b32 v39, 4, v39"]
    L += ["s_waitcnt lgkmcnt(0)"] + PF.xstamp(50)
    L += srd(sX, pX, 2048 * 1024, bias=4096) + srd(sW, pQKV, 512 * 3072) + srd(sG, pGW, 1024)
    XS, WB, WS, NWS = 28672, 28672 * NXS, 12288, OPT['nwsQ']
    GW = WB + NWS * WS
    L += ["s_mov_b32 m0, %d" % GW, "s_nop 0", "buffer_load_dwordx4 v39, %s, 0 offen lds" % s4(sG)]
    units = {('x', st): ((st % NXS) * XS, (st % NXS + 1) * XS) for st in range(8)}
    units[('gw', 0)] = (GW, GW + 1024)
    P1 = Phase1('Q', XS, WB, WS, NWS, 3072, 3, units, (12, 0))
    E = P1.E
    lb = LdsBases(range(vRD + 9, 31))
    lb2 = LdsBases(range(44, 48))
    vx0, vx1, vw0, vw1, vh0, vh1, vt0, vt1, vg = [vRD + i for i in range(9)]
    S2 = ["v_and_b32 v40, 15, v%d" % vLANE, "v_lshrrev_b32 v41, 1, v40", "v_xor_b32 v41, v41, v33",
          "v_lshlrev_b32 v41, 4, v41", "v_lshl_add_u32 v42, v40, 7, v41",
          "s_lshr_b32 s%d, s%d, 1" % (sT, sWV), "s_mul_i32 s%d, s%d, %d" % (sT + 1, sT, 6 * 2048),
          "v_add_u32 v%d, s%d, v42" % (vx0, sT + 1), "v_xor_b32 v%d, 64, v%d" % (vx1, vx0)]
    S2 += ["s_lshl_b32 s%d, s%d, 2" % (sT + 1, sCG), "s_add_u32 s%d, s%d, s%d" % (sT + 1, sT + 1, sWV),
           "s_min_u32 s%d, s%d, 11" % (sT + 1, sT + 1), "s_lshl_b32 s%d, s%d, 11" % (sT + 1, sT + 1),
           "v_add_u32 v%d, s%d, v42" % (vt0, sT + 1), "v_xor_b32 v%d, 64, v%d" % (vt1, vt0)]
    S2 += ["v_or_b32 v43, 8, v40", "v_lshrrev_b32 v44, 1, v43", "v_xor_b32 v44, v44, v33", "v_lshlrev_b32 v44, 4, v44",
           "v_lshl_add_u32 v44, v43, 7, v44",
           "v_lshrrev_b32 v45, 3, v40", "v_lshl_add_u32 v44, v45, 11, v44", "v_add_u32 v44, %d, v44" % (4 * 2048),
           "v_add_u32 v45, %d, v42" % (12 * 2048),
           "s_cmp_eq_u32 s%d, 0" % sT, "s_cselect_b64 vcc, -1, 0",
           "v_cndmask_b32 v%d, v44, v45, vcc" % vh0, "v_xor_b32 v%d, 64, v%d" % (vh1, vh0)]
    S2 += ["v_lshrrev_b32 v42, 2, v40", "v_lshl_add_u32 v43, v33, 3, v42",
           "v_lshrrev_b32 v44, 1, v42", "v_and_b32 v45, 1, v33", "v_lshl_add_u32 v44, v45, 1, v44",
           "s_and_b32 s%d, s%d, 1" % (sT, sWV), "s_lshl_b32 s%d, s%d, 1" % (sT, sT), "v_xor_b32 v44, s%d, v44" % sT,
           "v_lshlrev_b32 v44, 5, v44", "v_lshl_add_u32 v43, v43, 7, v44",
           "v_and_b32 v45, 3, v%d" % vLANE, "v_lshl_add_u32 v%d, v45, 3, v43" % vw0,
           "v_xor_b32 v%d, 32, v%d" % (vw1, vw0),
           "v_lshlrev_b32 v45, 4, v33", "v_add_u32 v%d, %d, v45" % (vg, GW)]

    def Qa(hh, b): return ACC + 4 * (hh * 20 + b)
    def Ka(hh, b): return ACC + 4 * (hh * 20 + 6 + b)
    def Va(hh, b): return ACC + 4 * (hh * 20 + 13 + b)
    TA = ACC + 160
    ops = {}

    def X(t, b):
        if ('x', t, b) not in ops:
            xo = ((t >> 1) % NXS) * XS
            tag = ('x', t >> 1)
            if b < 6:
                r, o = lb.addr(vx1 if (t & 1) else vx0, xo + 2048 * b)
            elif b == 6:
                r, o = lb.addr(vh1 if (t & 1) else vh0, xo)
            elif b == 7:
                r, o = lb.addr(vt1 if (t & 1) else vt0, xo)
            else:
                r, o, tag = vg, 64 * t, ('gw', 0)
            ops[('x', t, b)] = Operand(('x', t, b), lambda q: ["ds_read_b128 %s, v%d offset:%d" % (a4(q), r, o)], tag, tag)
        return ops[('x', t, b)]

    def W(t, seg, hh):
        if ('w', t, seg, hh) not in ops:
            ad = [lb2.addr(vw1 if hh else vw0, WB + (t % NWS) * WS + 4096 * seg + 512 * h) for h in range(2)]
            ops[('w', t, seg, hh)] = Operand(('w', t, seg, hh), lambda qq: ["ds_read_b64_tr_b16 %s, v%d offset:%d" % (a2(qq + 2 * h), ad[h][0], ad[h][1]) for h in range(2)],
                                             ('w', t), ('w', t))
        return ops[('w', t, seg, hh)]

    def tiles(b):
        out = []
        for hh in range(2):
            if b < 6:
                out.append((Qa(hh, b), 0, hh))
            out += [(Ka(hh, b), 1, hh), (Va(hh, b), 2, hh)]
        return out

    def mm(t, b, tile):
        d, seg, hh = tile
        return (d, X(t, b), W(t, seg, hh), t == 0) if seg == 2 else (d, W(t, seg, hh), X(t, b), t == 0)

    def gate(t):
        return (TA, X(t, 8), X(t, 7), t == 0)
    MC, MP, MH0, MH1, AM, ONES, SPARE = 228, 232, 236, 240, 244, 248, 252
    vST, vGO = 250, 251
    ES = [srd(sG, pWS, 8192, add=G_OFF),
          "s_mov_b32 s%d, 0x%x" % (sC0, SCL), "s_mov_b32 s%d, 0x%x" % (sC0 + 1, NLOG2E),
          ["s_lshl_b32 s%d, s%d, 1" % (sU, sCG), "s_and_b32 s%d, s%d, 1" % (sU + 1, sWV)],
          ["s_add_u32 s%d, s%d, s%d" % (sU, sU, sU + 1), "s_lshl_b32 s%d, s%d, 11" % (sU, sU)],
          "v_lshlrev_b32 v%d, 4, v%d" % (vST, vLANE), "v_add_u32 v%d, s%d, v%d" % (vST, sU, vST),
          ["s_lshl_b32 s%d, s%d, 2" % (sU, sCG), "s_add_u32 s%d, s%d, s%d" % (sU, sU, sWV)],
          ["s_add_u32 s%d, s%d, s%d" % (sU + 1, sU, sRB0), "s_lshl_b32 s%d, s%d, 6" % (sU + 1, sU + 1)],
          ["s_cmp_lt_u32 s%d, 12" % sU, "s_cselect_b32 s%d, s%d, 0x%x" % (sU + 1, sU + 1, BIG)],
          "v_lshl_add_u32 v%d, v%d, 2, s%d" % (vGO, vLANE, sU + 1),
          "v_mov_b32 v%d, 0x%x" % (SPARE, BIG),
          "v_cmp_gt_u32 vcc, 16, v%d" % vLANE,
          "v_mov_b32 v%d, 0x3f803f80" % ONES, "v_mov_b32 v%d, 0x3f803f80" % (ONES + 1),
          "v_cndmask_b32 v%d, v%d, v%d, vcc" % (vGO, SPARE, vGO),
          ["s_lshr_b32 s%d, s%d, 1" % (sU + 2, sWV), "s_mul_i32 s%d, s%d, 6" % (sU + 2, sU + 2)],
          "s_add_u32 s%d, s%d, s%d" % (sU + 2, sU + 2, sRB0)]
    so = store_offsets([(sU + 2, b) for b in range(6)])
    HV, HV2 = sU + 4, sU + 6
    ES2 = ["v_and_b32 v%d, 15, v%d" % (SPARE, vLANE), "v_lshrrev_b32 v%d, 4, v%d" % (SPARE + 1, vLANE),
           "v_lshlrev_b32 v%d, 2, v%d" % (SPARE + 1, SPARE + 1), "v_sub_u32 v%d, v%d, v%d" % (SPARE, SPARE, SPARE + 1),
           "v_mov_b32 v%d, 0xff800000" % (SPARE + 2),
           ["s_lshr_b32 s%d, s%d, 1" % (sU, sWV), "s_or_b32 s%d, s%d, s%d" % (sU, sU, sRB0)],
           ["s_cmp_lg_u32 s%d, 0" % sU, "s_cselect_b64 s[%d:%d], -1, 0" % (HV, HV + 1)],
           ["s_mov_b32 s%d, s%d" % (HV2, HV), "s_mov_b32 s%d, 0" % (HV2 + 1)],
           "v_mov_b32 v%d, 0" % AM, "v_mov_b32 v%d, 0" % (AM + 1)]
    ES3 = []
    for r in range(4):
        ES3 += ["v_subrev_u32 v%d, %d, v%d" % (SPARE + 3, r, SPARE), "v_cmp_gt_u32 vcc, 8, v%d" % (SPARE + 3),
                "v_mov_b32 v%d, 0x%x" % (SPARE + 1, 0xffff0000 if (r & 1) else 0xffff),
                "v_add_u32 v%d, %d, v%d" % (SPARE + 3, 16 - r, SPARE),
                "v_cndmask_b32 v%d, v%d, 0, vcc" % (MC + r, SPARE + 2),
                "v_cndmask_b32 v%d, 0, v%d, vcc" % (SPARE + 1, SPARE + 1),
                "v_cmp_gt_u32 vcc, 8, v%d" % (SPARE + 3),
                "v_or_b32 v%d, v%d, v%d" % (AM + (r >> 1), AM + (r >> 1), SPARE + 1),
                "v_add_u32 v%d, %d, v%d" % (SPARE + 3, 8 - r, SPARE),
                "v_cndmask_b32 v%d, v%d, 0, vcc" % (MP + r, SPARE + 2),
                "s_and_b64 vcc, vcc, s[%d:%d]" % (HV, HV + 1),
                "v_cndmask_b32 v%d, v%d, 0, vcc" % (MH1 + r, SPARE + 2),
                "v_cmp_gt_u32 vcc, 8, v%d" % (SPARE + 3),
                "s_and_b64 vcc, vcc, s[%d:%d]" % (HV2, HV2 + 1),
                "v_cndmask_b32 v%d, v%d, 0, vcc" % (MH0 + r, SPARE + 2)]
    ES3 += ["v_not_b32 v%d, v%d" % (AM + 2, AM), "v_not_b32 v%d, v%d" % (AM + 3, AM + 1)]
    TL = ["s_lshl_b32 s%d, s%d, 12" % (sT, sXCD), "s_lshl_b32 s%d, s%d, 3" % (sT + 1, sXCD),
          "s_lshl_b32 s%d, s%d, 4" % (sT + 2, sWV), "s_add_u32 s%d, s%d, s%d" % (sT + 2, sT + 2, sIDX),
          "s_cmp_eq_u32 s%d, 10" % (sT + 2), "s_cselect_b32 s%d, s%d, 0x%x" % (sT, sT, BIG), "s_cselect_b32 s%d, s%d, 0x%x" % (sT + 1, sT + 1, BIG),
          "v_and_b32 v60, 31, v%d" % vLANE, "v_lshl_add_u32 v60, v60, 7, s%d" % sT,
          "v_lshl_add_u32 v62, v%d, 24, s%d" % (vLANE, sT + 1),
          "buffer_load_dword v60, v60, %s, 0 offen sc1" % s4(sF)]
    TP = ["v_and_b32 v60, 1, v60", "v_cmp_eq_u32 vcc, 0, v60", "v_mov_b32 v61, 1", "v_mov_b32 v60, vcc_lo",
          "buffer_store_dwordx2 v[60:61], v62, %s, 0 offen sc1" % s4(sD)]
    stf = ["", " sc1", " nt", " sc1 nt"][OPT['stsc']]
    VB = 48
    def Vb(hh, k): return VB + 8 * hh + 2 * k
    def cvt2(dst, src): return ["v_cvt_pk_bf16_f32 v%d, v%d, v%d" % (dst, src, src + 1), "v_cvt_pk_bf16_f32 v%d, v%d, v%d" % (dst + 1, src + 2, src + 3)]
    def sumd(hh, b): return (SPARE, TA)[hh] if b == 0 else Qa(hh, 4) if b == 1 else Qa(hh, b - 2)

    def norm(b):
        T = ["v_rcp_f32 v%d, v%d" % (sumd(hh, b), sumd(hh, b)) for hh in range(2)]
        for hh in range(2):
            T += ["v_mul_f32 v%d, v%d, v%d" % (Va(hh, b) + r, Va(hh, b) + r, sumd(hh, b)) for r in range(4)]
        for hh in range(2):
            T += cvt2(Ka(0, b) + 2 * hh, Va(hh, b))
        return T + [("buffer_store_dwordx4 %s, v%d, %s, s%d offen%s" % (v4(Ka(0, b)), vST, s4(sA), sST + b, stf), ('stB' if b & 1 else 'stA', b))]

    def att(b, mid):
        T = []
        if b == 0:
            for hh in range(2):
                T += cvt2(Ka(hh, 6), Ka(hh, 6)) + cvt2(Vb(hh, 0), Va(hh, 6))
        for hh in range(2):
            T += cvt2(Qa(hh, b), Qa(hh, b)) + cvt2(Qa(hh, b) + 2, Ka(hh, b)) + cvt2(Vb(hh, 1 + (b >> 1)), Va(hh, b))
        for hh in range(2):
            kp = Ka(hh, 6) if b < 2 else Qa(hh, b - 2) + 2
            mk = MH0 if b == 0 else MH1 if b == 1 else MP
            T += ["v_mfma_f32_16x16x16_bf16 %s, %s, %s, %s" % (v4(Ka(hh, b)), v2(Qa(hh, b) + 2), v2(Qa(hh, b)), v4(MC)),
                  "v_mfma_f32_16x16x16_bf16 %s, %s, %s, %s" % (v4(Va(hh, b)), v2(kp), v2(Qa(hh, b)), v4(mk))]
        T += mid
        for hh in range(2):
            S, P = Ka(hh, b), Va(hh, b)
            T += ["v_max_f32 v%d, v%d, v%d" % (S + r, S + r, P + r) for r in range(4)]
        for hh in range(2):
            S, P = Ka(hh, b), Va(hh, b)
            T += ["v_max3_f32 v%d, v%d, v%d, v%d" % (P, S, S + 1, S + 2)]
        for hh in range(2):
            S, P = Ka(hh, b), Va(hh, b)
            T += ["v_max_f32 v%d, v%d, v%d" % (P, P, S + 3)]
        Ee, Ff = Va(0, b), Va(1, b)
        T += ["v_permlane32_swap_b32 v%d, v%d" % (Ee, Ff),
              "v_max_f32 v%d, v%d, v%d" % (Ee + 1, Ee, Ff), "v_max_f32 v%d, v%d, v%d" % (Ee, Ee, Ff),
              "v_permlane16_swap_b32 v%d, v%d" % (Ee, Ee + 1),
              "v_max_f32 v%d, v%d, v%d" % (Ee, Ee, Ee + 1),
              "v_mul_f32 v%d, s%d, v%d" % (Ff, sC0, Ee), "v_mul_f32 v%d, s%d, v%d" % (Ee, sC0, Ee),
              "v_permlane32_swap_b32 v%d, v%d" % (Ee, Ff)]
        for hh in range(2):
            T += ["v_fma_f32 v%d, v%d, s%d, -v%d" % (Ka(hh, b) + r, Ka(hh, b) + r, sC0, Va(hh, b)) for r in range(4)]
        for hh in range(2):
            T += ["v_exp_f32 v%d, v%d" % (Ka(hh, b) + r, Ka(hh, b) + r) for r in range(4)]
        for hh in range(2):
            T += cvt2(Va(hh, b) + 2, Ka(hh, b))
        for hh in range(2):
            P, S = Va(hh, b), Ka(hh, b)
            T += ["v_and_b32 v%d, v%d, v%d" % (S, P + 2, AM + 2), "v_and_b32 v%d, v%d, v%d" % (S + 1, P + 3, AM + 3),
                  "v_and_b32 v%d, v%d, v%d" % (S + 2, P + 2, AM), "v_and_b32 v%d, v%d, v%d" % (S + 3, P + 3, AM + 1)]
        for hh in range(2):
            T += ["v_mfma_f32_16x16x16_bf16 %s, %s, %s, 0" % (v4(sumd(hh, b)), v2(ONES), v2(Va(hh, b) + 2))]
        for hh in range(2):
            T += ["v_mfma_f32_16x16x32_bf16 %s, %s, %s, 0" % (v4(Va(hh, b)), v4(Vb(hh, b >> 1)), v4(Ka(hh, b)))]
        return T
    gsig = ["v_mul_f32 v%d, s%d, v%d" % (TA, sC0 + 1, TA), "v_exp_f32 v%d, v%d" % (TA, TA), "s_nop 0",
            "v_add_f32 v%d, 1.0, v%d" % (TA, TA), "v_rcp_f32 v%d, v%d" % (TA, TA), "s_nop 0",
            ("buffer_store_dword v%d, v%d, %s, 0 offen sc1" % (TA, vGO, s4(sG)), ('stA', 100))]
    extra = {0: P1.w2.setup_dma(), 1: P1.w2.setup_rd(), 2: TP, 3: ES + so[:10], 4: so[10:], 5: ES2, 6: ES3[:21], 7: ES3[21:42], 8: ES3[42:]}
    extra[OPT['wt']] = extra.get(OPT['wt'], []) + warmups(56, 57)
    extra[OPT['vt']] = extra.get(OPT['vt'], []) + vtouch(54, 55)
    segs = []
    for t in range(12):
        if OPT['chain'] and OPT['chain'] < 4:
            al = [mm(k, b, tl) for b in range(7) for tl in tiles(b) for k in (t & ~1, t | 1)] + [gate(t & ~1), gate(t | 1)]
            mfl = al[41 * (t & 1):41 * (t & 1) + 41]
        else:
            mfl = [mm(t, b, tl) for b in range(7) for tl in tiles(b)] + [gate(t)]
        segs.append(dict(mf=mfl,
                         fill=extra.get(t, []), ndma=OPT['maxd'] if t >= 4 else OPT['maxd0'], nw2r=OPT['nrm']))
    segs[2]['extra_vm'] = lambda t: t[0] == 'tp'
    fs = flag_setup() + [(tag_load(), ('tag', 0))]
    if OPT['fsplit']:
        for t in range(12, 16):
            segs.append(dict(mf=[gate(t)] + [mm(t, b, tl) for b in (6, 0) for tl in tiles(b)],
                             fill=fs[:12] if t == 14 else fs[12:] if t == 15 else [], ndma=3, nw2r=1, need_dma_done=(t == 14), rdrate=2))
    else:
        segs.append(dict(mf=sum([[gate(t)] + [mm(t, b, tl) for b in (6, 0) for tl in tiles(b)] for t in range(12, 16)], []),
                         fill=fs, ndma=OPT['maxd'], nw2r=2, need_dma_done=True, rdrate=2))
    s0 = len(segs)
    seq = [0, 2, 4, 1, 3, 5]
    for i in range(1, 6):
        b, pb = seq[i], seq[i - 1]
        if i == 1:
            f = att(pb, gsig)
        elif i == 4 and OPT['ndef'] == 0:
            f = norm(seq[i - 2]) + att(pb, [])
        else:
            f = att(pb, norm(seq[i - 2]))
        si = len(segs)
        segs.append(dict(mf=[mm(t, b, tl) for tl in tiles(b) for t in range(12, 16)], fill=f, ndma=OPT['fdQ'], nw2r=OPT['nwf'] + 2,
                         barrier=bool((OPT['barQ'] >> (si - s0)) & 1), force_release=(i == 5)))
        if i == OPT['pubQ']:
            assert i >= 5
            pub_seg(segs[-1], PF, "Q")
    segs[-1]['barrier'] = True
    for x in P1.sched.take(10):
        E(x)
    E(PF.xstamp(51) + tlb_warm() + S2 + ["@LB"] + late_scalar_setup())
    for x in P1.sched.take(OPT['npro'] - 10):
        E(x)
    E(TL[:-1])
    E(TL[-1], ('tp', 0))
    P1.run(PF, segs, (0, 4, 8, 12))
    E(PF.stamp())
    if OPT['pubQ'] > 5:
        pub_inline(E, PF, "Q")
    tail = att(5, norm(3))
    cutp = len(tail) - 28
    if OPT['ppQ']:
        E(POLL, ('pa', 0))
    E(tail[:cutp])
    P1.w2.flush(E, OPT['keep'])
    if not OPT['ppQ']:
        E(POLL, ('pa', 0))
    E(tail[cutp:] + norm(5))
    E(PF.stamp())
    phase2(P1, PF, "Q")
    i = E.L.index("@LB")
    return L + E.L[:i] + lb.setup + lb2.setup + E.L[i + 1:]


def main():
    K = NAME + "_kernel"
    L = [K + ":", "s_cmp_ge_u32 s2, 256", "s_cbranch_scc1 L_exit",
         "s_load_dwordx8 s[4:11], s[0:1], 0", "s_load_dwordx8 s[12:19], s[0:1], 32",
         "s_load_dwordx4 s[20:23], s[0:1], 64", "s_load_dwordx2 s[24:25], s[0:1], 80",
         "v_lshrrev_b32 v2, 6, v0", "v_and_b32 v%d, 63, v0" % vLANE, "v_readfirstlane_b32 s%d, v2" % sWV,
         "s_and_b32 s%d, s2, 7" % sXCD, "s_lshr_b32 s%d, s2, 3" % sIDX, "s_cmp_lt_u32 s%d, 11" % sIDX, "s_cbranch_scc1 L_Q"]
    pf = []
    if OPT['iprefetch']:
        i = L.index("v_lshrrev_b32 v2, 6, v0")
        L[i:i] = ["s_getpc_b64 s[26:27]", "v_and_b32 v63, 15, v0", "s_lshr_b32 s3, s2, 3", "s_lshl_b32 s3, s3, 11",
                  "v_lshl_add_u32 v63, v63, 7, s3", "global_load_dword v63, v63, s[26:27]"]
    rep = {}
    H = fix_hazards(["s_nop 3"] + pf + gen_H(), rep)
    sys.stderr.write("H: %d lines, nops %d\n" % (len(H), rep['nops']))
    Q = fix_hazards(["s_nop 3"] + pf + gen_Q(), rep)
    sys.stderr.write("Q: %d lines, nops %d\n" % (len(Q), rep['nops']))
    out = ["; generated by gen9.py: single persistent kernel, flag hand-off between GEMM1 and GEMM2",
           "; @launch grid=(256,1,1) block=(256,1,1) lds=163840",
           '.amdgcn_target "amdgcn-amd-amdhsa--gfx950"', ".text", ".globl " + K, ".p2align 8", ".type %s,@function" % K]
    out += fix_hazards(L) + H + ["L_exit:", "s_endpgm", ".p2align 6", "L_Q:"] + Q
    out += [".p2align 8", ".fill 6144, 4, 0xbf800000", "s_endpgm"]
    out += ['.section .rodata,"a"', ".p2align 6", """.amdhsa_kernel %s
  .amdhsa_next_free_vgpr 512
  .amdhsa_next_free_sgpr 102
  .amdhsa_accum_offset 256
  .amdhsa_group_segment_fixed_size 0
  .amdhsa_kernarg_size 88
  .amdhsa_user_sgpr_count 2
  .amdhsa_user_sgpr_kernarg_segment_ptr 1
  .amdhsa_system_sgpr_workgroup_id_x 1
.end_amdhsa_kernel""" % K]
    print("\n".join(out))


main()
```

```python
import sys
from asmlib import *
from engine import *

NAME = "gated_mix__sliding_local_dilated__glu_gated_glu__prompt"
A2_BYTES = 32 * 72 * 4096
G_OFF = A2_BYTES
F_OFF = A2_BYTES + 8192
MT_STRIDE = 72 * 4096
CLS = 72 * 2048
NLOG2E = 0xbfb8aa3b
SCL = 0x3eb8aa3b
BIG = 0x40000000

OPT = dict(masks=0x77777777, iprefetch=1, prof=0, maxd=10, npro=20, la=3, la0=3, rx=2, rm3=0, rnt=0,
           diag=-1, c0=-1, c1=-1, sel=0, warm=2, outsc=1, wt=3, rotb=0, rotq=0, pollst=4, map2=0, perm=1,
           nwsH=4, nwsQ=4, stsc=1, verbose=0, q3=1, lm=1, lq=7, rhi=1, tlb=0, ldsp=3, nost=0, pf0=9,
           w2t=2, w2prio=4, w2lag=800, nrm=2, fH=2, fdH=5, fdQ=10, pubH=8, pubQ=5, v13=11, v14=12, ndef=0,
           barH=0x01, barQ=0x01, quota=0, age=110, keep=0, fsplit=0, nwf=2, sall=0, maxd0=8, nxs=3, early=0, lagf=800, ppH=5, ppQ=1, vt=10, chain=0, tgH=8, x2=0, dstv=0, touch=1, lmo=1, wt2=10, wt3=-1, half=0, order=0, lag2=12, pl=8, cap=32, capx=100, clr=12, rcv=1, wstep=2, dly=0, rcv0=46, fin0=60)
for a in sys.argv[1:]:
    if '=' in a:
        k, v = a.split('=')
        assert k in OPT, k
        OPT[k] = int(v, 0)

NXS = OPT['nxs']
CUR = ['H']
QT_LO, QT_HI = 0x71a48260, 0xb593
pX, pQKV, pWO, pWG, pWU, pWD, pGW, pOUT, pDBG, pWS = 4, 6, 8, 12, 14, 16, 18, 20, 22, 24
sX, sW, sA, sG, sWO, sWD, sO, sD = 28, 32, 36, 40, 44, 48, 52, 56
sWV, sRB0, sCG, sXCD, sIDX, sKX, sKW, sMX, sMW, sM7, sROT, sM2 = 60, 61, 62, 63, 64, 65, 66, 67, 68, 69, 70, 71
sMT, sNT, sW2o, sW2h, sW2e, sS2, sAo, sAh, sAe, sSA = 72, 73, 74, 75, 76, 77, 78, 79, 80, 81
sC0 = 82
sST = 86
sF = 20
sS3 = 27
KB = [74, 75, 76, 78, 79, 80, 81, 18, 19]
MB_OFF = 32768
sPAR = 99
sPID = 98
sK = 97
sT = 88
sU = 4
vLANE = 1
vXD, vWD, vRD = 2, 9, 13
ACC = 64


def v4(b): return "v[%d:%d]" % (b, b + 3)
def v2(b): return "v[%d:%d]" % (b, b + 1)
def a4(b): return "a[%d:%d]" % (b, b + 3)
def a2(b): return "a[%d:%d]" % (b, b + 1)
def s4(b): return "s[%d:%d]" % (b, b + 3)


class Prof:
    def __init__(self, vreg):
        self.n = 0
        self.v = vreg

    def stamp(self):
        self.n += 1
        if OPT['diag'] >= 0:
            L = []
            if OPT['diag'] == self.n - 1:
                L += ["s_memrealtime s[100:101]", "s_waitcnt lgkmcnt(0)", "s_mov_b32 s26, s100"]
            if OPT['c0'] == self.n - 1:
                L += ["s_memtime s[100:101]", "s_waitcnt lgkmcnt(0)", "s_mov_b32 s3, s100"]
            if OPT['c1'] == self.n - 1:
                L += ["s_memtime s[100:101]", "s_waitcnt lgkmcnt(0)", "s_sub_u32 s3, s100, s3"]
            return L
        if not OPT['prof']:
            return []
        if OPT['prof'] >= 2 and self.n == 1:
            return []
        if OPT['sel'] and not (OPT['sel'] >> (self.n - 1)) & 1:
            return []
        return ["%s s[100:101]" % ("s_memtime" if OPT['prof'] == 1 else "s_memrealtime"), "s_waitcnt lgkmcnt(0)", "v_writelane_b32 v%d, s100, %d" % (self.v, self.n - 1)]

    def xstamp(self, lane):
        if OPT['prof'] < 2:
            return []
        return (["v_writelane_b32 v%d, s100, 0" % self.v] if lane == 50 else []) + ["s_memrealtime s[100:101]", "s_waitcnt lgkmcnt(0)", "v_writelane_b32 v%d, s100, %d" % (self.v, lane)]

    def dump(self):
        if OPT['diag'] >= 0:
            lab = "D%d" % id(self)
            L = ["s_waitcnt vmcnt(0)"] + self.stamp() + ["s_mov_b32 s4, 10000"]
            if OPT['c0'] >= 0:
                L += ["s_lshr_b32 s3, s3, 2", "s_add_u32 s4, s3, 5000"]
            L += ["s_mov_b32 s5, 0", lab + ":", "s_memrealtime s[100:101]", "s_waitcnt lgkmcnt(0)", "s_sub_u32 s6, s100, s26",
                  "s_add_u32 s5, s5, 1", "s_cmp_gt_u32 s5, 100000", "s_cbranch_scc1 %s_x" % lab,
                  "s_cmp_lt_u32 s6, s4", "s_cbranch_scc1 " + lab, lab + "_x:"]
            return L
        if not OPT['prof']:
            return []
        L = ["s_waitcnt vmcnt(0)"] + self.stamp()
        L += ["s_memrealtime s[100:101]", "s_waitcnt lgkmcnt(0)", "v_writelane_b32 v%d, s100, 63" % self.v]
        L += ["s_lshl_b32 s100, s2, 2", "s_add_u32 s100, s100, s%d" % sWV, "s_lshl_b32 s100, s100, 8",
              "s_add_u32 s100, s100, %d" % (16 << 20), "v_lshl_add_u32 v2, v%d, 2, s100" % vLANE,
              "global_store_dword v2, v%d, s[%d:%d]" % (self.v, pWS, pWS + 1)]
        return L


def srd(d, p, nbytes, bias=0, add=0):
    L = []
    if bias:
        L += ["s_sub_u32 s%d, s%d, %d" % (d, p, bias), "s_subb_u32 s%d, s%d, 0" % (d + 1, p + 1)]
    elif add:
        L += ["s_add_u32 s%d, s%d, %d" % (d, p, add), "s_addc_u32 s%d, s%d, 0" % (d + 1, p + 1)]
    else:
        L += ["s_mov_b32 s%d, s%d" % (d, p), "s_mov_b32 s%d, s%d" % (d + 1, p + 1)]
    L += ["s_mov_b32 s%d, 0x%x" % (d + 2, nbytes + bias), "s_mov_b32 s%d, 0x20000" % (d + 3)]
    return L


class LdsBases:
    def __init__(self, regs, chunk=0xC000):
        self.regs = list(regs)
        self.map = {}
        self.setup = []
        self.chunk = chunk

    def addr(self, patreg, off):
        ch = off // self.chunk
        if ch == 0:
            return patreg, off
        key = (patreg, ch)
        if key not in self.map:
            r = self.regs.pop(0)
            self.map[key] = r
            self.setup.append("v_add_u32 v%d, 0x%x, v%d" % (r, ch * self.chunk, patreg))
        return self.map[key], off - ch * self.chunk


def stage_pre(s, dst, mul):
    m = (OPT['masks'] >> (4 * s)) & 7
    if CUR[0] == 'H' and OPT['lm'] == 0 and OPT['lmo'] == 0 and not OPT['rhi']:
        m = 0
    if m == 0:
        return ["s_mov_b32 s%d, %d" % (dst, s * mul)]
    return ["s_and_b32 s%d, s%d, %d" % (sK, sROT, m), "s_xor_b32 s%d, s%d, %d" % (sK, sK, s), "s_mul_i32 s%d, s%d, %d" % (dst, sK, mul)]


def rot_fix(typ):
    L = []
    if typ == 'Q' and OPT['q3']:
        L += ["s_cmp_eq_u32 s%d, 3" % sXCD, "s_cselect_b32 s%d, %d, %d" % (sT + 6, OPT['lq'], OPT['lm']), "s_and_b32 s%d, s%d, s%d" % (sROT, sROT, sT + 6)]
    elif typ == 'H' and OPT['lmo'] != OPT['lm']:
        L += ["s_bitcmp1_b32 s%d, 0" % sCG, "s_cselect_b32 s%d, %d, %d" % (sT + 6, OPT['lmo'], OPT['lm']), "s_and_b32 s%d, s%d, s%d" % (sROT, sROT, sT + 6)]
    else:
        L += ["s_and_b32 s%d, s%d, %d" % (sROT, sROT, OPT['lm'])]
    if OPT['rhi']:
        L += ["s_lshl_b32 s%d, s%d, 2" % (sT + 6, sXCD), "s_and_b32 s%d, s%d, 4" % (sT + 6, sT + 6), "s_xor_b32 s%d, s%d, s%d" % (sROT, sROT, sT + 6)]
    return L


def x_setup(L, typ):
    L += ["v_lshrrev_b32 v32, 3, v%d" % vLANE, "v_lshrrev_b32 v33, 4, v%d" % vLANE, "v_and_b32 v34, 7, v%d" % vLANE,
          "v_xor_b32 v35, v34, v33", "v_lshlrev_b32 v35, 4, v35", "v_lshl_add_u32 v36, v32, 11, v35", "v_xor_b32 v37, 64, v36"]
    if typ == 'H':
        L += ["s_mul_i32 s%d, s%d, 6" % (sT, sWV), "s_and_b32 s%d, s%d, 1" % (sPAR, sRB0),
              "s_add_u32 s%d, s%d, s%d" % (sT + 4, sT, sPAR),
              "s_sub_u32 s%d, s%d, s%d" % (sT + 5, sT, sPAR), "s_sub_u32 s%d, s%d, 11" % (sT + 5, sT + 5),
              "s_cmp_lt_u32 s%d, 2" % sWV, "s_cselect_b32 s%d, s%d, s%d" % (sT, sT + 4, sT + 5)]
    else:
        L += ["s_mul_i32 s%d, s%d, 12" % (sT, sWV), "s_mov_b32 s%d, 0x%x" % (sT + 4, QT_LO), "s_mov_b32 s%d, 0x%x" % (sT + 5, QT_HI),
              "s_lshr_b64 s[%d:%d], s[%d:%d], s%d" % (sT + 4, sT + 5, sT + 4, sT + 5, sT)]
    for bb in range(3):
        if typ == 'H':
            L += ["s_add_u32 s%d, s%d, %d" % (sT + 1, sT, 2 * bb)]
            if bb == 2:
                L += ["s_min_u32 s%d, s%d, 10" % (sT + 1, sT + 1)]
            L += ["s_add_u32 s%d, s%d, s%d" % (sT + 1, sT + 1, sRB0)]
        else:
            L += ["s_bfe_u32 s%d, s%d, 0x%x" % (sT + 1, sT + 4, (4 << 16) | (4 * bb)), "s_add_u32 s%d, s%d, s%d" % (sT + 1, sT + 1, sRB0)]
        L += ["s_lshr_b32 s%d, s%d, 1" % (sT + 2, sT + 1), "s_lshl_b32 s%d, s%d, 15" % (sT + 2, sT + 2),
              "s_and_b32 s%d, s%d, 1" % (sT + 1, sT + 1), "s_lshl_b32 s%d, s%d, 10" % (sT + 1, sT + 1),
              "s_add_u32 s%d, s%d, s%d" % (sT + 2, sT + 2, sT + 1)]
        if typ == 'H' and bb == 2:
            L += ["s_cmp_eq_u32 s%d, 3" % sWV, "s_cselect_b32 s%d, 0x%x, s%d" % (sT + 2, BIG, sT + 2)]
        for dd in range(2):
            d = 2 * bb + dd
            add = 4096 - 1024 * (d & 3) + (16384 if dd else 0)
            L += ["s_add_u32 s%d, s%d, %d" % (sT + 3, sT + 2, add), "v_add_u32 v%d, s%d, v%d" % (vXD + d, sT + 3, 36 + dd)]


def tlb_warm():
    if not OPT['tlb'] or OPT['tlb'] >= 4:
        return []
    d = 3
    if OPT['tlb'] == 3:
        return ["s_lshl_b32 s%d, s%d, 21" % (sT, sWV), "s_add_u32 s%d, s%d, 0x200000" % (sT, sT),
                "s_load_dword s%d, s[%d:%d], s%d" % (d, pWS, pWS + 1, sT),
                "s_cmp_eq_u32 s%d, 0" % sWV, "s_cselect_b64 s[%d:%d], s[%d:%d], s[%d:%d]" % (sT + 2, sT + 3, pDBG, pDBG + 1, pWS, pWS + 1),
                "s_cmp_eq_u32 s%d, 1" % sWV, "s_cselect_b64 s[%d:%d], s[%d:%d], s[%d:%d]" % (sT + 2, sT + 3, pOUT, pOUT + 1, sT + 2, sT + 3),
                "s_load_dword s%d, s[%d:%d], 0" % (d, sT + 2, sT + 3)]
    L = ["s_lshl_b32 s%d, s%d, 20" % (sT, sWV),
         "s_load_dword s%d, s[%d:%d], s%d" % (d, pWS, pWS + 1, sT), "s_add_u32 s%d, s%d, 0x400000" % (sT, sT),
         "s_load_dword s%d, s[%d:%d], s%d" % (d, pWS, pWS + 1, sT), "s_add_u32 s%d, s%d, 0x400000" % (sT, sT),
         "s_load_dword s%d, s[%d:%d], s%d" % (d, pWS, pWS + 1, sT),
         "s_and_b32 s%d, s%d, 1" % (sT, sWV), "s_lshl_b32 s%d, s%d, 20" % (sT, sT),
         "s_load_dword s%d, s[%d:%d], s%d" % (d, pWD, pWD + 1, sT),
         "s_load_dword s%d, s[%d:%d], s%d" % (d, pOUT, pOUT + 1, sT),
         "s_load_dword s%d, s[%d:%d], 0" % (d, pWO, pWO + 1),
         "s_load_dword s%d, s[%d:%d], 0" % (d, pDBG, pDBG + 1)]
    return L


def late_scalar_setup():
    L = []
    L += srd(sA, pWS, A2_BYTES)
    L += srd(sWO, pWO, 512 * 1024) + srd(sWD, pWD, 1792 * 1024, bias=16 * 32768) + srd(sO, pOUT, 2048 * 1024)
    L += srd(sD, pDBG, 256)
    if CUR[0] == 'H':
        L += srd(sG, pWS, 8192, add=G_OFF)
    L += srd(sF, pWS, MB_OFF + 256 * 8192, add=F_OFF)
    sP = sT + 5
    L += ["s_mov_b32 s%d, s%d" % (sP, sIDX)]
    if OPT['perm']:
        for a, b in ((11, 8), (19, 9), (27, 10)):
            L += ["s_cmp_eq_u32 s%d, %d" % (sIDX, a), "s_cselect_b32 s%d, %d, s%d" % (sP, b, sP),
                  "s_cmp_eq_u32 s%d, %d" % (sIDX, b), "s_cselect_b32 s%d, %d, s%d" % (sP, a, sP)]
    L += ["s_lshr_b32 s%d, s%d, 1" % (sT, sXCD), "s_and_b32 s%d, s%d, 1" % (sT + 1, sXCD),
          "s_lshl_b32 s%d, s%d, 3" % (sMT, sT), "s_lshr_b32 s%d, s%d, 3" % (sT + 2, sP), "s_lshl_b32 s%d, s%d, 1" % (sT + 2, sT + 2),
          "s_add_u32 s%d, s%d, s%d" % (sMT, sMT, sT + 2), "s_add_u32 s%d, s%d, s%d" % (sMT, sMT, sT + 1),
          "s_and_b32 s%d, s%d, 7" % (sNT, sP), "s_lshl_b32 s%d, s%d, 11" % (sM2, sWV),
          "s_lshl_b32 s%d, s%d, 2" % (sT + 1, sT + 1), "s_add_u32 s%d, s%d, s%d" % (sT + 1, sT + 1, sWV),
          "s_lshl_b32 s%d, s%d, 12" % (KB[0], sT + 1), "s_and_b32 s%d, s%d, 1" % (sT + 2, sT), "s_lshl_b32 s%d, s%d, 11" % (sT + 2, sT + 2),
          "s_add_u32 s%d, s%d, s%d" % (KB[0], KB[0], sT + 2), "s_xor_b32 s%d, s%d, 0x800" % (KB[1], KB[0]),
          "s_mul_i32 s%d, s%d, %d" % (sT + 3, sT + 1, 7 * 2048), "s_add_u32 s%d, s%d, %d" % (sT + 3, sT + 3, 16 * 2048),
          "s_add_u32 s%d, s%d, %d" % (sT + 4, sT + 3, 7 * 2048),
          "s_mul_i32 s%d, s%d, %d" % (sT + 2, sT, OPT['rx'] * 2048), "s_add_u32 s%d, s%d, s%d" % (KB[2], sT + 3, sT + 2)]
    assert 3 * OPT['rx'] < 7
    for i in range(3, 9):
        L += ["s_add_u32 s%d, s%d, 2048" % (KB[i], KB[i - 1]), "s_cmp_eq_u32 s%d, s%d" % (KB[i], sT + 4),
              "s_cselect_b32 s%d, s%d, s%d" % (KB[i], sT + 3, KB[i])]
    return L


def warmups(va, vb, mode=None):
    L = []
    mode = OPT['warm'] if mode is None else mode
    if mode == 2:
        L += ["s_and_b32 s%d, s%d, 1" % (sU + 13, sXCD), "s_lshl_b32 s%d, s%d, 5" % (sU + 13, sU + 13), "s_add_u32 s%d, s%d, s%d" % (sU + 13, sU + 13, sIDX),
              "s_lshl_b32 s%d, s%d, 2" % (sU + 12, sU + 13), "s_add_u32 s%d, s%d, s%d" % (sU + 12, sU + 12, sWV),
              "s_mul_i32 s%d, s%d, %d" % (sU + 13, sU + 12, 7 * 1024), "s_add_u32 s%d, s%d, %d" % (sU + 13, sU + 13, 16 * 32768),
              "s_lshl_b32 s%d, s%d, 11" % (sU + 12, sU + 12),
              "v_min_u32 v%d, 6, v%d" % (va, vLANE), "v_lshl_add_u32 v%d, v%d, 10, s%d" % (va, va, sU + 13),
              "v_and_b32 v%d, 1, v%d" % (vb, vLANE), "v_lshl_add_u32 v%d, v%d, 10, s%d" % (vb, vb, sU + 12),
              "buffer_load_dword v%d, v%d, %s, 0 offen offset:384" % (va, va, s4(sWD)),
              "buffer_load_dword v%d, v%d, %s, 0 offen offset:384" % (vb, vb, s4(sWO))]
    elif mode:
        L += [["s_lshl_b32 s%d, s2, 2" % (sU + 12), "s_add_u32 s%d, s%d, s%d" % (sU + 12, sU + 12, sWV)],
              ["s_mul_i32 s%d, s%d, %d" % (sU + 13, sU + 12, 14 * 128), "s_lshl_b32 s%d, s%d, 9" % (sU + 12, sU + 12)],
              "v_min_u32 v%d, 13, v%d" % (va, vLANE), "v_lshl_add_u32 v%d, v%d, 7, s%d" % (va, va, sU + 13),
              "v_and_b32 v%d, 3, v%d" % (vb, vLANE), "v_lshl_add_u32 v%d, v%d, 7, s%d" % (vb, vb, sU + 12),
              "buffer_load_dword v%d, v%d, %s, 0 offen" % (va, va, s4(sWD)),
              "buffer_load_dword v%d, v%d, %s, 0 offen" % (vb, vb, s4(sWO))]
    return L


def warmt(va, vb):
    L = []
    if OPT['warmt'] == 2:
        L += [["s_lshl_b32 s%d, s%d, 16" % (sU + 14, sMT), "s_lshl_b32 s%d, s%d, 7" % (sU + 15, sNT)], "s_add_u32 s%d, s%d, s%d" % (sU + 14, sU + 14, sU + 15),
              "v_lshl_add_u32 v%d, v%d, 10, s%d" % (vb, vLANE, sU + 14),
              "buffer_load_dword v%d, v%d, %s, 0 offen" % (vb, vb, s4(sO))]
    elif OPT['warmt']:
        L += ["v_and_b32 v%d, 7, v%d" % (va, vLANE), "v_lshlrev_b32 v%d, 21, v%d" % (va, va),
              "v_and_b32 v%d, 1, v%d" % (vb, vLANE), "v_lshlrev_b32 v%d, 20, v%d" % (vb, vb),
              "buffer_load_dword v%d, v%d, %s, 0 offen" % (va, va, s4(sA)),
              "buffer_load_dword v%d, v%d, %s, 0 offen" % (vb, vb, s4(sO))]
    return L


def vtouch(va, vb):
    if OPT['tlb'] != 4:
        return []
    return ["v_and_b32 v%d, 7, v%d" % (va, vLANE), "v_lshlrev_b32 v%d, 21, v%d" % (va, va), "v_mov_b32 v%d, 0" % vb,
            "buffer_load_dword v%d, v%d, %s, 0 offen" % (va, va, s4(sA)),
            "buffer_load_dword v%d, v%d, %s, 0 offen sc1" % (va, vb, s4(sD)),
            "buffer_load_dword v%d, v%d, %s, 0 offen" % (va, vb, s4(sO))]


def store_offsets(specs):
    L = []
    for b, (base_sreg, add) in enumerate(specs):
        L += [["s_add_u32 s%d, s%d, %d" % (sU, base_sreg, add), "s_lshr_b32 s%d, s%d, 2" % (sU + 1, sU)],
              ["s_mul_i32 s%d, s%d, %d" % (sST + b, sU + 1, MT_STRIDE), "s_and_b32 s%d, s%d, 1" % (sU + 1, sU)],
              ["s_mul_i32 s%d, s%d, %d" % (sU + 1, sU + 1, CLS), "s_add_u32 s%d, s%d, s%d" % (sST + b, sST + b, sU + 1)],
              ["s_and_b32 s%d, s%d, 2" % (sU, sU), "s_lshl_b32 s%d, s%d, 9" % (sU, sU)],
              "s_add_u32 s%d, s%d, s%d" % (sST + b, sST + b, sU)]
    return L


vFO, vSH, vTO, vTG = 30, 48, 49, 28


def mailbox_clear():
    z = 60 if (CUR[0] == 'Q' and OPT['clr'] > 9) else 52
    L = ["s_lshl_b32 s%d, s2, 13" % (sU + 10), "s_lshl_b32 s%d, s%d, 11" % (sU + 11, sWV), "s_add_u32 s%d, s%d, s%d" % (sU + 10, sU + 10, sU + 11),
         "s_add_u32 s%d, s%d, %d" % (sU + 10, sU + 10, MB_OFF), "v_lshl_add_u32 v51, v%d, 4, s%d" % (vLANE, sU + 10)]
    L += ["v_mov_b32 v%d, -1" % (z + i) for i in range(4)]
    L += [("buffer_store_dwordx4 %s, v51, %s, 0 offen offset:%d sc1" % (v4(z), s4(sF), 1024 * i), ('stA', 200 + i)) for i in range(2)]
    return L


def flag_setup():
    t = 50
    L = ["s_and_b32 s%d, s%d, 30" % (sU + 3, sMT),
         "s_mul_i32 s%d, s%d, %d" % (sU, sU + 3, 4 * 171), "s_add_u32 s%d, s%d, %d" % (sU + 1, sU, 7 * 171),
         "s_lshr_b32 s%d, s%d, 11" % (sU, sU), "s_lshr_b32 s%d, s%d, 11" % (sU + 1, sU + 1),
         "s_lshl_b32 s%d, s%d, 3" % (sU, sU), "s_lshl_b32 s%d, s%d, 3" % (sU + 1, sU + 1),
         "v_and_b32 v%d, 7, v%d" % (t, vLANE), "v_and_b32 v%d, 8, v%d" % (t + 3, vLANE),
         "v_add_u32 v%d, s%d, v%d" % (t + 1, sU, t), "v_add_u32 v%d, s%d, v%d" % (t + 2, sU + 1, t),
         "v_cmp_eq_u32 vcc, 0, v%d" % (t + 3),
         "s_mul_i32 s%d, s%d, %d" % (sU, sU + 3, 4 * 187), "s_add_u32 s%d, s%d, %d" % (sU + 1, sU, 7 * 187),
         "v_cndmask_b32 v%d, v%d, v%d, vcc" % (t + 1, t + 2, t + 1),
         "s_lshr_b32 s%d, s%d, 11" % (sU, sU), "s_lshr_b32 s%d, s%d, 11" % (sU + 1, sU + 1),
         "s_mul_i32 s%d, s%d, 14" % (sU, sU), "s_mul_i32 s%d, s%d, 14" % (sU + 1, sU + 1),
         "s_and_b32 s%d, s%d, 1" % (sU + 2, sXCD), "s_mul_i32 s%d, s%d, 7" % (sU + 2, sU + 2), "s_add_u32 s%d, s%d, 88" % (sU + 2, sU + 2),
         "s_add_u32 s%d, s%d, s%d" % (sU, sU, sU + 2), "s_add_u32 s%d, s%d, s%d" % (sU + 1, sU + 1, sU + 2),
         "v_min_u32 v%d, 6, v%d" % (t, t),
         "v_add_u32 v%d, s%d, v%d" % (t + 2, sU, t), "v_add_u32 v%d, s%d, v%d" % (t + 3, sU + 1, t),
         "v_cndmask_b32 v%d, v%d, v%d, vcc" % (t + 2, t + 3, t + 2),
         "v_cmp_gt_u32 vcc, 16, v%d" % vLANE]
    if CUR[0] == 'Q':
        L += ["s_xor_b32 s%d, s%d, 1" % (sU, sPID)]
    else:
        L += ["s_xor_b32 s%d, s%d, 1" % (sU, sXCD), "s_mul_i32 s%d, s%d, 21" % (sU, sU), "s_add_u32 s%d, s%d, s%d" % (sU, sU, sIDX),
              "s_sub_u32 s%d, s%d, 11" % (sU, sU), "s_mul_i32 s%d, s%d, 171" % (sU + 1, sU), "s_lshr_b32 s%d, s%d, 11" % (sU + 1, sU + 1),
              "s_mul_i32 s%d, s%d, 12" % (sU + 2, sU + 1), "s_sub_u32 s%d, s%d, s%d" % (sU, sU, sU + 2),
              "s_mul_i32 s%d, s%d, 14" % (sU, sU), "s_add_u32 s%d, s%d, s%d" % (sU, sU, sU + 1), "s_add_u32 s%d, s%d, 88" % (sU, sU)]
    L += ["v_cndmask_b32 v%d, v%d, v%d, vcc" % (t + 1, t + 2, t + 1),
          "v_mov_b32 v%d, s%d" % (t, sPID), "v_mov_b32 v%d, s%d" % (t + 3, sU),
          "v_cmp_gt_u32 vcc, 48, v%d" % vLANE,
          "v_cndmask_b32 v%d, v%d, v%d, vcc" % (t, t, t + 3),
          "v_cmp_gt_u32 vcc, 32, v%d" % vLANE,
          "v_cndmask_b32 v%d, v%d, v%d, vcc" % (t, t, t + 1),
          "v_lshlrev_b32 v%d, 7, v%d" % (vFO, t), "v_and_b32 v%d, 31, v%d" % (vSH, t),
          "v_lshrrev_b32 v%d, 5, v%d" % (t, t), "v_lshlrev_b32 v%d, 3, v%d" % (vTO, t)]
    return L


def tag_load():
    return "buffer_load_dwordx2 %s, v%d, %s, 0 offen sc1" % (v2(vTG), vTO, s4(sD))


class W2:
    AW2 = 128

    def __init__(self, sched, vW2):
        self.sched, self.vW2 = sched, vW2
        regs = list(range(32, 44))
        self.pat = regs[:4]
        self.lb = LdsBases(regs[4:], chunk=0x10000)
        for t in range(4):
            for ch in (1, 2):
                self.lb.addr(regs[t], ch * 0x10000)
        self.own = set(range(20))
        self.region = {}
        self.itime = {}
        self.nread = 0
        self.inflight_reads = []
        self.enabled = False
        self.eng = None
        for n in range(18):
            kb = n >> 1
            sr = sWO if kb < 2 else sWD
            for i in range(2):
                pre = []
                if i == 0:
                    pre = ["s_lshl_b32 s%d, s%d, 4" % (sS2, KB[kb])] if n % 2 == 0 else ["s_add_u32 s%d, s%d, 16384" % (sS2, sS2)]
                sched.add(Dma('w2', ('w2', n), None, pre,
                              "buffer_load_dwordx4 v%d, %s, s%d offen offset:%d lds" % (vW2[i], s4(sr), sS2, 1024 * i), 1000 + n, self.ok))
        self.limit = 16

    @staticmethod
    def areg(kb):
        return 128 + 16 * kb if kb < 8 else 112

    def ok(self, d, commit):
        n = d.tag[1]
        if n not in self.region:
            if not self.enabled:
                return False
            c = [r for r in sorted(self.own) if self.eng.range_free(8192 * r, 8192 * r + 8192)]
            if not c:
                return False
            if commit:
                self.region[n] = c[0]
                self.own.discard(c[0])
        if commit:
            d.m0 = (sM2, 8192 * self.region[n])
        return True

    def mark_issue(self, n, now):
        self.itime.setdefault(n, []).append(now)

    def ready(self, now, cnt, lag=None):
        if lag is None:
            lag = OPT['lagf'] if any(t and t[0] in ('stA', 'stB') for t in self.eng.E.vm) else OPT['w2lag']
        out = []
        n = self.nread
        while len(out) < cnt and n < self.limit and len(self.itime.get(n, [])) == 2 and self.itime[n][1] <= now - lag:
            out.append(n)
            n += 1
        return out

    def read_instrs(self, ns):
        out = []
        for n in ns:
            out += [(x, ('w2r', n)) for x in self.reads(n, lambda t: a2(self.areg(n >> 1) + 4 * t + 2 * (n & 1)))]
            self.inflight_reads.append(n)
            self.nread = n + 1
        return out

    def recycle(self):
        for n in self.inflight_reads:
            self.own.add(self.region[n])
        self.inflight_reads = []

    def setup_dma(self):
        a, b = self.vW2
        return ["v_lshrrev_b32 v%d, 4, v%d" % (a, vLANE), "v_lshlrev_b32 v%d, 1, v%d" % (a, a),
                "v_and_b32 v%d, 7, v%d" % (b, vLANE), "v_xor_b32 v%d, v%d, v%d" % (a, a, b), "v_lshlrev_b32 v%d, 4, v%d" % (a, a),
                "v_lshrrev_b32 v%d, 3, v%d" % (b, vLANE), "v_lshl_add_u32 v%d, v%d, 10, v%d" % (a, b, a),
                ["s_lshl_b32 s%d, s%d, 7" % (sU, sNT), "v_add_u32 v%d, s%d, v%d" % (a, sU, a)],
                "v_add_u32 v%d, 7168, v%d" % (b, a)]

    def setup_rd(self):
        p = self.pat
        L = ["v_lshrrev_b32 v%d, 2, v%d" % (p[1], vLANE), "v_lshrrev_b32 v%d, 3, v%d" % (p[2], vLANE),
             "v_and_b32 v%d, 3, v%d" % (p[2], p[2]), "v_lshlrev_b32 v%d, 5, v%d" % (p[2], p[2]),
             "v_lshl_add_u32 v%d, v%d, 7, v%d" % (p[1], p[1], p[2]), "v_and_b32 v%d, 3, v%d" % (p[2], vLANE),
             "v_lshl_add_u32 v%d, v%d, 3, v%d" % (p[1], p[2], p[1]), "v_add_u32 v%d, s%d, v%d" % (p[0], sM2, p[1])]
        L += ["v_xor_b32 v%d, %d, v%d" % (p[t], 32 * t, p[0]) for t in range(1, 4)]
        return L + self.lb.setup

    def reads(self, n, dstf):
        out = []
        for t in range(4):
            r, o = self.lb.addr(self.pat[t], 8192 * self.region[n])
            out.append("ds_read_b64_tr_b16 %s, v%d offset:%d" % (dstf(t), r, o))
        return out

    def flush(self, E, keep):
        for x in self.sched.take(100):
            E(x)
            if x[1] is not None:
                self.mark_issue(x[1][1], E.now)
        assert self.sched.pending() == 0

    def read_rest(self, E):
        self.limit = 18
        ns = self.ready(E.now, 18, lag=-1000000)
        E.wait(E.vm_need(lambda t: t[0] == 'w2'), None)
        E(self.read_instrs(ns))
        assert self.nread == 18


class Phase1:
    def __init__(self, typ, xslot, wbase, wslot, nws, wpitch, nwd, units, vW2):
        self.typ = typ
        CUR[0] = typ
        self.E = Emit()
        self.sched = Sched()
        self.w2 = W2(self.sched, vW2)
        vis = {('x', s): 2 * s - 1 for s in range(7)}
        vis.update({('w', t): t - 1 for t in range(13)})
        vis.update({('w', 13): OPT['v13'], ('w', 14): OPT['v14'], ('w', 15): 12, ('x', 7): OPT['v14'], ('gw', 0): -1})
        if OPT['chain']:
            vis.update({('w', t): (t & ~1) - 1 for t in range(12)})
        if OPT['fsplit']:
            vis.update({('w', 13): 12, ('w', 14): 13, ('w', 15): 14, ('x', 7): 13})
        for t in range(16):
            units[('w', t)] = (wbase + (t % nws) * wslot, wbase + (t % nws + 1) * wslot)
        self.eng = Engine(self.E, self.sched, self.w2, vis, units, age=OPT['age'], verbose=typ if OPT['verbose'] else None)
        self.w2.eng = self.eng
        nxd = 7 if typ == 'Q' else 6
        for s in range(8):
            slot = (s % NXS) * xslot
            for d in range(nxd):
                hd = 4096 if typ == 'Q' else 0
                m0 = (sMX, slot + hd) if d < 4 else (sMX, slot + hd + 4096) if d < 6 else (sM7, slot)
                imm = 1024 * (d & 3) if d < 6 else 0
                pre = stage_pre(s, sKX, 128) if d == 0 else []
                ok = None if s < NXS else (lambda dd, c, s=s: self.eng.released(('x', s - NXS)))
                self.sched.add(Dma('x', ('x', s), m0, pre,
                                   "buffer_load_dwordx4 v%d, %s, s%d offen offset:%d lds" % (vXD + d, s4(sX), sKX, imm), vis[('x', s)] + 0.5, ok))
        for t in range(16):
            slot = wbase + (t % nws) * wslot
            for e in range(nwd):
                pre = []
                if e == 0:
                    pre = stage_pre(t >> 1, sKW, 64 * wpitch) if t % 2 == 0 else ["s_add_u32 s%d, s%d, %d" % (sKW, sKW, 32 * wpitch)]
                ok = None if t < nws else (lambda dd, c, t=t: self.eng.released(('w', t - nws)))
                self.sched.add(Dma('w', ('w', t), (sMW, slot), pre,
                                   "buffer_load_dwordx4 v%d, %s, s%d offen offset:%d lds" % (vWD + e, s4(sW), sKW, 1024 * e), vis[('w', t)] + 1, ok))

    def run(self, PF, segs, stamps):
        E, eng = self.E, self.eng
        eng.plan(segs)
        E(PF.stamp())
        eng.barrier(-1)
        while eng.next_read():
            pass
        for si, sg in enumerate(segs):
            if si in stamps:
                E(PF.stamp())
            elif OPT['sall'] and si > 12:
                E(["%s s[100:101]" % ("s_memtime" if OPT['prof'] == 1 else "s_memrealtime"), "s_waitcnt lgkmcnt(0)", "v_writelane_b32 v%d, s100, %d" % (PF.v, 16 + si - 13)])
            self.w2.enabled = si >= OPT['w2t']
            if sg.get('need_dma_done'):
                assert not self.sched.pending('x') and not self.sched.pending('w')
            sg.setdefault('w2key', si + OPT['w2prio'] + 0.25)
            eng.run_seg(si, sg)


def U(L):
    return [(x, 'untracked') for x in L]


def flag_store(val_reg, lab):
    return U(["s_cmp_lg_u32 s%d, 0" % sWV, "s_cbranch_scc1 %s" % lab,
              "s_mov_b32 exec_lo, 0", "s_brev_b32 exec_hi, 1",
              "buffer_store_dword v%d, v%d, %s, 0 offen sc1" % (val_reg, vFO, s4(sF)),
              "s_mov_b64 exec, -1", "%s:" % lab])


def tag_check(lab):
    return U(["s_mov_b32 s%d, 0" % sU,
              "%s_tag:" % lab,
              "v_cmp_eq_u32 vcc, 0, v%d" % (vTG + 1),
              "s_cmp_eq_u64 vcc, 0", "s_cbranch_scc1 %s_tagok" % lab,
              tag_load(), "s_add_u32 s%d, s%d, 1" % (sU, sU), "s_waitcnt vmcnt(0)",
              "s_cmp_lt_u32 s%d, 0x8000" % sU, "s_cbranch_scc1 %s_tag" % lab,
              "%s_tagok:" % lab,
              "v_lshrrev_b32 v%d, v%d, v%d" % (vTG, vSH, vTG), "v_and_b32 v%d, 1, v%d" % (vTG, vTG),
              "v_or_b32 v%d, 2, v%d" % (vTG + 1, vTG)])


def pub_seg(sg, PF, lab):
    sg['barrier'] = True
    sg['extra_vm'] = lambda t: t[0] == 'stA'
    sg['post'] = flag_store(vTG, lab + "_fa") + PF.xstamp(40)


def pub_inline(E, PF, lab):
    E.wait(E.vm_need(lambda t: t[0] in ('stA', 'tag')), None)
    E("s_barrier")
    E(flag_store(vTG, lab + "_fa") + PF.xstamp(40))


def poll_check(vP, mask, want, lab):
    return U(["s_mov_b32 s%d, 0" % sU,
              "%s:" % lab,
              "v_and_b32 v%d, %d, v%d" % (vP, mask, vP),
              "v_cmp_ne_u32 vcc, v%d, v%d" % (want, vP),
              "s_cmp_eq_u64 vcc, 0", "s_cbranch_scc1 %s_ok" % lab,
              "buffer_load_dword v%d, v%d, %s, 0 offen sc1" % (vP, vFO, s4(sF)),
              "s_add_u32 s%d, s%d, 1" % (sU, sU),
              "s_waitcnt vmcnt(0)",
              "s_cmp_lt_u32 s%d, 0x8000" % sU, "s_cbranch_scc1 %s" % lab,
              "%s_ok:" % lab])


def pick_regions(cands):
    c = sorted(cands)
    for i in range(len(c) - 3):
        if c[i + 3] - c[i] <= 7:
            return c[i:i + 4]
    raise AssertionError(cands)


vAD, vOUT, vMO, vMP, vP, vXR, vXW, vT, vG = 8, 13, 14, 15, 16, 17, 18, 22, 44
POLL = "buffer_load_dword v%d, v%d, %s, 0 offen sc1" % (vP, vFO, s4(sF))


def phase2(P1, PF, lab):
    E, w2 = P1.E, P1.w2
    if OPT['order'] == 0:
        passes = [[(0, 0, 0), (0, 0, 1)], [(1, 0, 0), (1, 0, 1)], [(0, 1, 0), (0, 1, 1)], [(1, 1, 0), (1, 1, 1)]]
    else:
        passes = [[(0, 0, 0), (0, 0, 1)], [(1, 0, 0)], [(0, 1, 0), (0, 1, 1)], [(1, 0, 1)], [(1, 1, 0), (1, 1, 1)]]
    slot = {(a, b, c): 4 * a + 2 * b + c for a in range(2) for b in range(2) for c in range(2)}
    rcvreg = {0: 224, 1: 240}
    H = lambda r: 64 + 16 * slot[r]
    gi = lambda r: vG + 4 * r[0] + 2 * r[2] + r[1]
    vOM = vG + 10
    groups = []
    odone, hdone = {}, {}
    for ps in passes:
        for kb in range(9):
            for r in ps:
                groups.append((r, kb))
                if kb == 1:
                    odone[r] = len(groups)
                if kb == 8:
                    hdone[r] = len(groups)
    NG = len(groups)
    LA, NQ = OPT['lag2'], 28
    E(["v_lshlrev_b32 v%d, 4, v%d" % (vT, vLANE), "s_xor_b32 s%d, s%d, 1" % (sU, sMT), "s_mul_i32 s%d, s%d, %d" % (sU, sU, MT_STRIDE),
       "v_add_u32 v%d, s%d, v%d" % (vAD, sU, vT)])
    E.wait(E.vm_need(lambda t: t[0] == 'pa'), None)
    E(PF.stamp())
    E(poll_check(vP, 1, vTG, lab + "_pa"))
    E(PF.stamp())

    def load(i):
        (who, cls, q), kb = groups[i]
        return ("buffer_load_dwordx4 %s, v%d, %s, s%d offen offset:%d sc1" % (a4(4 * (i % NQ)), vAD + 2 * who + cls, s4(sA), KB[kb], 1024 * q), ('a', i))
    for i in range(4):
        E(load(i))
    m, g = vT + 1, vT + 2
    E(["v_and_b32 v%d, 15, v%d" % (m, vLANE), "s_lshl_b32 s%d, s%d, 8" % (sU, sMT),
       "v_lshl_add_u32 v%d, v%d, 2, s%d" % (vG + 9, m, sU), "v_xor_b32 v%d, 256, v%d" % (vG + 8, vG + 9)])
    for who in range(2):
        for r in range(4):
            E("buffer_load_dword v%d, v%d, %s, 0 offen offset:%d sc1" % (vG + 4 * who + r, vG + 8 + who, s4(sG), 64 * r), ('g', 0))
    for i in range(4, LA):
        E(load(i))
    w2.read_rest(E)
    L = ["s_mul_i32 s%d, s%d, %d" % (sU, sMT, MT_STRIDE), "v_add_u32 v%d, s%d, v%d" % (vAD + 2, sU, vT),
         "v_add_u32 v%d, %d, v%d" % (vAD + 1, CLS, vAD), "v_add_u32 v%d, %d, v%d" % (vAD + 3, CLS, vAD + 2),
         "s_lshl_b32 s%d, s2, 13" % sU, "s_lshl_b32 s%d, s%d, 11" % (sU + 1, sWV), "s_add_u32 s%d, s%d, s%d" % (sU, sU, sU + 1),
         "s_add_u32 s%d, s%d, %d" % (sU, sU, MB_OFF), "v_add_u32 v%d, s%d, v%d" % (vMO, sU, vT), "v_xor_b32 v%d, 0x2000, v%d" % (vMP, vMO)]
    L += ["v_lshrrev_b32 v%d, 4, v%d" % (g, vLANE),
          "v_and_b32 v%d, 2, v%d" % (vT + 3, g), "v_xor_b32 v%d, v%d, v%d" % (vT + 3, vT + 3, m),
          "v_lshl_add_u32 v%d, v%d, 4, v%d" % (vT + 3, g, vT + 3), "v_lshl_add_u32 v%d, v%d, 4, s%d" % (vXW, vT + 3, sM2)]
    L += ["v_xor_b32 v%d, %d, v%d" % (vXW + t, 64 * t, vXW) for t in range(1, 4)]
    c, mm = vT, vT + 1
    L += ["v_and_b32 v%d, 7, v%d" % (c, vLANE), "v_lshrrev_b32 v%d, 3, v%d" % (mm, vLANE),
          "s_and_b32 s%d, s%d, 1" % (sU, sWV), "s_lshl_b32 s%d, s%d, 3" % (sU, sU), "v_add_u32 v%d, s%d, v%d" % (mm, sU, mm),
          "s_lshl_b32 s%d, s%d, 1" % (sU + 1, sMT), "s_lshr_b32 s%d, s%d, 1" % (sU + 2, sWV), "s_add_u32 s%d, s%d, s%d" % (sU + 1, sU + 1, sU + 2),
          "s_lshl_b32 s%d, s%d, 15" % (sU + 1, sU + 1), "s_lshl_b32 s%d, s%d, 7" % (sU + 3, sNT), "s_add_u32 s%d, s%d, s%d" % (sU + 1, sU + 1, sU + 3),
          "v_lshl_add_u32 v%d, v%d, 4, s%d" % (vOUT, c, sU + 1), "v_lshl_add_u32 v%d, v%d, 11, v%d" % (vOUT, mm, vOUT),
          "s_lshl_b32 s%d, s%d, 8" % (sU + 4, sMT), "s_lshl_b32 s%d, s%d, 7" % (sU + 5, sU + 2), "s_add_u32 s%d, s%d, s%d" % (sU + 4, sU + 4, sU + 5),
          "v_lshl_add_u32 v%d, v%d, 2, s%d" % (vG + 12, mm, sU + 4),
          "v_lshlrev_b32 v%d, 1, v%d" % (vT + 2, c), "v_xor_b32 v%d, v%d, v%d" % (mm, mm, vT + 2), "v_lshlrev_b32 v%d, 4, v%d" % (mm, mm),
          "v_and_b32 v%d, 3, v%d" % (vT + 2, c), "v_lshl_add_u32 v%d, v%d, 9, v%d" % (mm, vT + 2, mm),
          "v_lshrrev_b32 v%d, 2, v%d" % (c, c), "v_lshl_add_u32 v%d, v%d, 13, v%d" % (mm, c, mm),
          "s_lshl_b32 s%d, s%d, 14" % (sU + 2, sU + 2), "v_add_u32 v%d, s%d, v%d" % (vXR, sU + 2, mm)]
    E(L)
    E.wait(E.vm_need(lambda t: t[0] in ('stA', 'stB')), E.lg_need(lambda t: t[0] == 'w2r'))
    E("s_barrier")
    E(flag_store(vTG + 1, lab + "_fb"))
    osc = ["", " sc1", " nt", " sc0 sc1"][OPT['outsc']]

    def xw(e, r, t):
        return ("ds_write_b128 v%d, %s offset:%d" % (vXW + t, v4(H(r) + 4 * t), 32768 * (e & 1) + 16384 * r[2] + 8192 * (t >> 1) + 1024 * (t & 1)), ('xw', e))

    def rdst(who, cls, w):
        return 192 + 8 * w

    def xr(e, who, cls):
        return [("ds_read_b128 %s, v%d offset:%d" % (v4(rdst(who, cls, w) + 4 * h), vXR, 32768 * (e & 1) + 2048 * w + 256 * h), ('xr', e))
                for w in range(4) for h in range(2)]

    def rcv(cls):
        R = rcvreg[cls] + 8
        return [("buffer_load_dwordx4 %s, v%d, %s, 0 offen offset:%d sc1" % (v4(R), vMO, s4(sF), 1024 * cls), ('rcv', cls))]

    def rcv_check(cls):
        R = rcvreg[cls] + 8
        lb = "%s_r%d" % (lab, cls)
        return U(["s_mov_b32 s%d, 0" % sU, lb + ":",
                  "v_max3_u32 v%d, v%d, v%d, v%d" % (vT, R, R + 1, R + 2), "v_max_u32 v%d, v%d, v%d" % (vT, vT, R + 3),
                  "v_cmp_eq_u32 vcc, -1, v%d" % vT,
                  "s_cmp_eq_u64 vcc, 0", "s_cbranch_scc1 %s_ok" % lb] + [x[0] for x in rcv(cls)] +
                 ["s_add_u32 s%d, s%d, 1" % (sU, sU), "s_waitcnt vmcnt(0)",
                  "s_cmp_lt_u32 s%d, 0x2000" % sU, "s_cbranch_scc1 %s" % lb, lb + "_ok:"])

    def unpack(cls):
        R = rcvreg[cls]
        T = []
        for i in range(4):
            T += ["v_lshlrev_b32 v%d, 16, v%d" % (R + 2 * i, R + 8 + i), "v_and_b32 v%d, 0xffff0000, v%d" % (R + 2 * i + 1, R + 8 + i)]
        return T

    def finish(who, cls, pk):
        D = [rdst(who, cls, w) for w in range(4)]
        T = []
        if pk:
            add = lambda a, b: ["v_pk_add_f32 %s, %s, %s" % (v2(a + i), v2(a + i), v2(b + i)) for i in range(0, 8, 2)]
        else:
            add = lambda a, b: ["v_add_f32 v%d, v%d, v%d" % (a + i, a + i, b + i) for i in range(8)]
        T += add(D[0], D[1]) + add(D[2], D[3])
        if (who, cls) == (1, 0):
            S0 = H((1, 0, 0))
            T += ["v_add_f32 v%d, v%d, v%d" % (S0 + i, D[0] + i, D[2] + i) for i in range(8)] + ['SPLIT']
            D = [S0]
        else:
            T += add(D[0], D[2])
        if who == 0:
            T += ["v_cvt_pk_bf16_f32 v%d, v%d, v%d" % (D[0] + i, D[0] + 2 * i, D[0] + 2 * i + 1) for i in range(4)]
            T += [("buffer_store_dwordx4 %s, v%d, %s, 0 offen offset:%d sc1" % (v4(D[0]), vMP, s4(sF), 1024 * cls), ('snd', cls))]
        else:
            T += [('VM', lambda t: t == ('rcv', cls)), rcv_check(cls)] + unpack(cls) + add(D[0], rcvreg[cls])
            if pk:
                T += ["v_pk_mul_f32 %s, %s, %s op_sel:[0,1] op_sel_hi:[1,1]" % (v2(D[0] + i), v2(D[0] + i), v2(vOM)) for i in range(0, 8, 2)]
            else:
                T += ["v_mul_f32 v%d, v%d, v%d" % (D[0] + i, D[0] + i, vOM + cls) for i in range(8)]
            T += ["v_cvt_pk_bf16_f32 v%d, v%d, v%d" % (D[0] + i, D[0] + 2 * i, D[0] + 2 * i + 1) for i in range(4)]
            T += [("buffer_store_dwordx4 %s, v%d, %s, 0 offen offset:%d%s" % (v4(D[0]), vOUT, s4(sO), 1024 * cls, osc), ('o', cls))]
        return T
    Q = [(6, ("buffer_load_dword v%d, v%d, %s, 0 offen offset:%d sc1" % (vOM + c_, vG + 12, s4(sG), 64 * c_), ('om', 0))) for c_ in range(2)]
    ev = [(24, 0, [('VM', lambda t: t[0] == 'om')] + ["v_add_f32 v%d, 1.0, v%d" % (vOM + c_, vOM + c_) for c_ in range(2)] +
           ["v_rcp_f32 v%d, v%d" % (vOM + c_, vOM + c_) for c_ in range(2)])]
    gl = sorted({(r[0], r[1]) for r in slot}, key=lambda k: hdone[k + (1,)])
    for e, (who, cls) in enumerate(gl[:3]):
        it = [xw(e, (who, cls, q), t) for q in range(2) for t in range(4)]
        it += [('GAP', 2), ('LG', lambda t, e=e: t == ('xw', e)), "s_barrier"] + xr(e, who, cls)
        it += [('GAP', 2), ('LG', lambda t, e=e: t == ('xr', e))] + finish(who, cls, False)
        if who == 1:
            k = it.index('SPLIT')
            ev.append((OPT['fin0'], 0, it[k + 1:]))
            it = it[:k]
        ev.append((hdone[(who, cls, 1)] + (OPT['dly'] if (who, cls) != (0, 1) else 0), -1, it))
    ev.sort(key=lambda x: (x[0], x[1]))
    for at, _, it in ev:
        Q += [(at, x) for x in it]
    hot = (hdone[(0, 1, 1)], hdone[(0, 1, 1)] + 10)
    firstB = min(i for i, (r, kb) in enumerate(groups) if r[1] == 1)
    chk = firstB - LA
    hold = 0
    when = {}

    def emit_item(x):
        if isinstance(x, tuple) and x[0] == 'VM':
            E.wait(E.vm_need(x[1]), None)
        elif isinstance(x, tuple) and x[0] == 'LG':
            E.wait(None, E.lg_need(x[1]))
        else:
            E(x)
    WS_ = OPT['wstep']
    for i, (r, kb) in enumerate(groups):
        if i % WS_ == 0 or i == chk:
            E.wait(E.vm_need(lambda t: (t[0] == 'a' and t[1] < (i // WS_ + 1) * WS_) or (i == chk and t[0] == 'pb')), None)
        if i == chk:
            E(poll_check(vP, 3, vTG + 1, lab + "_pb"))
        if i in (0, 36):
            E(PF.stamp())
        budget = OPT['capx'] if hot[0] <= i < hot[1] else OPT['cap']
        if i + 1 < NG and groups[i + 1][1] == 2 and not hot[0] <= i < hot[1]:
            budget = 0
        side = []
        while Q and Q[0][0] <= i and hold <= i and budget > 0:
            x = Q.pop(0)[1]
            if isinstance(x, tuple) and x[0] == 'GAP':
                hold = i + x[1]
                break
            side.append(x)
            if isinstance(x, tuple) and len(x) == 2 and isinstance(x[1], tuple):
                when[x[1]] = i
            tx = x if isinstance(x, str) else x[0] if isinstance(x, tuple) else 's_x'
            budget -= 40 if isinstance(x, list) else 16 if tx.startswith("ds_write") else cost(tx) if tx not in ('VM', 'LG') else 4
        vm_ = []
        if i + LA < NG:
            vm_.append(load(i + LA))
        if i == chk - OPT['pl']:
            vm_.append((POLL, ('pb', 0)))
        if i == OPT['rcv0']:
            vm_ += rcv(0)
        if i == NG - OPT['rcv']:
            vm_ += rcv(1)
        acc = H(r)
        nr = groups[i + 1] if i + 1 < NG else None
        scale = nr[0] if (nr and nr[1] == 2 and nr[0] != r) else None
        if kb == 2 and groups[i - 1][0] == r:
            E(["v_mul_f32 v%d, v%d, v%d" % (acc + j, acc + j, gi(r)) for j in range(16)])
        if scale and i < 6:
            E.wait(E.vm_need(lambda t: t[0] == 'g'), None)
        for t in range(4):
            d = v4(acc + 4 * t)
            E("v_mfma_f32_16x16x32_bf16 %s, %s, %s, %s" % (d, a4(W2.areg(kb) + 4 * t), a4(4 * (i % NQ)), "0" if kb == 0 else d))
            if scale and t:
                E(["v_mul_f32 v%d, v%d, v%d" % (H(scale) + j, H(scale) + j, gi(scale)) for j in range((0, 0, 4, 10)[t], (0, 4, 10, 16)[t])])
            if t == 0:
                E(vm_)
                if vm_:
                    continue
            lo = (t - (1 if vm_ else 0))
            nn = 3 if vm_ else 4
            for x in side[lo * len(side) // nn:(lo + 1) * len(side) // nn]:
                emit_item(x)
    E(PF.stamp())
    if OPT['verbose']:
        sys.stderr.write("phase2 leftover %d items\n" % len(Q))
    if OPT['verbose']:
        sys.stderr.write("when %s\n" % when)
    for r in [(1, 1, 0), (1, 1, 1)]:
        for t in range(4):
            E(xw(3, r, t))
    for at, x in Q:
        if not (isinstance(x, tuple) and x[0] == 'GAP'):
            assert x != "s_barrier"
            emit_item(x)
    E.wait(None, E.lg_need(lambda t: t == ('xw', 3)))
    E("s_barrier")
    E(xr(3, 1, 1))
    fn = finish(1, 1, True)
    k = [j for j, x in enumerate(fn) if isinstance(x, tuple) and x[0] == 'VM'][0]
    for x in fn[k:k + 10]:
        emit_item(x)
    E.wait(None, E.lg_need(lambda t: t == ('xr', 3)))
    for x in fn[:k] + fn[k + 10:]:
        emit_item(x)
    E(PF.stamp() + PF.dump() + ["s_endpgm"])


def gen_H():
    PF = Prof(31)
    L = PF.stamp()
    L += ["s_mul_i32 s%d, s%d, 21" % (sT, sXCD), "s_add_u32 s%d, s%d, s%d" % (sT, sT, sIDX), "s_sub_u32 s%d, s%d, 11" % (sT, sT),
          "s_mul_i32 s%d, s%d, 171" % (sCG, sT), "s_lshr_b32 s%d, s%d, 11" % (sCG, sCG),
          "s_mul_i32 s%d, s%d, 12" % (sT + 1, sCG), "s_sub_u32 s%d, s%d, s%d" % (sT, sT, sT + 1),
          "s_mul_i32 s%d, s%d, 11" % (sRB0, sT),
          "s_mul_i32 s%d, s%d, 14" % (sPID, sT), "s_add_u32 s%d, s%d, s%d" % (sPID, sPID, sCG), "s_add_u32 s%d, s%d, 88" % (sPID, sPID),
          "s_mul_i32 s%d, s%d, %d" % (sROT, sCG, OPT['rotb']), "s_add_u32 s%d, s%d, s%d" % (sROT, sT, sROT)]
    L += rot_fix('H')
    x_setup(L, 'H')
    L += ["v_and_b32 v38, 1, v33", "v_lshlrev_b32 v38, 1, v38", "v_xor_b32 v38, v34, v38", "v_lshlrev_b32 v38, 4, v38",
          "s_movk_i32 s%d, 3584" % sT, "v_mad_u32_u24 v38, v32, s%d, v38" % sT, "v_xor_b32 v39, 64, v38",
          "s_and_b32 s%d, s%d, 1" % (sT, sWV), "s_lshl_b32 s%d, s%d, 7" % (sT, sT),
          "s_lshl_b32 s%d, s%d, 8" % (sT + 1, sCG), "s_add_u32 s%d, s%d, s%d" % (sT, sT, sT + 1)]
    for e in range(4):
        L += ["s_add_u32 s%d, s%d, %d" % (sT + 1, sT, e * (8 * 3584 - 1024)), "v_add_u32 v%d, s%d, v%d" % (vWD + e, sT + 1, 38 + (e & 1))]
    L += ["s_mul_i32 s%d, s%d, 6144" % (sMX, sWV), "s_lshl_b32 s%d, s%d, 12" % (sMW, sWV)]
    L += ["s_waitcnt lgkmcnt(0)"] + PF.xstamp(50)
    L += srd(sX, pX, 2048 * 1024, bias=4096)
    L += ["s_cmp_lt_u32 s%d, 2" % sWV, "s_cselect_b32 s%d, s%d, s%d" % (sW, pWG, pWU), "s_cselect_b32 s%d, s%d, s%d" % (sW + 1, pWG + 1, pWU + 1),
          "s_mov_b32 s%d, %d" % (sW + 2, 512 * 3584), "s_mov_b32 s%d, 0x20000" % (sW + 3)]
    XS, WB, WS, NWS = 24576, 24576 * NXS, 16384, OPT['nwsH']
    units = {}
    for st in range(8):
        lo = (st % NXS) * XS
        if st < 6:
            units[('x', st)] = (lo, lo + XS)
        else:
            for k in range(3):
                units[('x', st, k)] = (lo + 8192 * k, lo + 8192 * k + 8192)
    P1 = Phase1('H', XS, WB, WS, NWS, 3584, 4, units, (62, 0))
    E = P1.E
    lb = LdsBases(range(vRD + 4, 28))
    vx0, vx1, vw0, vw1 = vRD, vRD + 1, vRD + 2, vRD + 3
    S2 = ["v_and_b32 v40, 15, v%d" % vLANE, "v_lshrrev_b32 v41, 1, v40", "v_xor_b32 v41, v41, v33",
          "v_lshlrev_b32 v41, 4, v41", "v_lshl_add_u32 v%d, v40, 7, v41" % vx0, "v_xor_b32 v%d, 64, v%d" % (vx1, vx0)]
    S2 += ["v_lshrrev_b32 v42, 2, v40", "v_lshl_add_u32 v43, v33, 3, v42",
           "v_lshrrev_b32 v44, 1, v42", "v_and_b32 v45, 1, v33", "v_lshl_add_u32 v44, v45, 1, v44",
           "s_and_b32 s%d, s%d, 1" % (sT, sWV), "s_lshl_b32 s%d, s%d, 1" % (sT, sT), "v_xor_b32 v44, s%d, v44" % sT,
           "v_lshlrev_b32 v44, 5, v44", "v_lshl_add_u32 v43, v43, 7, v44",
           "v_and_b32 v45, 3, v%d" % vLANE, "v_lshl_add_u32 v43, v45, 3, v43",
           "s_lshr_b32 s%d, s%d, 1" % (sT, sWV), "s_lshl_b32 s%d, s%d, 12" % (sT, sT),
           "v_add_u32 v%d, s%d, v43" % (vw0, sT), "v_xor_b32 v%d, 32, v%d" % (vw1, vw0)]
    ops = {}

    def X(t, b):
        if ('x', t, b) not in ops:
            r, o = lb.addr(vx1 if (t & 1) else vx0, ((t >> 1) % NXS) * XS + 2048 * b)
            st = t >> 1
            ops[('x', t, b)] = Operand(('x', t, b), lambda q: ["ds_read_b128 %s, v%d offset:%d" % (a4(q), r, o)], ('x', st),
                                       ('x', st) if st < 6 else ('x', st, b >> 2))
        return ops[('x', t, b)]

    def W(t, q):
        if ('w', t, q) not in ops:
            ad = [lb.addr(vw1 if (q & 1) else vw0, WB + (t % NWS) * WS + (8192 if q >= 2 else 0) + 512 * h) for h in range(2)]
            ops[('w', t, q)] = Operand(('w', t, q), lambda qq: ["ds_read_b64_tr_b16 %s, v%d offset:%d" % (a2(qq + 2 * h), ad[h][0], ad[h][1]) for h in range(2)],
                                       ('w', t), ('w', t))
        return ops[('w', t, q)]
    D = lambda b, q: ACC + 16 * b + 4 * q
    vST = 61
    ES = ["s_mov_b32 s%d, 0x%x" % (sC0, NLOG2E), "s_mov_b32 s%d, 0x%x" % (sC0 + 1, NLOG2E),
          "s_mov_b32 s%d, 1.0" % (sC0 + 2), "s_mov_b32 s%d, 1.0" % (sC0 + 3),
          ["s_lshl_b32 s%d, s%d, 2" % (sU, sCG), "s_add_u32 s%d, s%d, s%d" % (sU, sU, sWV)],
          ["s_add_u32 s%d, s%d, 16" % (sU, sU), "s_lshl_b32 s%d, s%d, 11" % (sU, sU)],
          "v_lshlrev_b32 v%d, 4, v%d" % (vST, vLANE), "v_add_u32 v%d, s%d, v%d" % (vST, sU, vST)]
    ES += [["s_add_u32 s%d, s%d, s%d" % (sU + 2, sRB0, sPAR), "s_sub_u32 s%d, s%d, s%d" % (sU + 3, sRB0, sPAR)]]
    so = store_offsets([(sU + 2, 2 * b) for b in range(5)] + [(sRB0, 10)] + [(sU + 3, 1 + 2 * b) for b in range(5)])
    stf = ["", " sc1", " nt", " sc1 nt"][OPT['stsc']]

    def store(b):
        return ("buffer_store_dwordx4 %s, v%d, %s, s%d offen%s" % (v4(ACC + 16 * b), vST, s4(sA), sST + b, stf), ('stA' if b < 6 else 'stB', b))

    def epi(b, pk):
        G = [ACC + 16 * b + i for i in range(8)]
        Uu = [ACC + 16 * b + 8 + i for i in range(8)]
        if pk:
            T = ["v_pk_mul_f32 %s, %s, s[%d:%d]" % (v2(G[i]), v2(G[i]), sC0, sC0 + 1) for i in range(0, 8, 2)]
            T += ["v_exp_f32 v%d, v%d" % (g, g) for g in G]
            T += ["v_pk_add_f32 %s, %s, s[%d:%d]" % (v2(G[i]), v2(G[i]), sC0 + 2, sC0 + 3) for i in range(0, 8, 2)]
            T += ["v_rcp_f32 v%d, v%d" % (g, g) for g in G]
            T += ["v_pk_mul_f32 %s, %s, %s" % (v2(Uu[i]), v2(Uu[i]), v2(G[i])) for i in range(0, 8, 2)]
        else:
            T = ["v_mul_f32 v%d, s%d, v%d" % (g, sC0, g) for g in G]
            T += ["v_exp_f32 v%d, v%d" % (g, g) for g in G]
            T += ["v_add_f32 v%d, 1.0, v%d" % (g, g) for g in G]
            T += ["v_rcp_f32 v%d, v%d" % (g, g) for g in G]
            T += ["v_mul_f32 v%d, v%d, v%d" % (u, u, g) for u, g in zip(Uu, G)]
        T += ["v_cvt_pk_bf16_f32 v%d, v%d, v%d" % (G[i], Uu[2 * i], Uu[2 * i + 1]) for i in range(4)]
        return T + [store(b)]
    extra = {0: P1.w2.setup_dma(), 1: P1.w2.setup_rd(), 2: ES, 4: so[:15], 5: so[15:30], 6: so[30:45], 7: so[45:]}
    extra[OPT['wt']] = extra.get(OPT['wt'], []) + warmups(58, 59)
    extra[OPT['wt2']] = extra.get(OPT['wt2'], []) + warmups(56, 57, 2)[:-1]
    extra[OPT['wt3']] = extra.get(OPT['wt3'], []) + warmups(54, 55, 1)
    segs = []
    for t in range(12):
        if OPT['chain']:
            al = [(D(b, q), W(k, q), X(k, b), k == 0) for b in range(11) for q in (range(4) if (b % 2 == 0 or OPT['chain'] == 1) else range(3, -1, -1))
                  for k in ((t & ~1, t | 1) if (q % 2 == 0 or OPT['chain'] < 3 or t < 2) else (t | 1, t & ~1))]
            mfl = al[44 * (t & 1):44 * (t & 1) + 44]
        else:
            mfl = [(D(b, q), W(t, q), X(t, b), t == 0) for b in range(11) for q in range(4)]
        segs.append(dict(mf=mfl,
                         fill=extra.get(t, []), ndma=OPT['maxd'] if t >= 4 else OPT['maxd0'], nw2r=OPT['nrm']))
    segs[OPT['tgH']]['fill'] = segs[OPT['tgH']]['fill'] + flag_setup() + [(tag_load(), ('tag', 0))]
    segs[11]['extra_vm'] = lambda t: t[0] == 'tag'
    segs[11]['post'] = tag_check("H")
    F = OPT['fH']
    fs = []
    if OPT['clr'] == 12:
        segs[11]['fill'] = segs[11]['fill'] + mailbox_clear()[:-2]
        fs = mailbox_clear()[-2:]
    elif OPT['clr'] >= 0:
        segs[OPT['clr']]['fill'] = segs[OPT['clr']]['fill'] + mailbox_clear()
    if OPT['fsplit']:
        for t in range(12, 16):
            segs.append(dict(mf=[(D(b, q), W(t, q), X(t, b), False) for b in range(F) for q in range(4)],
                             fill=fs[:12] if t == 14 else fs[12:] if t == 15 else [], ndma=(OPT['maxd'] * 4 * F + 22) // 44, nw2r=1, need_dma_done=(t == 14), rdrate=2))
    else:
        segs.append(dict(mf=[(D(b, q), W(t, q), X(t, b), False) for t in range(12, 16) for b in range(F) for q in range(4)],
                         fill=fs, ndma=(OPT['maxd'] * 16 * F) // 44, nw2r=2, need_dma_done=True, rdrate=2))
    s0 = len(segs)
    queue = []
    nfused = 10
    ready = F
    taken = 0
    allq = [x for b in range(nfused) for x in epi(b, False)]
    for b in range(F, 11):
        n = min(OPT['quota'] or -(-45 * nfused // (11 - F)), 45 * min(b, nfused) - taken)
        si = len(segs)
        segs.append(dict(mf=[(D(b, q), W(t, q), X(t, b), False) for q in range(4) for t in range(12, 16)],
                         fill=allq[taken:taken + n], ndma=OPT['fdH'], nw2r=OPT['nwf'], barrier=bool((OPT['barH'] >> (si - s0)) & 1),
                         force_release=(b == 10)))
        if b == OPT['pubH']:
            assert taken >= 270
            pub_seg(segs[-1], PF, "H")
        taken += n
    segs[-1]['barrier'] = True
    if OPT['ppH']:
        f = segs[-1]['fill']
        f.insert(len(f) * (10 - OPT['ppH']) // 10, (POLL, ('pa', 0)))
    for x in P1.sched.take(10):
        E(x)
    E(PF.xstamp(51) + tlb_warm() + S2 + ["@LB"] + late_scalar_setup() + (mailbox_clear() if OPT['clr'] < 0 else []) + ["@TOUCH"])
    for x in P1.sched.take(OPT['npro'] - 10):
        E(x)
    P1.run(PF, segs, (0, 4, 8, 12))
    E(PF.stamp())
    if OPT['pubH'] > 10:
        pub_inline(E, PF, "H")
    P1.w2.flush(E, OPT['keep'])
    if not OPT['ppH']:
        E(POLL, ('pa', 0))
    E(allq[taken:] + epi(10, True))
    E(PF.stamp())
    phase2(P1, PF, "H")
    i = E.L.index("@LB")
    return L + E.L[:i] + lb.setup + E.L[i + 1:]


def gen_Q():
    PF = Prof(10 if False else 31)
    L = PF.stamp()
    L += ["s_mov_b32 s%d, s%d" % (sCG, sXCD), "s_mul_i32 s%d, s%d, 12" % (sRB0, sIDX),
          "s_lshl_b32 s%d, s%d, 3" % (sPID, sIDX), "s_add_u32 s%d, s%d, s%d" % (sPID, sPID, sXCD),
          "s_add_u32 s%d, s%d, s%d" % (sROT, sIDX, sXCD), "s_add_u32 s%d, s%d, %d" % (sROT, sROT, OPT['rotq'])]
    L += rot_fix('Q')
    x_setup(L, 'Q')
    L += ["s_lshl_b32 s%d, s%d, 4" % (sT, sRB0), "s_add_u32 s%d, s%d, s%d" % (sT, sT, sWV),
          "s_sub_u32 s%d, s%d, 16" % (sT, sT), "s_lshl_b32 s%d, s%d, 10" % (sT, sT), "s_add_u32 s%d, s%d, 4096" % (sT, sT),
          "s_cmp_eq_u32 s%d, 0" % sRB0, "s_cselect_b32 s%d, 0x%x, s%d" % (sT, BIG, sT),
          "s_cmp_ge_u32 s%d, 2" % sWV, "s_cselect_b32 s%d, 0x%x, s%d" % (sT, BIG, sT),
          "s_and_b32 s%d, s%d, 1" % (sT + 1, sWV), "s_lshl_b32 s%d, s%d, 6" % (sT + 1, sT + 1),
          "v_xor_b32 v38, s%d, v36" % (sT + 1), "v_add_u32 v%d, s%d, v38" % (vXD + 6, sT)]
    L += ["v_and_b32 v38, 1, v33", "v_lshlrev_b32 v38, 1, v38", "v_xor_b32 v38, v34, v38", "v_lshlrev_b32 v38, 4, v38",
          "s_movk_i32 s%d, 3072" % sT, "v_mad_u32_u24 v38, v32, s%d, v38" % sT,
          "s_mul_i32 s%d, s%d, 3" % (sT, sWV), "s_lshl_b32 s%d, s%d, 7" % (sT + 4, sCG)]
    for e in range(3):
        L += ["s_add_u32 s%d, s%d, %d" % (sT + 1, sT, e),
              "s_and_b32 s%d, s%d, 3" % (sT + 2, sT + 1), "s_mul_i32 s%d, s%d, %d" % (sT + 2, sT + 2, 8 * 3072),
              "s_lshr_b32 s%d, s%d, 2" % (sT + 3, sT + 1), "s_lshl_b32 s%d, s%d, 10" % (sT + 3, sT + 3),
              "s_add_u32 s%d, s%d, s%d" % (sT + 2, sT + 2, sT + 3), "s_add_u32 s%d, s%d, s%d" % (sT + 2, sT + 2, sT + 4),
              "s_sub_u32 s%d, s%d, %d" % (sT + 2, sT + 2, 1024 * e),
              "s_and_b32 s%d, s%d, 1" % (sT + 1, sT + 1), "s_lshl_b32 s%d, s%d, 6" % (sT + 1, sT + 1),
              "v_xor_b32 v39, s%d, v38" % (sT + 1), "v_add_u32 v%d, s%d, v39" % (vWD + e, sT + 2)]
    L += ["s_mul_i32 s%d, s%d, 6144" % (sMX, sWV), "s_mul_i32 s%d, s%d, 3072" % (sMW, sWV), "s_lshl_b32 s%d, s%d, 10" % (sM7, sWV)]
    L += ["v_lshlrev_b32 v39, 2, v32", "s_mov_b32 s%d, 0x%x" % (sT, OPT['masks'] & 0x77777777),
          "v_lshrrev_b32 v39, v39, s%d" % sT, "s_and_b32 s%d, s%d, 7" % (sT + 1, sROT), "v_and_b32 v39, s%d, v39" % (sT + 1),
          "v_xor_b32 v39, v39, v32", "v_lshl_add_u32 v39, v39, 3, v34", "v_lshlrev_b32 v39, 4, v39"]
    L += ["s_waitcnt lgkmcnt(0)"] + PF.xstamp(50)
    L += srd(sX, pX, 2048 * 1024, bias=4096) + srd(sW, pQKV, 512 * 3072) + srd(sG, pGW, 1024)
    XS, WB, WS, NWS = 28672, 28672 * NXS, 12288, OPT['nwsQ']
    GW = WB + NWS * WS
    L += ["s_mov_b32 m0, %d" % GW, "s_nop 0", "buffer_load_dwordx4 v39, %s, 0 offen lds" % s4(sG)]
    units = {('x', st): ((st % NXS) * XS, (st % NXS + 1) * XS) for st in range(6)}
    for st in (6, 7):
        lo = (st % NXS) * XS
        units[('x', st, 0)] = (lo, lo + 16384)
        for k in range(3):
            units[('x', st, 1 + k)] = (lo + 16384 + 4096 * k, lo + 20480 + 4096 * k)
    units[('gw', 0)] = (GW, GW + 1024)
    P1 = Phase1('Q', XS, WB, WS, NWS, 3072, 3, units, (12, 0))
    E = P1.E
    lb = LdsBases(range(vRD + 9, 28))
    lb2 = LdsBases(range(44, 48))
    vx0, vx1, vw0, vw1, vh0, vh1, vt0, vt1, vg = [vRD + i for i in range(9)]
    S2 = ["v_and_b32 v40, 15, v%d" % vLANE, "v_lshrrev_b32 v41, 1, v40", "v_xor_b32 v41, v41, v33",
          "v_lshlrev_b32 v41, 4, v41", "v_lshl_add_u32 v42, v40, 7, v41",
          "s_lshr_b32 s%d, s%d, 1" % (sT, sWV), "s_lshl_b32 s%d, s%d, 11" % (sT + 1, sT), "s_add_u32 s%d, s%d, 4096" % (sT + 1, sT + 1),
          "v_add_u32 v%d, s%d, v42" % (vx0, sT + 1), "v_xor_b32 v%d, 64, v%d" % (vx1, vx0)]
    S2 += ["s_lshl_b32 s%d, s%d, 2" % (sT + 1, sCG), "s_add_u32 s%d, s%d, s%d" % (sT + 1, sT + 1, sWV),
           "s_min_u32 s%d, s%d, 11" % (sT + 1, sT + 1), "s_lshl_b32 s%d, s%d, 11" % (sT + 1, sT + 1), "s_add_u32 s%d, s%d, 4096" % (sT + 1, sT + 1),
           "v_add_u32 v%d, s%d, v42" % (vt0, sT + 1), "v_xor_b32 v%d, 64, v%d" % (vt1, vt0)]
    S2 += ["v_or_b32 v43, 8, v40", "v_lshrrev_b32 v44, 1, v43", "v_xor_b32 v44, v44, v33", "v_lshlrev_b32 v44, 4, v44",
           "v_lshl_add_u32 v44, v43, 7, v44",
           "v_lshrrev_b32 v45, 3, v40", "v_mul_u32_u24 v45, %d, v45" % (6 * 2048), "v_add_u32 v44, v45, v44", "v_add_u32 v44, %d, v44" % (4096 + 4 * 2048),
           "v_mov_b32 v45, v42",
           "s_cmp_eq_u32 s%d, 0" % sT, "s_cselect_b64 vcc, -1, 0",
           "v_cndmask_b32 v%d, v44, v45, vcc" % vh0, "v_xor_b32 v%d, 64, v%d" % (vh1, vh0)]
    S2 += ["v_lshrrev_b32 v42, 2, v40", "v_lshl_add_u32 v43, v33, 3, v42",
           "v_lshrrev_b32 v44, 1, v42", "v_and_b32 v45, 1, v33", "v_lshl_add_u32 v44, v45, 1, v44",
           "s_and_b32 s%d, s%d, 1" % (sT, sWV), "s_lshl_b32 s%d, s%d, 1" % (sT, sT), "v_xor_b32 v44, s%d, v44" % sT,
           "v_lshlrev_b32 v44, 5, v44", "v_lshl_add_u32 v43, v43, 7, v44",
           "v_and_b32 v45, 3, v%d" % vLANE, "v_lshl_add_u32 v%d, v45, 3, v43" % vw0,
           "v_xor_b32 v%d, 32, v%d" % (vw1, vw0),
           "v_lshlrev_b32 v45, 4, v33", "v_add_u32 v%d, %d, v45" % (vg, GW)]

    def Qa(hh, b): return ACC + 4 * (hh * 20 + b)
    def Ka(hh, b): return ACC + 4 * (hh * 20 + 6 + b)
    def Va(hh, b): return ACC + 4 * (hh * 20 + 13 + b)
    TA = ACC + 160
    ops = {}

    def X(t, b):
        if ('x', t, b) not in ops:
            xo = ((t >> 1) % NXS) * XS
            tag = ('x', t >> 1)
            if b < 6:
                r, o = lb.addr(vx1 if (t & 1) else vx0, xo + 2048 * (6 * (b & 1) + 2 * (b >> 1)))
            elif b == 6:
                r, o = lb.addr(vh1 if (t & 1) else vh0, xo)
            elif b == 7:
                r, o = lb.addr(vt1 if (t & 1) else vt0, xo)
            else:
                r, o, tag = vg, 64 * t, ('gw', 0)
            rel = tag
            if b < 8 and t >= 12:
                rel = tag + ((1 + (b >> 1)) if (b < 6 and b & 1) else 0,)
            ops[('x', t, b)] = Operand(('x', t, b), lambda q: ["ds_read_b128 %s, v%d offset:%d" % (a4(q), r, o)], tag, rel)
        return ops[('x', t, b)]

    def W(t, seg, hh):
        if ('w', t, seg, hh) not in ops:
            ad = [lb2.addr(vw1 if hh else vw0, WB + (t % NWS) * WS + 4096 * seg + 512 * h) for h in range(2)]
            ops[('w', t, seg, hh)] = Operand(('w', t, seg, hh), lambda qq: ["ds_read_b64_tr_b16 %s, v%d offset:%d" % (a2(qq + 2 * h), ad[h][0], ad[h][1]) for h in range(2)],
                                             ('w', t), ('w', t))
        return ops[('w', t, seg, hh)]

    def tiles(b):
        out = []
        for hh in range(2):
            if b < 6:
                out.append((Qa(hh, b), 0, hh))
            out += [(Ka(hh, b), 1, hh), (Va(hh, b), 2, hh)]
        return out

    def mm(t, b, tile):
        d, seg, hh = tile
        return (d, X(t, b), W(t, seg, hh), t == 0) if seg == 2 else (d, W(t, seg, hh), X(t, b), t == 0)

    def gate(t):
        return (TA, X(t, 8), X(t, 7), t == 0)
    MC, MP, MH0, MH1, AM, ONES, SPARE = 228, 232, 236, 240, 244, 248, 252
    vST, vGO = 250, 251
    ES = [srd(sG, pWS, 8192, add=G_OFF),
          "s_mov_b32 s%d, 0x%x" % (sC0, SCL), "s_mov_b32 s%d, 0x%x" % (sC0 + 1, NLOG2E),
          ["s_lshl_b32 s%d, s%d, 1" % (sU, sCG), "s_and_b32 s%d, s%d, 1" % (sU + 1, sWV)],
          ["s_add_u32 s%d, s%d, s%d" % (sU, sU, sU + 1), "s_lshl_b32 s%d, s%d, 11" % (sU, sU)],
          "v_lshlrev_b32 v%d, 4, v%d" % (vST, vLANE), "v_add_u32 v%d, s%d, v%d" % (vST, sU, vST),
          ["s_lshl_b32 s%d, s%d, 2" % (sU, sCG), "s_add_u32 s%d, s%d, s%d" % (sU, sU, sWV)],
          "s_lshl_b32 s%d, s%d, 2" % (sU + 1, sU), "s_mov_b32 s%d, 0x%x" % (sU + 8, QT_LO), "s_mov_b32 s%d, 0x%x" % (sU + 9, QT_HI),
          "s_lshr_b64 s[%d:%d], s[%d:%d], s%d" % (sU + 8, sU + 9, sU + 8, sU + 9, sU + 1), "s_and_b32 s%d, s%d, 15" % (sU + 1, sU + 8),
          ["s_add_u32 s%d, s%d, s%d" % (sU + 1, sU + 1, sRB0), "s_lshl_b32 s%d, s%d, 6" % (sU + 1, sU + 1)],
          ["s_cmp_lt_u32 s%d, 12" % sU, "s_cselect_b32 s%d, s%d, 0x%x" % (sU + 1, sU + 1, BIG)],
          "v_lshl_add_u32 v%d, v%d, 2, s%d" % (vGO, vLANE, sU + 1),
          "v_mov_b32 v%d, 0x%x" % (SPARE, BIG),
          "v_cmp_gt_u32 vcc, 16, v%d" % vLANE,
          "v_mov_b32 v%d, 0x3f803f80" % ONES, "v_mov_b32 v%d, 0x3f803f80" % (ONES + 1),
          "v_cndmask_b32 v%d, v%d, v%d, vcc" % (vGO, SPARE, vGO),
          ["s_lshr_b32 s%d, s%d, 1" % (sU + 2, sWV), "s_mul_i32 s%d, s%d, 6" % (sU + 2, sU + 2)],
          "s_add_u32 s%d, s%d, s%d" % (sU + 2, sU + 2, sRB0)]
    so = store_offsets([(sU + 2, b) for b in range(6)])
    HV, HV2 = sU + 4, sU + 6
    ES2 = ["v_and_b32 v%d, 15, v%d" % (SPARE, vLANE), "v_lshrrev_b32 v%d, 4, v%d" % (SPARE + 1, vLANE),
           "v_lshlrev_b32 v%d, 2, v%d" % (SPARE + 1, SPARE + 1), "v_sub_u32 v%d, v%d, v%d" % (SPARE, SPARE, SPARE + 1),
           "v_mov_b32 v%d, 0xff800000" % (SPARE + 2),
           ["s_lshr_b32 s%d, s%d, 1" % (sU, sWV), "s_or_b32 s%d, s%d, s%d" % (sU, sU, sRB0)],
           ["s_cmp_lg_u32 s%d, 0" % sU, "s_cselect_b64 s[%d:%d], -1, 0" % (HV, HV + 1)],
           ["s_mov_b32 s%d, s%d" % (HV2, HV), "s_mov_b32 s%d, 0" % (HV2 + 1)],
           "v_mov_b32 v%d, 0" % AM, "v_mov_b32 v%d, 0" % (AM + 1)]
    ES3 = []
    for r in range(4):
        ES3 += ["v_subrev_u32 v%d, %d, v%d" % (SPARE + 3, r, SPARE), "v_cmp_gt_u32 vcc, 8, v%d" % (SPARE + 3),
                "v_mov_b32 v%d, 0x%x" % (SPARE + 1, 0xffff0000 if (r & 1) else 0xffff),
                "v_add_u32 v%d, %d, v%d" % (SPARE + 3, 16 - r, SPARE),
                "v_cndmask_b32 v%d, v%d, 0, vcc" % (MC + r, SPARE + 2),
                "v_cndmask_b32 v%d, 0, v%d, vcc" % (SPARE + 1, SPARE + 1),
                "v_cmp_gt_u32 vcc, 8, v%d" % (SPARE + 3),
                "v_or_b32 v%d, v%d, v%d" % (AM + (r >> 1), AM + (r >> 1), SPARE + 1),
                "v_add_u32 v%d, %d, v%d" % (SPARE + 3, 8 - r, SPARE),
                "v_cndmask_b32 v%d, v%d, 0, vcc" % (MP + r, SPARE + 2),
                "s_and_b64 vcc, vcc, s[%d:%d]" % (HV, HV + 1),
                "v_cndmask_b32 v%d, v%d, 0, vcc" % (MH1 + r, SPARE + 2),
                "v_cmp_gt_u32 vcc, 8, v%d" % (SPARE + 3),
                "s_and_b64 vcc, vcc, s[%d:%d]" % (HV2, HV2 + 1),
                "v_cndmask_b32 v%d, v%d, 0, vcc" % (MH0 + r, SPARE + 2)]
    ES3 += ["v_not_b32 v%d, v%d" % (AM + 2, AM), "v_not_b32 v%d, v%d" % (AM + 3, AM + 1)]
    TL = ["s_lshl_b32 s%d, s%d, 12" % (sT, sXCD), "s_lshl_b32 s%d, s%d, 3" % (sT + 1, sXCD),
          "s_lshl_b32 s%d, s%d, 4" % (sT + 2, sWV), "s_add_u32 s%d, s%d, s%d" % (sT + 2, sT + 2, sIDX),
          "s_cmp_eq_u32 s%d, 10" % (sT + 2), "s_cselect_b32 s%d, s%d, 0x%x" % (sT, sT, BIG), "s_cselect_b32 s%d, s%d, 0x%x" % (sT + 1, sT + 1, BIG),
          "v_and_b32 v60, 31, v%d" % vLANE, "v_lshl_add_u32 v60, v60, 7, s%d" % sT,
          "v_lshl_add_u32 v62, v%d, 24, s%d" % (vLANE, sT + 1),
          "buffer_load_dword v60, v60, %s, 0 offen sc1" % s4(sF)]
    TP = ["v_and_b32 v60, 1, v60", "v_cmp_eq_u32 vcc, 0, v60", "v_mov_b32 v61, 1", "v_mov_b32 v60, vcc_lo",
          "buffer_store_dwordx2 v[60:61], v62, %s, 0 offen sc1" % s4(sD)]
    stf = ["", " sc1", " nt", " sc1 nt"][OPT['stsc']]
    VB = 48
    def Vb(hh, k): return VB + 8 * hh + 2 * k
    def cvt2(dst, src): return ["v_cvt_pk_bf16_f32 v%d, v%d, v%d" % (dst, src, src + 1), "v_cvt_pk_bf16_f32 v%d, v%d, v%d" % (dst + 1, src + 2, src + 3)]
    def sumd(hh, b): return (SPARE, TA)[hh] if b == 0 else Qa(hh, 4) if b == 1 else Qa(hh, b - 2)

    def norm(b):
        T = ["v_rcp_f32 v%d, v%d" % (sumd(hh, b), sumd(hh, b)) for hh in range(2)]
        for hh in range(2):
            T += ["v_mul_f32 v%d, v%d, v%d" % (Va(hh, b) + r, Va(hh, b) + r, sumd(hh, b)) for r in range(4)]
        for hh in range(2):
            T += cvt2(Ka(0, b) + 2 * hh, Va(hh, b))
        return T + [("buffer_store_dwordx4 %s, v%d, %s, s%d offen%s" % (v4(Ka(0, b)), vST, s4(sA), sST + b, stf), ('stB' if b & 1 else 'stA', b))]

    def att(b, mid):
        T = []
        if b == 0:
            for hh in range(2):
                T += cvt2(Ka(hh, 6), Ka(hh, 6)) + cvt2(Vb(hh, 0), Va(hh, 6))
        for hh in range(2):
            T += cvt2(Qa(hh, b), Qa(hh, b)) + cvt2(Qa(hh, b) + 2, Ka(hh, b)) + cvt2(Vb(hh, 1 + (b >> 1)), Va(hh, b))
        for hh in range(2):
            kp = Ka(hh, 6) if b < 2 else Qa(hh, b - 2) + 2
            mk = MH0 if b == 0 else MH1 if b == 1 else MP
            T += ["v_mfma_f32_16x16x16_bf16 %s, %s, %s, %s" % (v4(Ka(hh, b)), v2(Qa(hh, b) + 2), v2(Qa(hh, b)), v4(MC)),
                  "v_mfma_f32_16x16x16_bf16 %s, %s, %s, %s" % (v4(Va(hh, b)), v2(kp), v2(Qa(hh, b)), v4(mk))]
        T += mid
        for hh in range(2):
            S, P = Ka(hh, b), Va(hh, b)
            T += ["v_max_f32 v%d, v%d, v%d" % (S + r, S + r, P + r) for r in range(4)]
        for hh in range(2):
            S, P = Ka(hh, b), Va(hh, b)
            T += ["v_max3_f32 v%d, v%d, v%d, v%d" % (P, S, S + 1, S + 2)]
        for hh in range(2):
            S, P = Ka(hh, b), Va(hh, b)
            T += ["v_max_f32 v%d, v%d, v%d" % (P, P, S + 3)]
        Ee, Ff = Va(0, b), Va(1, b)
        T += ["v_permlane32_swap_b32 v%d, v%d" % (Ee, Ff),
              "v_max_f32 v%d, v%d, v%d" % (Ee + 1, Ee, Ff), "v_max_f32 v%d, v%d, v%d" % (Ee, Ee, Ff),
              "v_permlane16_swap_b32 v%d, v%d" % (Ee, Ee + 1),
              "v_max_f32 v%d, v%d, v%d" % (Ee, Ee, Ee + 1),
              "v_mul_f32 v%d, s%d, v%d" % (Ff, sC0, Ee), "v_mul_f32 v%d, s%d, v%d" % (Ee, sC0, Ee),
              "v_permlane32_swap_b32 v%d, v%d" % (Ee, Ff)]
        for hh in range(2):
            T += ["v_fma_f32 v%d, v%d, s%d, -v%d" % (Ka(hh, b) + r, Ka(hh, b) + r, sC0, Va(hh, b)) for r in range(4)]
        for hh in range(2):
            T += ["v_exp_f32 v%d, v%d" % (Ka(hh, b) + r, Ka(hh, b) + r) for r in range(4)]
        for hh in range(2):
            T += cvt2(Va(hh, b) + 2, Ka(hh, b))
        for hh in range(2):
            P, S = Va(hh, b), Ka(hh, b)
            T += ["v_and_b32 v%d, v%d, v%d" % (S, P + 2, AM + 2), "v_and_b32 v%d, v%d, v%d" % (S + 1, P + 3, AM + 3),
                  "v_and_b32 v%d, v%d, v%d" % (S + 2, P + 2, AM), "v_and_b32 v%d, v%d, v%d" % (S + 3, P + 3, AM + 1)]
        for hh in range(2):
            T += ["v_mfma_f32_16x16x16_bf16 %s, %s, %s, 0" % (v4(sumd(hh, b)), v2(ONES), v2(Va(hh, b) + 2))]
        for hh in range(2):
            T += ["v_mfma_f32_16x16x32_bf16 %s, %s, %s, 0" % (v4(Va(hh, b)), v4(Vb(hh, b >> 1)), v4(Ka(hh, b)))]
        return T
    gsig = ["v_mul_f32 v%d, 0x3fb8aa3b, v%d" % (TA, TA), "v_min_f32 v%d, 0x42ac0000, v%d" % (TA, TA), "v_exp_f32 v%d, v%d" % (TA, TA), "s_nop 0",
            ("buffer_store_dword v%d, v%d, %s, 0 offen sc1" % (TA, vGO, s4(sG)), ('stA', 100))]
    extra = {0: P1.w2.setup_dma(), 1: P1.w2.setup_rd(), 2: TP, 3: ES + so[:10], 4: so[10:], 5: ES2, 6: ES3[:21], 7: ES3[21:42], 8: ES3[42:]}
    extra[OPT['wt']] = extra.get(OPT['wt'], []) + warmups(56, 57)
    extra[OPT['wt2']] = extra.get(OPT['wt2'], []) + warmups(54, 55, 2)[:-1]
    extra[OPT['wt3']] = extra.get(OPT['wt3'], []) + warmups(58, 59, 1)
    segs = []
    for t in range(12):
        if OPT['chain'] and OPT['chain'] < 4:
            al = [mm(k, b, tl) for b in range(7) for tl in tiles(b) for k in (t & ~1, t | 1)] + [gate(t & ~1), gate(t | 1)]
            mfl = al[41 * (t & 1):41 * (t & 1) + 41]
        else:
            mfl = [mm(t, b, tl) for b in range(7) for tl in tiles(b)] + [gate(t)]
        segs.append(dict(mf=mfl,
                         fill=extra.get(t, []), ndma=OPT['maxd'] if t >= 4 else OPT['maxd0'], nw2r=OPT['nrm']))
    segs[9]['fill'] = segs[9]['fill'] + flag_setup() + [(tag_load(), ('tag', 0))]
    segs[11]['extra_vm'] = lambda t: t[0] == 'tag'
    segs[11]['post'] = tag_check("Q")
    segs[2]['extra_vm'] = lambda t: t[0] == 'tp'
    fs = []
    if OPT['clr'] == 12:
        segs[11]['fill'] = segs[11]['fill'] + mailbox_clear()[:-2]
        fs = mailbox_clear()[-2:]
    elif OPT['clr'] >= 0:
        segs[OPT['clr']]['fill'] = segs[OPT['clr']]['fill'] + mailbox_clear()
    if OPT['fsplit']:
        for t in range(12, 16):
            segs.append(dict(mf=[gate(t)] + [mm(t, b, tl) for b in (6, 0) for tl in tiles(b)],
                             fill=fs[:12] if t == 14 else fs[12:] if t == 15 else [], ndma=3, nw2r=1, need_dma_done=(t == 14), rdrate=2))
    else:
        segs.append(dict(mf=sum([[gate(t)] + [mm(t, b, tl) for b in (6, 0) for tl in tiles(b)] for t in range(12, 16)], []),
                         fill=fs, ndma=OPT['maxd'], nw2r=2, need_dma_done=True, rdrate=2))
    s0 = len(segs)
    seq = [0, 2, 4, 1, 3, 5]
    for i in range(1, 6):
        b, pb = seq[i], seq[i - 1]
        if i == 1:
            f = att(pb, gsig)
        elif i == 4 and OPT['ndef'] == 0:
            f = norm(seq[i - 2]) + att(pb, [])
        else:
            f = att(pb, norm(seq[i - 2]))
        si = len(segs)
        segs.append(dict(mf=[mm(t, b, tl) for tl in tiles(b) for t in range(12, 16)], fill=f, ndma=OPT['fdQ'], nw2r=OPT['nwf'],
                         barrier=bool((OPT['barQ'] >> (si - s0)) & 1), force_release=(i == 5)))
        if i == OPT['pubQ']:
            assert i >= 5
            pub_seg(segs[-1], PF, "Q")
    segs[-1]['barrier'] = True
    for x in P1.sched.take(10):
        E(x)
    E(PF.xstamp(51) + tlb_warm() + S2 + ["@LB"] + late_scalar_setup() + (mailbox_clear() if OPT['clr'] < 0 else []) + ["@TOUCH"])
    for x in P1.sched.take(OPT['npro'] - 10):
        E(x)
    E(TL[:-1])
    E(TL[-1], ('tp', 0))
    P1.run(PF, segs, (0, 4, 8, 12))
    E(PF.stamp())
    if OPT['pubQ'] > 5:
        pub_inline(E, PF, "Q")
    tail = att(5, norm(3))
    cutp = len(tail) - 28
    if OPT['ppQ']:
        E(POLL, ('pa', 0))
    E(tail[:cutp])
    P1.w2.flush(E, OPT['keep'])
    if not OPT['ppQ']:
        E(POLL, ('pa', 0))
    E(tail[cutp:] + norm(5))
    E(PF.stamp())
    phase2(P1, PF, "Q")
    i = E.L.index("@LB")
    return L + E.L[:i] + lb.setup + lb2.setup + E.L[i + 1:]


def sizes(lines):
    import subprocess, tempfile, os, re
    d = tempfile.mkdtemp()
    src = ['.amdgcn_target "amdgcn-amd-amdhsa--gfx950"', ".text"] + lines + ["L_exit:", "s_endpgm"]
    open(d + "/a.s", "w").write("\n".join(src) + "\n")
    r = subprocess.run(["clang", "-x", "assembler", "-target", "amdgcn-amd-amdhsa", "-mcpu=gfx950", "-c", d + "/a.s", "-o", d + "/a.o"], capture_output=True, text=True)
    assert r.returncode == 0, r.stderr
    o = subprocess.run(["llvm-objdump", "-d", "--mcpu=gfx950", d + "/a.o"], capture_output=True, text=True).stdout
    sz = [4 * len(m.group(1).split()) for m in re.finditer(r"// [0-9A-F]{12}: ((?:[0-9A-F]{8} ?)+)", o)]
    out = []
    i = 0
    for l in lines:
        if l.endswith(':'):
            out.append(0)
        else:
            out.append(sz[i])
            i += 1
    assert i == len(sz) - 1
    return out


def add_touch(lines, lab):
    i = lines.index("@TOUCH")
    probe = lines[:i] + ["s_nop 0"] * 9 + lines[i + 1:]
    total = sum(sizes(probe))
    npg = (total - 16) // 4096
    ent = ["s_mov_b64 exec, 0"]
    for w in range(3):
        ent += ["s_cmp_eq_u32 s%d, %d" % (sWV, w), "s_cbranch_scc1 %s_T%d" % (lab, min(w, npg - 1))]
    ent += ["s_branch %s_T%d" % (lab, min(3, npg - 1)), "%s_Tret:" % lab, "s_mov_b64 exec, -1"]
    lines = lines[:i] + ent + lines[i + 1:]
    sz = sizes([x if not x.startswith(("s_cbranch_scc1 %s_T" % lab, "s_branch %s_T" % lab)) else "s_nop 0" for x in lines])
    out = []
    addr = 0
    k = 0
    for l, n in zip(lines, sz):
        if k < npg and addr >= 4096 * (k + 1) and n:
            out += ["%s_T%d:" % (lab, k), "s_cbranch_execz %s" % ("%s_T%d" % (lab, k + 4) if k + 4 < npg else lab + "_Tret")]
            addr += 4
            k += 1
        out.append(l)
        addr += n
    assert k == npg, (k, npg, addr)
    return out


def main():
    K = NAME + "_kernel"
    L = [K + ":", "s_cmp_ge_u32 s2, 256", "s_cbranch_scc1 L_exit",
         "s_load_dwordx8 s[4:11], s[0:1], 0", "s_load_dwordx8 s[12:19], s[0:1], 32",
         "s_load_dwordx4 s[20:23], s[0:1], 64", "s_load_dwordx2 s[24:25], s[0:1], 80",
         "v_lshrrev_b32 v2, 6, v0", "v_and_b32 v%d, 63, v0" % vLANE, "v_readfirstlane_b32 s%d, v2" % sWV,
         "s_and_b32 s%d, s2, 7" % sXCD, "s_lshr_b32 s%d, s2, 3" % sIDX, "s_cmp_lt_u32 s%d, 11" % sIDX, "s_cbranch_scc1 L_Q"]
    pf = []
    if OPT['prof'] >= 2:
        L.insert(3, "s_memrealtime s[100:101]")
    if OPT['iprefetch']:
        i = L.index("v_lshrrev_b32 v2, 6, v0")
        L[i:i] = ["s_getpc_b64 s[26:27]", "v_and_b32 v63, 15, v0", "s_lshr_b32 s3, s2, 3", "s_lshl_b32 s3, s3, 11",
                  "v_lshl_add_u32 v63, v63, 7, s3", "global_load_dword v63, v63, s[26:27]"]
    rep = {}
    def fin(lines, lab):
        i = lines.index("@TOUCH")
        lines[i] = "s_setprio 0"
        mark = sum(1 for x in lines[:i] if x == "s_setprio 0")
        lines = fix_hazards(lines, rep)
        i = lines.index("s_setprio 0")
        if OPT['touch']:
            lines[i] = "@TOUCH"
            return add_touch(lines, lab)
        return lines[:i] + lines[i + 1:]
    H = fin(["s_nop 3"] + pf + gen_H(), "H")
    sys.stderr.write("H: %d lines, nops %d\n" % (len(H), rep['nops']))
    Q = fin(["s_nop 3"] + pf + gen_Q(), "Q")
    sys.stderr.write("Q: %d lines, nops %d\n" % (len(Q), rep['nops']))
    out = ["; generated by gen10.py: single persistent kernel, flag hand-off between GEMM1 and GEMM2",
           "; @launch grid=(256,1,1) block=(256,1,1) lds=163840",
           '.amdgcn_target "amdgcn-amd-amdhsa--gfx950"', ".text", ".globl " + K, ".p2align 8", ".type %s,@function" % K]
    if OPT['touch']:
        out += fix_hazards(L) + ["s_branch L_H", "L_exit:", "s_endpgm", ".p2align 12", "L_H:"] + H + [".p2align 12", "L_Q:"] + Q
    else:
        out += fix_hazards(L) + H + ["L_exit:", "s_endpgm", ".p2align 6", "L_Q:"] + Q
    out += [".p2align 8", ".fill 6144, 4, 0xbf800000", "s_endpgm"]
    out += ['.section .rodata,"a"', ".p2align 6", """.amdhsa_kernel %s
  .amdhsa_next_free_vgpr 512
  .amdhsa_next_free_sgpr 102
  .amdhsa_accum_offset 256
  .amdhsa_group_segment_fixed_size 0
  .amdhsa_kernarg_size 88
  .amdhsa_user_sgpr_count 2
  .amdhsa_user_sgpr_kernarg_segment_ptr 1
  .amdhsa_system_sgpr_workgroup_id_x 1
.end_amdhsa_kernel""" % K]
    print("\n".join(out))


main()
```
